```python
import torch

def _softmax(x, axis=-1):
    return torch.softmax(x, dim=axis)

def _gelu(x):
    return torch.nn.functional.gelu(x, approximate='tanh')

def _silu(x):
    return torch.nn.functional.silu(x)

def _sigmoid(x):
    return torch.sigmoid(x)

def _layernorm(x, axis=-1, eps=1e-05):
    m = x.mean(dim=axis, keepdim=True)
    v = x.var(dim=axis, keepdim=True, unbiased=False)
    return (x - m) / torch.sqrt(v + eps)

def _scatter_add(tgt, idx, src, axis=0):
    return tgt.clone().index_add_(axis, idx, src)

def _segment_sum(src, seg, n):
    out = torch.zeros((n,) + src.shape[1:], dtype=src.dtype)
    return out.index_add_(0, seg, src)

def _pad(x, pw):
    flat = tuple((v for pair in reversed(pw) for v in pair))
    return torch.nn.functional.pad(x, flat)
kernel_name = 'standalone__tensor_product_equiv_equiformer__graph'

def setup_inputs():

    _w = lambda a: (lambda t: t.to(torch.bfloat16) if t.is_floating_point() else t)(torch.as_tensor(a))
    N, deg, C, De = (50000, 16, 64, max(16, 1))
    E = N * deg
    src = (lambda lo, hi, *s: torch.randint(lo, hi, s))(0, N, E).to(torch.int64)
    dst = (lambda lo, hi, *s: torch.randint(lo, hi, s))(0, N, E).to(torch.int64)
    rvec = (lambda *s: torch.randn(*s, dtype=torch.bfloat16) * 0.05)(E, 3).to(float)
    rn = (torch.linalg.norm(rvec, dim=-1, keepdim=True) + 1e-06).to(float)
    rhat = (rvec / rn).to(float)
    eps = torch.zeros((3, 3, 3), dtype=float)
    eps[0, 1, 2] = eps[1, 2, 0] = eps[2, 0, 1] = 1.0
    eps[0, 2, 1] = eps[2, 1, 0] = eps[1, 0, 2] = -1.0
    return {'x': _w((lambda *s: torch.randn(*s, dtype=torch.bfloat16) * 0.2)(N, 4 * C).to(float)), 'rhat': _w(rhat), 'e_attr': _w((lambda *s: torch.randn(*s, dtype=torch.bfloat16) * 0.2)(E, De).to(float)), 'src': _w(src), 'dst': _w(dst), 'w_rad': _w((lambda *s: torch.randn(*s, dtype=torch.bfloat16) * 0.2)(De, 5 * C).to(float)), 'w_si0': _w((lambda *s: torch.randn(*s, dtype=torch.bfloat16) * 0.2)(2 * C, C).to(float)), 'w_si1': _w((lambda *s: torch.randn(*s, dtype=torch.bfloat16) * 0.05)(3 * C, C).to(float)), 'cg_eps': _w(eps)}

def reference(x, rhat, e_attr, src, dst, w_rad, w_si0, w_si1, cg_eps):
    N = x.shape[0]
    C = w_si0.shape[1]
    E = rhat.shape[0]
    x0 = x[:, :C].clone()
    x1 = x[:, C:].reshape(N, 3, C)
    R = (e_attr @ w_rad).reshape(E, 5, C)
    f0 = x0[src]
    f1 = x1[src]
    Y1 = rhat
    p00_0 = f0 * R[:, 0, :]
    p11_0 = torch.einsum('ejc,ej->ec', f1, Y1) * R[:, 1, :]
    p01_1 = torch.einsum('ec,ej->ejc', f0, Y1) * R[:, 2, :][:, None, :]
    p10_1 = f1 * R[:, 3, :][:, None, :]
    p11_1 = torch.einsum('ijk,ekc,ej->eic', cg_eps, f1, Y1) * R[:, 4, :][:, None, :]
    m0 = torch.concatenate([p00_0, p11_0], axis=-1) @ w_si0
    m1 = torch.einsum('ejp,pc->ejc', torch.concatenate([p01_1, p10_1, p11_1], axis=-1), w_si1)
    agg0 = _segment_sum(m0, dst, N)
    agg1 = _segment_sum(m1.reshape(E, 3 * C), dst, N).reshape(N, 3, C)
    gate = _sigmoid(agg0)
    out1 = agg1 * gate[:, None, :]
    return torch.concatenate([agg0, out1.reshape(N, 3 * C)], axis=-1)
```

```python
N = 50000
E = 800000
CH = 3200
NCH = E // CH
WS_EAS = 0
WS_META = 0x1900000
WS_KEY = WS_META + E * 8
WS_TAB = 0x2300000
WS_WR = 0x2380000
WS_WS = WS_WR + 10240
WS_ID = 0x2400000
WS_SCR = 0x2600000
assert WS_META >= E * 32 and WS_TAB >= WS_META + E * 12 and WS_WR >= WS_TAB + NCH * 1024
KA_X, KA_RHAT, KA_EA, KA_SRC, KA_DST, KA_WRAD, KA_WSI0, KA_WSI1, KA_EPS, KA_OUT, KA_DBG, KA_WS = [8 * i for i in range(12)]

class Asm:
    def __init__(self):
        self.lines = []
    def __call__(self, text):
        for l in text.strip('\n').split('\n'):
            l = l.strip()
            if not l:
                continue
            self.lines.append(l if l.endswith(':') else '    ' + l)
    def srd(self, d, base, nbytes, off=0):
        if off:
            self(f"s_add_u32 s{d}, s{base}, {off:#x}\ns_addc_u32 s{d+1}, s{base+1}, 0")
        else:
            self(f"s_mov_b32 s{d}, s{base}\ns_mov_b32 s{d+1}, s{base+1}")
        self(f"s_mov_b32 s{d+2}, {nbytes:#x}\ns_mov_b32 s{d+3}, 0x20000")
    def scan64(self, v):
        for sh in (1, 2, 4, 8):
            self(f"s_nop 1\nv_add_u32_dpp v{v}, v{v}, v{v} row_shr:{sh} row_mask:0xf bank_mask:0xf bound_ctrl:0")
        self(f"s_nop 1\nv_add_u32_dpp v{v}, v{v}, v{v} row_bcast:15 row_mask:0xa bank_mask:0xf")
        self(f"s_nop 1\nv_add_u32_dpp v{v}, v{v}, v{v} row_bcast:31 row_mask:0xc bank_mask:0xf")
    def text(self):
        return '\n'.join(self.lines) + '\n'

def kernel_desc(name, vgpr, sgpr=102):
    return f""".amdhsa_kernel {name}
  .amdhsa_next_free_vgpr {vgpr}
  .amdhsa_next_free_sgpr {sgpr}
  .amdhsa_accum_offset {min(256, (vgpr + 3) // 4 * 4)}
  .amdhsa_group_segment_fixed_size 0
  .amdhsa_kernarg_size 96
  .amdhsa_user_sgpr_count 2
  .amdhsa_user_sgpr_kernarg_segment_ptr 1
  .amdhsa_system_sgpr_workgroup_id_x 1
  .amdhsa_float_denorm_mode_32 3
.end_amdhsa_kernel
"""
```

```python
from common import *

K1_LDS_EA = 0
K1_LDS_META = CH * 32
K1_LDS_INV = K1_LDS_META + CH * 12
K1_LDS_HIST = K1_LDS_INV + CH * 2
K1_LDS = K1_LDS_HIST + 2048
K1_GRID = NCH + 4
K1_VGPR = 64
QSHIFT = 12

def gen_k1(name, nt=' nt'):
    a = Asm()
    a(f"""
{name}:
s_cmp_ge_u32 s2, {K1_GRID}
s_cbranch_scc1 {name}_end
s_load_dwordx8 s[4:11], s[0:1], {KA_RHAT}
s_load_dwordx2 s[12:13], s[0:1], {KA_WS}
s_cmp_ge_u32 s2, {NCH}
s_cbranch_scc1 {name}_weights
v_lshrrev_b32 v1, 6, v0
v_lshlrev_b32 v2, 4, v0
v_readfirstlane_b32 s3, v1
v_mul_u32_u24 v3, 24, v0
v_and_b32 v4, 63, v0
v_lshlrev_b32 v4, 4, v4
v_mov_b32 v5, 0
v_lshlrev_b32 v6, 2, v0
s_mul_i32 s40, s2, {CH*4}
s_mul_i32 s41, s2, {CH*6}
s_mul_i32 s42, s2, {CH*32}
s_mul_i32 s43, s2, {CH*12}
s_mul_i32 s44, s2, {CH}
s_waitcnt lgkmcnt(0)
""")
    a.srd(16, 10, E * 4)
    a.srd(20, 8, E * 4)
    a.srd(24, 4, E * 6)
    a.srd(28, 6, E * 32)
    a.srd(32, 12, E * 32, WS_EAS)
    a.srd(36, 12, E * 12, WS_META)
    a.srd(48, 12, NCH * 1024, WS_TAB)
    a(f"""
v_cmp_gt_u32 vcc, 512, v0
s_and_saveexec_b64 s[46:47], vcc
v_add_u32 v7, {K1_LDS_HIST}, v6
ds_write_b32 v7, v5
s_mov_b64 exec, s[46:47]
v_cmp_gt_u32 vcc, {CH//4}, v0
s_and_saveexec_b64 s[46:47], vcc
s_mov_b64 s[52:53], exec
s_cbranch_execz {name}_noload
buffer_load_dwordx4 v[8:11], v2, s[16:19], s40 offen{nt}
buffer_load_dwordx4 v[12:15], v2, s[20:23], s40 offen{nt}
buffer_load_dwordx4 v[16:19], v3, s[24:27], s41 offen{nt}
buffer_load_dwordx2 v[20:21], v3, s[24:27], s41 offen offset:16{nt}
{name}_noload:
s_mov_b64 exec, s[46:47]
s_lshl_b32 s14, s3, 10
s_add_u32 s15, s14, s42
""")
    for j in range(7):
        if j == 6:
            a(f"s_cmp_ge_u32 s3, 4\ns_cbranch_scc1 {name}_dma_done")
        a(f"""
s_mov_b32 m0, s14
s_add_u32 s14, s14, 0x4000
buffer_load_dwordx4 v4, s[28:31], s15 offen{nt} lds
s_add_u32 s15, s15, 0x4000
""")
        if j == 6:
            a("s_waitcnt vmcnt(9)")
            a(f"s_branch {name}_keys")
    a(f"""
{name}_dma_done:
s_waitcnt vmcnt(8)
{name}_keys:
s_waitcnt lgkmcnt(0)
s_barrier
s_mov_b64 exec, s[52:53]
s_cbranch_execz {name}_nohist
v_mov_b32 v5, 1
s_mov_b32 s14, {K1_LDS_HIST}
s_mov_b32 s15, {K1_LDS_HIST + 1024}
""")
    for k in range(4):
        a(f"""
v_and_b32 v{24+k}, 0xff, v{8+k}
v_lshrrev_b32 v{28+k}, {QSHIFT}, v{12+k}
v_bfe_u32 v1, v{8+k}, 5, 3
v_lshl_add_u32 v{24+k}, v{24+k}, 2, s14
v_lshl_add_u32 v{28+k}, v1, 5, v{28+k}
ds_add_rtn_u32 v{32+k}, v{24+k}, v5
v_lshl_add_u32 v{28+k}, v{28+k}, 2, s15
ds_add_rtn_u32 v{36+k}, v{28+k}, v5
""")
    a(f"""
{name}_nohist:
s_mov_b64 exec, -1
s_waitcnt lgkmcnt(0)
s_barrier
s_cmp_ge_u32 s3, 2
s_cbranch_scc1 {name}_noscan
v_add_u32 v7, {K1_LDS_HIST}, v2
ds_read_b128 v[40:43], v7
s_waitcnt lgkmcnt(0)
v_add_u32 v45, v40, v41
v_add_u32 v46, v45, v42
v_add_u32 v47, v46, v43
v_mov_b32 v44, v47
""")
    a.scan64(44)
    a(f"""
v_sub_u32 v44, v44, v47
v_add_u32 v47, v44, v46
v_add_u32 v46, v44, v45
v_add_u32 v45, v44, v40
ds_write_b128 v7, v[44:47]
s_cmp_eq_u32 s3, 0
s_cbranch_scc0 {name}_noscan
v_lshl_or_b32 v40, v40, 16, v44
v_lshl_or_b32 v41, v41, 16, v45
v_lshl_or_b32 v42, v42, 16, v46
v_lshl_or_b32 v43, v43, 16, v47
s_lshl_b32 s14, s2, 10
buffer_store_dwordx4 v[40:43], v2, s[48:51], s14 offen
{name}_noscan:
s_waitcnt lgkmcnt(0)
s_barrier
s_mov_b64 exec, s[52:53]
s_cbranch_execz {name}_noplace
""")
    for k in range(4):
        a(f"ds_read_b32 v{24+k}, v{24+k}\nds_read_b32 v{28+k}, v{28+k}")
    a(f"""
s_waitcnt vmcnt(6)
s_mov_b32 s14, 0x05040100
s_mov_b32 s15, 0x05040302
v_mov_b32 v48, v16
v_perm_b32 v49, v12, v17, s14
v_alignbit_b32 v50, v18, v17, 16
v_perm_b32 v51, v13, v18, s15
v_mov_b32 v52, v19
v_perm_b32 v53, v14, v20, s14
v_alignbit_b32 v54, v21, v20, 16
v_perm_b32 v55, v15, v21, s15
s_mov_b32 s14, {K1_LDS_META}
s_mov_b32 s15, {K1_LDS_INV}
v_mov_b32 v22, 12
s_waitcnt lgkmcnt(0)
""")
    for k in range(4):
        a(f"""
v_add_u32 v{24+k}, v{24+k}, v{32+k}
v_add_u32 v{28+k}, v{28+k}, v{36+k}
v_mad_u32_u24 v{24+k}, v{24+k}, v22, s14
v_lshrrev_b32 v1, 8, v{8+k}
v_add_u32 v23, s44, v{28+k}
v_lshl_or_b32 v23, v1, 24, v23
ds_write2_b32 v{24+k}, v{48+2*k}, v{49+2*k} offset0:0 offset1:1
ds_write_b32 v{24+k}, v23 offset:8
v_lshl_add_u32 v{28+k}, v{28+k}, 1, s15
v_add_u32 v1, {k}, v6
ds_write_b16 v{28+k}, v1
""")
    a(f"""
{name}_noplace:
s_mov_b64 exec, -1
s_waitcnt lgkmcnt(0)
s_barrier
v_add_u32 v7, {K1_LDS_META}, v2
ds_read_b128 v[8:11], v7
ds_read_b128 v[12:15], v7 offset:16384
ds_read_b128 v[16:19], v7 offset:32768
v_and_b32 v1, 0x3fe, v0
v_add_u32 v1, {K1_LDS_INV}, v1
""")
    for j in range(7):
        a(f"ds_read_u16 v{24+j}, v1 offset:{1024*j}")
    a(f"""
s_add_u32 s14, s43, 16384
s_add_u32 s15, s43, 32768
v_and_b32 v1, 1, v0
v_lshlrev_b32 v1, 4, v1
v_cmp_gt_u32 vcc, {CH*12//16 - 2048}, v0
s_waitcnt lgkmcnt(7)
buffer_store_dwordx4 v[8:11], v2, s[36:39], s43 offen
buffer_store_dwordx4 v[12:15], v2, s[36:39], s14 offen
s_and_saveexec_b64 s[46:47], vcc
s_cbranch_execz {name}_nom3
buffer_store_dwordx4 v[16:19], v2, s[36:39], s15 offen
{name}_nom3:
s_mov_b64 exec, s[46:47]
s_waitcnt lgkmcnt(0)
""")
    for j in range(7):
        a(f"v_lshl_add_u32 v{24+j}, v{24+j}, 5, v1")
    a("s_waitcnt vmcnt(2)\ns_barrier")
    for j in range(6):
        a(f"ds_read_b128 v[{32+4*j}:{35+4*j}], v{24+j}")
    a(f"""
s_cmp_ge_u32 s3, 4
s_cbranch_scc1 {name}_no7
ds_read_b128 v[56:59], v30
s_add_u32 s14, s42, {6*16384}
s_waitcnt lgkmcnt(0)
buffer_store_dwordx4 v[56:59], v2, s[32:35], s14 offen
{name}_no7:
""")
    for j in range(6):
        a(f"""
s_waitcnt lgkmcnt({5-j})
buffer_store_dwordx4 v[{32+4*j}:{35+4*j}], v2, s[32:35], s42 offen
s_add_u32 s42, s42, 16384
""")
    a(f"""
s_endpgm
{name}_weights:
s_load_dwordx4 s[56:59], s[0:1], {KA_WRAD}
s_load_dwordx2 s[60:61], s[0:1], {KA_WSI1}
s_sub_u32 s3, s2, {NCH}
s_lshl_b32 s3, s3, 4
v_lshrrev_b32 v1, 6, v0
v_and_b32 v2, 31, v0
v_readfirstlane_b32 s14, v1
v_bfe_u32 v3, v0, 5, 1
s_add_u32 s3, s3, s14
s_waitcnt lgkmcnt(0)
""")
    a.srd(16, 56, 16 * 640)
    a.srd(20, 58, 128 * 128)
    a.srd(24, 60, 192 * 128)
    a.srd(28, 12, 51200, WS_WR)
    a(f"""
s_cmp_ge_u32 s3, 50
s_cbranch_scc1 {name}_end
v_and_b32 v5, 63, v0
v_lshlrev_b32 v5, 4, v5
s_lshl_b32 s40, s3, 10
s_cmp_ge_u32 s3, 10
s_cbranch_scc1 {name}_wsi
v_mul_u32_u24 v4, {8*640}, v3
v_lshl_add_u32 v4, v2, 1, v4
s_lshl_b32 s15, s3, 6
""")
    for k in range(8):
        a(f"buffer_load_ushort v{8+k}, v4, s[16:19], s15 offen\ns_add_u32 s15, s15, 640")
    a(f"""
s_branch {name}_wpack
{name}_wsi:
s_sub_u32 s14, s3, 10
v_lshlrev_b32 v4, 10, v3
v_lshl_add_u32 v4, v2, 2, v4
s_and_b32 s15, s14, 1
s_lshl_b32 s15, s15, 1
s_lshr_b32 s14, s14, 1
s_lshl_b32 s41, s14, 11
s_add_u32 s15, s15, s41
s_cmp_ge_u32 s14, 8
s_cbranch_scc1 {name}_wsi1
""")
    for k in range(8):
        a(f"buffer_load_ushort v{8+k}, v4, s[20:23], s15 offen offset:{128*k}")
    a(f"""
s_branch {name}_wpack
{name}_wsi1:
s_sub_u32 s15, s15, {128*128}
""")
    for k in range(8):
        a(f"buffer_load_ushort v{8+k}, v4, s[24:27], s15 offen offset:{128*k}")
    a(f"""
{name}_wpack:
s_waitcnt vmcnt(0)
v_lshl_or_b32 v16, v9, 16, v8
v_lshl_or_b32 v17, v11, 16, v10
v_lshl_or_b32 v18, v13, 16, v12
v_lshl_or_b32 v19, v15, 16, v14
buffer_store_dwordx4 v[16:19], v5, s[28:31], s40 offen
{name}_end:
s_endpgm
""")
    return a.text()
```

```python
from common import *

NSLOT = 3520
CAPW = NSLOT - 128
L_WR = 0
L_MT = 10240
L_FLAG = L_MT + 128
L_YS = L_MT + 256
L_PT = L_YS + NSLOT * 8
L_ID = L_PT + NSLOT * 4
L_RING = 56320
RING = 13440
LINE = 4160
RB_EA = 12416
RA_EA = 6144
RA_WS = 7680
TILE = 3584
K2_LDS = L_RING + 8 * RING
assert L_ID + NSLOT <= L_RING and K2_LDS == 163840
L_HIST = L_RING
L_BASE = L_HIST + 1024
L_WTOT = L_BASE + 1024
L_IDXL = L_WTOT + 64
OOB = 0x40000
XB, EB = N * 512, E * 32

S_WAVE, S_SB, S_RING, S_WBASE, S_TOTAL, S_WCNT, S_START, S_NB, S_REM = 3, 32, 33, 34, 35, 36, 37, 38, 39
SRD_X, SRD_E, SRD_T, SRD_O, SRD_W, SRD_M, SRD_S = 4, 8, 12, 16, 20, 24, 28
S_IDX = (40, 44)
S_T0, S_T1, S_T2, S_T3 = 48, 49, 50, 51
S_MASK = 52
S_XB, S_EB, S_NWIN = 68, 69, 70

def srd(d): return f"s[{d}:{d+3}]"
def vr(b, n): return f"v[{b}:{b+n-1}]"

class DS:
    def __init__(self, a, init=()):
        self.a, self.q = a, list(init)
    def op(self, tag, text):
        self.a(text); self.q.append(tag)
    def need(self, *tags):
        idx = [i for i, t in enumerate(self.q) if t in tags]
        if not idx: return False
        n = len(self.q) - 1 - max(idx)
        self.a(f"s_waitcnt lgkmcnt({min(n, 15)})")
        self.q = self.q[len(self.q) - min(n, 15):] if n else []
        return True
    def drain(self):
        if self.q: self.a("s_waitcnt lgkmcnt(0)")
        self.q = []

def rho(v_dst, v_e, tmp):
    return f"""
v_bfe_u32 v{v_dst}, v{v_e}, 1, 2
v_and_b32 v{tmp}, 1, v{v_e}
v_lshl_or_b32 v{v_dst}, v{tmp}, 2, v{v_dst}
v_and_or_b32 v{v_dst}, v{v_e}, 8, v{v_dst}
"""

def prologue(a, name, opt):
    a(f"""
{name}:
s_cmp_ge_u32 s2, 256
s_cbranch_scc1 {name}_end
s_load_dwordx2 s[72:73], s[0:1], {KA_X}
s_load_dwordx2 s[74:75], s[0:1], {KA_OUT}
s_load_dwordx2 s[76:77], s[0:1], {KA_WS}
v_lshrrev_b32 v1, 6, v0
s_and_b32 s{S_SB}, s2, 7
v_readfirstlane_b32 s{S_WAVE}, v1
s_lshl_b32 s{S_SB}, s{S_SB}, 5
s_lshr_b32 s{S_T0}, s2, 3
s_add_u32 s{S_SB}, s{S_SB}, s{S_T0}
s_mul_i32 s{S_RING}, s{S_WAVE}, {RING}
s_add_u32 s{S_RING}, s{S_RING}, {L_RING}
s_mov_b32 s{S_XB}, {XB}
s_mov_b32 s{S_EB}, {EB}
s_mov_b32 s{S_WBASE}, 0
s_waitcnt lgkmcnt(0)
""")
    stamp(a, opt, 0)
    a.srd(SRD_T, 76, NCH * 1024, WS_TAB)
    a.srd(SRD_X, 72, XB)
    a.srd(SRD_E, 76, EB, WS_EAS)
    a.srd(SRD_O, 74, XB)
    a.srd(SRD_W, 76, 51200, WS_WR)
    a.srd(SRD_M, 76, E * 12, WS_META)
    a.srd(SRD_S, 76, 256 * 8 * 128 * 256, WS_SCR)
    a(f"""
{name}_window:
v_mbcnt_lo_u32_b32 v16, -1, 0
v_mbcnt_hi_u32_b32 v16, -1, v16
v_lshlrev_b32 v0, 4, v16
s_lshl_b32 s{S_T0}, s{S_WAVE}, 6
v_add_u32 v17, s{S_T0}, v16
v_lshrrev_b32 v18, 1, v17
v_lshlrev_b32 v19, 10, v18
s_lshl_b32 s{S_T1}, s{S_SB}, 2
buffer_load_dword v20, v19, {srd(SRD_T)}, s{S_T1} offen
s_lshl_b32 s{S_T1}, s{S_WAVE}, 10
s_mov_b32 m0, s{S_T1}
s_mov_b32 s{SRD_X+2}, s{S_XB}
buffer_load_dwordx4 v0, {srd(SRD_W)}, s{S_T1} offen lds
s_and_b32 s{S_T1}, s{S_T1}, 1024
s_add_u32 s{S_T1}, s{S_T1}, 8192
s_mov_b32 m0, s{S_T1}
v_mov_b32 v21, 0
buffer_load_dwordx4 v0, {srd(SRD_W)}, s{S_T1} offen lds
""")
    npf = opt.get('prefetch', 0)
    if npf:
        a(f"""
s_lshr_b32 s{S_T1}, s2, 3
s_mul_i32 s{S_T1}, s{S_T1}, {npf * 128 * 512}
v_lshrrev_b32 v22, 2, v17
v_and_b32 v23, 3, v17
v_max_u32 v23, 1, v23
v_lshlrev_b32 v23, 7, v23
v_lshl_add_u32 v22, v22, 9, v23
""")
        for j in range(npf):
            a(f"buffer_load_dword v{64+j}, v22, {srd(SRD_X)}, s{S_T1} offen\ns_add_u32 s{S_T1}, s{S_T1}, {128*512}")
    mt = [0x05040c0c, 0x0c0c0302, 0x80000000, 0,
          0x0c0c0504, 0x0c0c0100, 0, 0x8000,
          0x01000302, 0x0c0c0c0c, 0x8000, 0,
          0x03020100, 0x0c0c0504, 0, 0]
    a(f"""
v_and_b32 v22, 0xff, v17
v_lshlrev_b32 v22, 2, v22
v_add_u32 v22, {L_HIST}, v22
ds_write_b32 v22, v21
s_cmp_lg_u32 s{S_WAVE}, 7
s_cbranch_scc1 {name}_nomt
""")
    for i, c in enumerate(mt):
        if c: a(f"s_mov_b32 s{S_T1}, {c:#x}\nv_writelane_b32 v21, s{S_T1}, {i}")
    a(f"""
v_lshlrev_b32 v22, 2, v16
ds_write_b32 v22, v21 offset:{L_MT}
{name}_nomt:
""")
    for r in range(81, 256): a(f"v_mov_b32 v{r}, 0")
    a(f"""
s_waitcnt vmcnt({2 + npf})
v_lshrrev_b32 v21, 16, v20
v_and_b32 v20, 0xffff, v20
v_and_b32 v23, 1, v16
v_cmp_eq_u32 vcc, 0, v23
s_nop 1
v_cndmask_b32 v22, 0, v21, vcc
""")
    a.scan64(22)
    a(f"""
s_nop 0
v_readlane_b32 s{S_T0}, v22, 63
s_lshl_b32 s{S_T1}, s{S_WAVE}, 2
s_add_u32 s{S_T1}, s{S_T1}, {L_WTOT}
v_mov_b32 v24, s{S_T1}
v_mov_b32 v25, s{S_T0}
ds_write_b32 v24, v25
v_and_b32 v24, 7, v16
v_lshlrev_b32 v24, 2, v24
v_add_u32 v24, {L_WTOT}, v24
v_sub_u32 v22, v22, v21
v_mul_u32_u24 v18, {CH}, v18
v_add_u32 v20, v20, v18
s_waitcnt lgkmcnt(0)
s_barrier
ds_read_b32 v25, v24
s_waitcnt lgkmcnt(0)
""")
    for sh in (1, 2, 4):
        a(f"s_nop 1\nv_add_u32_dpp v25, v25, v25 row_shr:{sh} row_mask:0xf bank_mask:0xf bound_ctrl:0")
    a(f"""
s_nop 0
v_readlane_b32 s{S_TOTAL}, v25, 7
v_readlane_b32 s{S_T1}, v25, s{S_WAVE}
s_sub_u32 s{S_T1}, s{S_T1}, s{S_T0}
s_sub_u32 s{S_T1}, s{S_T1}, s{S_WBASE}
s_sub_u32 s{S_WCNT}, s{S_TOTAL}, s{S_WBASE}
s_min_u32 s{S_WCNT}, s{S_WCNT}, {CAPW}
v_add_u32 v22, s{S_T1}, v22
v_sub_u32 v24, 0, v22
v_max_i32 v24, 0, v24
v_sub_u32 v25, {CAPW}, v22
v_min_i32 v25, v25, v21
v_add_u32 v24, v24, v23
v_add_u32 v20, v20, v24
v_mul_u32_u24 v20, 12, v20
v_add_u32 v22, v22, v24
v_lshlrev_b32 v22, 2, v22
v_add_u32 v22, {L_IDXL}, v22
v_cmp_lt_i32 vcc, v24, v25
s_and_b64 exec, exec, vcc
s_cbranch_execz {name}_expanded
{name}_expand:
ds_write_b32 v22, v20
v_add_u32 v24, 2, v24
v_add_u32 v22, 8, v22
v_add_u32 v20, 24, v20
v_cmp_lt_i32 vcc, v24, v25
s_and_b64 exec, exec, vcc
s_cbranch_execnz {name}_expand
{name}_expanded:
s_mov_b64 exec, -1
v_lshlrev_b32 v22, 2, v17
v_add_u32 v22, {L_IDXL}, v22
s_waitcnt lgkmcnt(0)
s_barrier
""")
    REC, RK, BA = 24, 56, 64
    for j in range(7): a(f"ds_read_b32 v{RK+j}, v22 offset:{2048*j}")
    for j in range(7):
        a(f"v_add_u32 v23, {512*j}, v17\nv_cmp_gt_u32 s[{S_MASK+2*j}:{S_MASK+2*j+1}], s{S_WCNT}, v23")
    a("v_bfrev_b32 v23, 1")
    for j in range(7):
        a(f"""
s_waitcnt lgkmcnt({6-j})
v_cndmask_b32 v{RK+j}, v23, v{RK+j}, s[{S_MASK+2*j}:{S_MASK+2*j+1}]
buffer_load_dwordx3 {vr(REC+4*j,3)}, v{RK+j}, {srd(SRD_M)}, 0 offen
""")
    a(f"v_mov_b32 v23, 1\ns_mov_b32 s{S_T0}, {L_HIST}")
    for j in range(7):
        a(f"""
s_waitcnt vmcnt({6-j})
v_bfe_u32 v22, v{REC+4*j+2}, 24, 3
v_lshrrev_b32 v{BA+j}, 27, v{REC+4*j+1}
v_lshl_or_b32 v{BA+j}, v22, 5, v{BA+j}
v_lshl_add_u32 v{BA+j}, v{BA+j}, 2, s{S_T0}
s_mov_b64 exec, s[{S_MASK+2*j}:{S_MASK+2*j+1}]
ds_add_rtn_u32 v{RK+j}, v{BA+j}, v23
s_mov_b64 exec, -1
""")
    a(f"""
v_add_u32 v22, {L_HIST}, v0
s_waitcnt lgkmcnt(0)
s_barrier
ds_read_b128 v[72:75], v22
s_waitcnt lgkmcnt(0)
v_add_u32 v77, v72, v73
v_add_u32 v78, v77, v74
v_add_u32 v79, v78, v75
v_mov_b32 v71, v79
""")
    for sh in (1, 2, 4):
        a(f"s_nop 1\nv_add_u32_dpp v71, v71, v71 row_shr:{sh} row_mask:0xf bank_mask:0xf bound_ctrl:0")
    a(f"""
v_and_b32 v23, 7, v16
v_cmp_eq_u32 vcc, 7, v23
v_sub_u32 v76, 0, v71
v_and_b32 v76, 15, v76
v_cndmask_b32 v76, 0, v76, vcc
v_add_u32 v79, v79, v76
v_mov_b32 v76, v79
""")
    a.scan64(76)
    a(f"""
v_sub_u32 v76, v76, v79
v_add_u32 v79, v76, v78
v_add_u32 v78, v76, v77
v_add_u32 v77, v76, v72
ds_write_b128 v22, v[76:79] offset:1024
s_lshl_b32 s{S_T0}, s{S_WAVE}, 3
s_add_u32 s{S_T1}, s{S_T0}, 7
v_readlane_b32 s{S_START}, v76, s{S_T0}
v_readlane_b32 s{S_T2}, v71, s{S_T1}
""")
    for j in range(7): a(f"ds_read_b32 v{BA+j}, v{BA+j} offset:1024")
    a(f"""
s_add_u32 s{S_NB}, s{S_T2}, 15
s_lshr_b32 s{S_NB}, s{S_NB}, 4
s_lshl_b32 s{S_T3}, s{S_NB}, 4
v_add_u32 v23, s{S_T2}, v16
v_cmp_gt_u32 vcc, s{S_T3}, v23
v_add_u32 v23, s{S_START}, v23
v_mov_b32 v18, 0
v_mov_b32 v19, 0xffff0000
v_mov_b32 v20, 0xffffff
v_lshlrev_b32 v21, 3, v23
v_lshlrev_b32 v22, 2, v23
s_and_b64 exec, exec, vcc
ds_write_b64 v21, v[18:19] offset:{L_YS}
ds_write_b32 v22, v20 offset:{L_PT}
ds_write_b8 v23, v18 offset:{L_ID}
s_mov_b64 exec, -1
s_waitcnt lgkmcnt(0)
""")
    for j in range(7):
        a(f"""
v_add_u32 v23, v{BA+j}, v{RK+j}
v_lshrrev_b32 v20, 27, v{REC+4*j+2}
v_lshlrev_b32 v21, 3, v23
v_lshlrev_b32 v22, 2, v23
s_mov_b64 exec, s[{S_MASK+2*j}:{S_MASK+2*j+1}]
ds_write_b64 v21, {vr(REC+4*j,2)} offset:{L_YS}
ds_write_b32 v22, v{REC+4*j+2} offset:{L_PT}
ds_write_b8 v23, v20 offset:{L_ID}
s_mov_b64 exec, -1
""")

def list_addrs(a):
    a("v_lshrrev_b32 v17, 3, v16")
    a(rho(2, 17, 18))
    a("v_lshrrev_b32 v17, 2, v16")
    a(rho(3, 17, 18))
    a("v_bfe_u32 v17, v16, 1, 4")
    a(rho(4, 17, 18))
    a(f"""
v_add_lshl_u32 v2, v2, s{S_START}, 3
v_add_lshl_u32 v3, v3, s{S_START}, 3
v_add_lshl_u32 v4, v4, s{S_START}, 2
v_mov_b32 v15, s{S_START}
v_and_b32 v14, 0x70, v0
""")

def ea_addrs(a, v_a0, v_a1, ring_off):
    a(f"""
v_bfe_u32 v17, v16, 3, 2
v_and_b32 v18, 3, v16
v_lshl_or_b32 v17, v17, 2, v18
v_lshlrev_b32 v17, 5, v17
v_lshrrev_b32 v18, 5, v16
v_lshl_or_b32 v17, v18, 4, v17
v_bfe_u32 v18, v16, 2, 1
v_lshl_or_b32 v17, v18, 18, v17
s_add_u32 s{S_T0}, s{S_RING}, {ring_off}
v_add_u32 v{v_a0}, s{S_T0}, v17
v_xor_b32 v17, {OOB}, v17
v_add_u32 v{v_a1}, s{S_T0}, v17
""")

def valid(a, k):
    a(f"""
s_cmp_gt_u32 s{S_REM}, {k}
s_cselect_b32 s{SRD_X+2}, s{S_XB}, 0
s_cselect_b32 s{SRD_E+2}, s{S_EB}, 0
""")

def dma_e(a, v, off, restore=True):
    a(f"""
s_add_u32 m0, s{S_RING}, {off}
s_mov_b32 exec_hi, 0
buffer_load_dwordx4 v{v}, {srd(SRD_E)}, 0 offen lds
""")
    if restore: a("s_mov_b32 exec_hi, -1")

M3, M1, XR, G, T1, T2, T3, ACC = 6, 8, (10, 12), (16, 24), 32, 48, 64, 81

def dma_x(a, v, slot, fill):
    for b in range(3):
        a(f"s_add_u32 m0, s{S_RING}, {b*LINE + slot*1024 - 128*(b+1)}")
        a(fill[b] if b < len(fill) else "s_nop 0")
        a(f"buffer_load_dwordx4 v{v}, {srd(SRD_X)}, 0 offen offset:{128*(b+1)} lds")

def pass_b(a, name, opt):
    def m4(e):
        g, x = G[e & 1], XR[e & 1]
        return [f"v_mfma_f32_4x4x4_16b_bf16 {vr(g,4)}, {vr(M1,2)}, {vr(x,2)}, 0 cbsz:4 abid:{e}",
                f"v_mfma_f32_4x4x4_16b_bf16 {vr(g+4,4)}, {vr(M3,2)}, {vr(x,2)}, 0"]
    def xread(ds, p, e):
        slot = (2*p + (e >> 3)) & 3
        ds.op(f"x{e & 15}", f"ds_read_b64_tr_b16 {vr(XR[e&1],2)}, v1 offset:{slot*1024 + (e & 7)*128}")
    def wread(ds, tag, dst, path):
        for h in range(2):
            ds.op(f"{tag}{h}", f"ds_read_b128 {vr(dst+4*h,4)}, v0 offset:{L_WR + (path*2+h)*1024}")
    def aread(ds, p):
        ds.op("A0", f"ds_read_b128 {vr(G[0],4)}, v5 offset:{p*512}")
        ds.op("A1", f"ds_read_b128 {vr(G[0]+4,4)}, v80 offset:{p*512}")
    list_addrs(a)
    ea_addrs(a, 5, 80, RB_EA)
    a(f"""
v_bfe_u32 v17, v16, 2, 2
v_min_u32 v17, 2, v17
v_mul_u32_u24 v17, {LINE}, v17
v_lshrrev_b32 v18, 4, v16
v_lshl_add_u32 v17, v18, 5, v17
v_and_b32 v18, 3, v16
v_lshl_add_u32 v17, v18, 3, v17
v_add_u32 v1, s{S_RING}, v17
v_mov_b32 v19, 0x3f80
v_mov_b32 v20, 0x3f800000
v_cmp_eq_u32 vcc, 0, v18
s_nop 1
v_cndmask_b32 v{M3}, 0, v19, vcc
v_cmp_eq_u32 vcc, 1, v18
s_nop 1
v_cndmask_b32 v{M3}, v{M3}, v20, vcc
v_cmp_eq_u32 vcc, 2, v18
s_nop 1
v_cndmask_b32 v{M3+1}, 0, v19, vcc
s_mov_b32 s{S_REM}, s{S_NB}
s_waitcnt vmcnt(0) lgkmcnt(0)
s_barrier
""")
    stamp(a, opt, 1)
    a(f"""
s_cmp_eq_u32 s{S_NB}, 0
s_cbranch_scc1 {name}_b_done
""")
    ds = DS(a)
    for t in range(2): ds.op(f"pt{t}", f"ds_read_b32 v{T2+8+t}, v4 offset:{L_PT + 64*t}")
    for h in range(4): ds.op(f"sr{h}", f"ds_read_u16 v{T2+10+h}, v2 offset:{L_YS + 6 + 64*h}")
    a(f"v_and_b32 v{T2}, 16, v0\nv_and_b32 v{T2+1}, 48, v0")
    ds.op("ys", f"ds_read_b64 {vr(T1+2,2)}, v3 offset:{L_YS}")
    ds.op("mt", f"ds_read_b128 {vr(T1+4,4)}, v{T2+1} offset:{L_MT}")
    ds.op("id", f"ds_read_b128 {vr(T2+4,4)}, v15 offset:{L_ID}")
    wread(ds, "W1", T3, 4)
    ds.need("sr3")
    for t in range(2): a(f"v_mad_u32_u24 v{T2+8+t}, v{T2+8+t}, 32, v{T2}")
    for h in range(4): a(f"v_lshl_or_b32 v{T2+10+h}, v{T2+10+h}, 9, v14")
    for t in range(2):
        valid(a, t)
        dma_e(a, T2+8+t, RB_EA + 512*t)
        dma_x(a, T2+10+2*t, 2*t, [])
        dma_x(a, T2+11+2*t, 2*t+1, [])
    ds.drain()
    a(f"v_perm_b32 v{T2+2}, v{T1+3}, v{T1+2}, v{T1+4}\nv_perm_b32 v{T2+3}, v{T1+3}, v{T1+2}, v{T1+5}")
    for i in range(4): a(f"v_readfirstlane_b32 s{S_IDX[0]+i}, v{T2+4+i}")
    a(f"v_xor_b32 v{M1}, v{T2+2}, v{T1+6}\nv_xor_b32 v{M1+1}, v{T2+3}, v{T1+7}")
    for i in range(4): a(f"s_mul_i32 s{S_IDX[0]+i}, s{S_IDX[0]+i}, 7")
    a("s_waitcnt vmcnt(10)")
    xread(ds, 0, 0); aread(ds, 0); xread(ds, 0, 1)
    wread(ds, "W2", T3+8, 1); wread(ds, "W3", G[1], 3)
    entry = list(ds.q)
    a(f"{name}_b_loop:")
    for p in range(2):
        ds = DS(a, entry)
        valid(a, 2)
        for tag, tile, w in (("W1", T1, T3), ("W2", T2, T3+8), ("W3", T3, G[1])):
            for h in range(2):
                ds.need(f"A{h}", f"{tag}{h}")
                a(f"v_mfma_f32_32x32x16_bf16 {vr(tile,16)}, {vr(G[0]+4*h,4)}, {vr(w+4*h,4)}, {vr(tile,16) if h else 0}")
        for l in m4(0): a(l)
        si, sn = S_IDX[p], S_IDX[p ^ 1]
        for e in range(16):
            if e < 15: ds.drain()
            mm = m4(e+1) if e < 15 else []
            if e in (6, 14):
                dma_x(a, T1+1, 2*p + (e == 14), mm)
                a(f"s_waitcnt vmcnt({11 if e == 6 else 10})")
            else:
                if e == 15: aread(ds, p ^ 1)
                xread(ds, p, e+2)
                for l in mm: a(l)
            if e == 1:
                ds.op("pt", f"ds_read_b32 v{T1}, v4 offset:{L_PT + 64*(p+2)}")
                a(f"v_and_b32 v{T2}, 16, v0")
            if e == 2:
                a(f"v_mad_u32_u24 v{T1}, v{T1}, 32, v{T2}")
                dma_e(a, T1, RB_EA + 512*p, False)
            if e in (4, 12):
                ds.op("sr", f"ds_read_u16 v{T1+1}, v2 offset:{L_YS + 6 + 128*(p+2) + 64*(e == 12)}")
            if e in (5, 13):
                a(f"v_lshl_or_b32 v{T1+1}, v{T1+1}, 9, v14")
            if e == 7: a(f"v_and_b32 v{T2+1}, 48, v0")
            if e == 8:
                ds.op("ys", f"ds_read_b64 {vr(T1+2,2)}, v3 offset:{L_YS + 128*(p+1)}")
                ds.op("mt", f"ds_read_b128 {vr(T1+4,4)}, v{T2+1} offset:{L_MT}")
            if e == 9:
                ds.op("id", f"ds_read_b128 {vr(T2+4,4)}, v15 offset:{L_ID + 16*(p+1)}")
                a(f"v_perm_b32 v{T2+2}, v{T1+3}, v{T1+2}, v{T1+4}\nv_perm_b32 v{T2+3}, v{T1+3}, v{T1+2}, v{T1+5}")
            if e == 10:
                for i in range(4): a(f"v_readfirstlane_b32 s{sn+i}, v{T2+4+i}")
            if e == 11:
                for i in range(4): a(f"s_mul_i32 s{sn+i}, s{sn+i}, 7")
            if e == 13:
                wread(ds, "W1", T3, 4)
                if p == 1:
                    a("v_add_u32 v2, 256, v2\nv_add_u32 v3, 256, v3\nv_add_u32 v4, 128, v4\nv_add_u32 v15, 32, v15")
            if e == 15:
                a(f"v_xor_b32 v{M1}, v{T2+2}, v{T1+6}\nv_xor_b32 v{M1+1}, v{T2+3}, v{T1+7}")
            g = G[e & 1]
            a(f"s_set_gpr_idx_on s{si + 2*(e >> 3) + (e & 1)}, 0x8")
            if e == 0: a("s_nop 1")
            if e == 2: a("s_mov_b32 exec_hi, -1")
            if e in (6, 14): xread(ds, p, e+2)
            if (e & 1) and (e & 7) != 7:
                q = si + 2*(e >> 3)
                a(f"s_lshr_b64 s[{q}:{q+1}], s[{q}:{q+1}], 8")
            for i, tile in enumerate((T1, T1, T1, T2, T3, T3, T3)):
                a(f"v_fmac_f32 v{ACC+i}, v{g+i}, v{tile+e}")
            a("s_set_gpr_idx_mode 0" if e + 1 in (4, 7, 8, 10, 12, 15) else "s_set_gpr_idx_off")
        a(f"s_sub_u32 s{S_REM}, s{S_REM}, 1\ns_cmp_eq_u32 s{S_REM}, 0\ns_cbranch_scc1 {name}_b_done")
        wread(ds, "W2", T3+8, 1); wread(ds, "W3", G[1], 3)
        assert ds.q == entry, (ds.q, entry)
    a(f"s_branch {name}_b_loop\n{name}_b_done:")

PB, ACA = 68, 156
TA0, TA2 = 32, 48
SB_ = (10, 12, 64, 66)
M2, SELA, AA, WA = 8, 6, 16, 24

def pass_a(a, name, opt):
    def dma_s(v, slot, fill="s_nop 0"):
        a(f"s_add_u32 m0, s{S_RING}, {slot*1024}\n{fill}\nbuffer_load_dwordx4 v{v}, {srd(SRD_X)}, 0 offen lds")
    def sread(c, m):
        slot = 2*c + (m >> 2)
        return (f"s{m}", f"ds_read_b64_tr_b16 {vr(SB_[m&3],2)}, v1 offset:{slot*1024 + (m & 3)*256}")
    def next_reads(c, off):
        r = [("A0", f"ds_read_b128 {vr(AA,4)}, v5 offset:{c*512}"),
             ("A1", f"ds_read_b128 {vr(AA+4,4)}, v7 offset:{c*512}")]
        r += [sread(c, m) for m in range(4)]
        r += [(f"W0{h}", f"ds_read_b128 {vr(TA2+8+4*h,4)}, v0 offset:{L_WR + h*1024}") for h in range(2)]
        r += [("ys", f"ds_read_b64 {vr(TA2+2,2)}, v3 offset:{L_YS + 128*off}"),
              ("id", f"ds_read_b128 {vr(TA2+4,4)}, v15 offset:{L_ID + 16*off}")]
        return r
    a(f"""
s_waitcnt vmcnt(0) lgkmcnt(0)
s_mul_i32 s{S_T1}, s{S_WAVE}, 5120
s_add_u32 s{S_T1}, s{S_T1}, 10240
""")
    for j in range(5):
        a(f"s_add_u32 m0, s{S_RING}, {RA_WS}\ns_nop 0\nbuffer_load_dwordx4 v0, {srd(SRD_W)}, s{S_T1} offen offset:{1024*j if j < 4 else 0} lds"
          if j < 4 else
          f"s_add_u32 m0, s{S_RING}, {RA_WS+4096}\ns_add_u32 s{S_T1}, s{S_T1}, 4096\nbuffer_load_dwordx4 v0, {srd(SRD_W)}, s{S_T1} offen lds")
    a("v_lshrrev_b32 v16, 4, v0")
    list_addrs(a)
    ds = DS(a)
    for h in range(7): ds.op(f"sr{h}", f"ds_read_u16 v{TA0+h}, v2 offset:{L_YS + 6 + 64*h}")
    for t in range(4): ds.op(f"pt{t}", f"ds_read_b32 v{TA0+8+t}, v4 offset:{L_PT + 64*t}")
    ea_addrs(a, 5, 7, RA_EA)
    a(f"""
v_bfe_u32 v17, v16, 2, 1
v_xor_b32 v17, 1, v17
v_lshlrev_b32 v17, 18, v17
v_bfe_u32 v18, v16, 3, 1
v_lshl_add_u32 v17, v18, 7, v17
v_lshrrev_b32 v18, 4, v16
v_lshl_add_u32 v17, v18, 5, v17
v_and_b32 v18, 3, v16
v_lshl_add_u32 v17, v18, 3, v17
v_add_u32 v1, s{S_RING}, v17
v_mul_u32_u24 v19, 0x202, v18
v_add_u32 v19, 0x0c0c0100, v19
v_cmp_eq_u32 vcc, 3, v18
v_mov_b32 v20, 0x0c0c0c0c
v_mov_b32 v21, 0x3f80
v_cndmask_b32 v19, v19, v20, vcc
v_cndmask_b32 v21, 0, v21, vcc
v_and_b32 v18, 4, v16
v_lshlrev_b32 v18, 2, v18
v_alignbit_b32 v{SELA}, v19, v19, v18
v_lshlrev_b32 v{M2+1}, v18, v21
v_and_b32 v17, 16, v0
s_mov_b32 s{S_REM}, s{S_NB}
""")
    ds.drain()
    for h in range(7): a(f"v_lshl_or_b32 v{TA0+h}, v{TA0+h}, 9, v14")
    for t in range(4): a(f"v_mad_u32_u24 v{TA0+8+t}, v{TA0+8+t}, 32, v17")
    for t in range(3):
        valid(a, t)
        dma_s(TA0+2*t, 2*t)
        dma_e(a, TA0+8+t, RA_EA + 512*t)
        dma_s(TA0+2*t+1, 2*t+1)
    for h in range(2): ds.op(f"W2{h}", f"ds_read_b128 {vr(WA+4*h,4)}, v0 offset:{L_WR + (4+h)*1024}")
    for p in range(12):
        for i in range(7): a(f"v_cvt_pk_bf16_f32 v{PB+7*p+i}, v{ACC+14*p+i}, v{ACC+14*p+7+i}")
    for i in range(4): a(f"v_cvt_pk_bf16_f32 v{PB+84+i}, v{ACC+168+2*i}, v{ACC+168+min(2*i+1,6)}")
    for r in range(ACA, 256): a(f"v_mov_b32 v{r}, 0")
    a(f"""
s_waitcnt vmcnt(7)
v_mov_b32 v17, {L_FLAG}
v_mov_b32 v18, 1
s_mov_b64 exec, 1
ds_add_u32 v17, v18
s_mov_b64 exec, -1
s_cmp_eq_u32 s{S_NB}, 0
s_cbranch_scc1 {name}_a_done
s_waitcnt lgkmcnt(0)
""")
    ds.q = []
    stamp(a, opt, 3)
    for tag, text in next_reads(0, 0): ds.op(tag, text)
    valid(a, 3)
    ds.need("s3")
    dma_s(TA0+6, 0)
    dma_e(a, TA0+11, RA_EA)
    entry = list(ds.q)
    si = S_IDX[0]
    a(f"{name}_a_loop:")
    for c in range(3):
        ds = DS(a, entry)
        for h in range(2):
            ds.need(f"W0{h}")
            a(f"v_mfma_f32_32x32x16_bf16 {vr(TA0,16)}, {vr(AA+4*h,4)}, {vr(TA2+8+4*h,4)}, {vr(TA0,16) if h else 0}")
        ds.drain()
        a(f"v_perm_b32 v{M2}, v{TA2+3}, v{TA2+2}, v{SELA}")
        for i in range(4): a(f"v_readfirstlane_b32 s{si+i}, v{TA2+4+i}")
        for h in range(2):
            a(f"v_mfma_f32_32x32x16_bf16 {vr(TA2,16)}, {vr(AA+4*h,4)}, {vr(WA+4*h,4)}, {vr(TA2,16) if h else 0}")
        a(f"s_lshl_b64 s[{si}:{si+1}], s[{si}:{si+1}], 2\ns_lshl_b64 s[{si+2}:{si+3}], s[{si+2}:{si+3}], 2")
        a("s_waitcnt vmcnt(8)\ns_nop 1")
        def mul(tile, m): a(f"v_pk_mul_f32 {vr(tile+2*m,2)}, {vr(tile+2*m,2)}, {vr(SB_[m&3],2)}")
        def cvt_t(m): a(f"v_cvt_pk_bf16_f32 v{TA0+2*m+1}, v{TA0+2*m}, v{TA0+2*m+1}")
        def cvt_u(m): a(f"v_cvt_pk_bf16_f32 v{TA0+2*m}, v{TA2+2*m}, v{TA2+2*m+1}")
        for m in range(4): mul(TA0, m)
        for m in range(4): cvt_t(m)
        for m in range(4):
            mul(TA2, m)
            ds.op(*sread(c, m+4))
        for m in range(4):
            cvt_u(m)
            if m == 1:
                ds.op("sr1", f"ds_read_u16 v{TA2+2}, v2 offset:{L_YS + 6 + 128*(c+3) + 64}")
                ds.op("sr0", f"ds_read_u16 v{TA2}, v2 offset:{L_YS + 6 + 128*(c+4)}")
                ds.op("pt", f"ds_read_b32 v{TA2+1}, v4 offset:{L_PT + 64*(c+4)}")
        a(f"v_and_b32 v{TA2+3}, 16, v0")
        for m in range(4, 8):
            ds.need(f"s{m}")
            mul(TA0, m); mul(TA2, m)
            if m > 4: cvt_t(m-1); cvt_u(m-1)
        ds.drain()
        a(f"v_lshl_or_b32 v{TA2+2}, v{TA2+2}, 9, v14")
        dma_s(TA2+2, 2*c+1, f"v_lshl_or_b32 v{TA2}, v{TA2}, 9, v14")
        cvt_t(7); cvt_u(7)
        a(f"v_mad_u32_u24 v{TA2+1}, v{TA2+1}, 32, v{TA2+3}")
        cn = (c + 1) % 3
        fill = next_reads(cn, c+1)
        valid(a, 4)
        a("s_waitcnt vmcnt(7)")
        for e in range(16):
            if e == 12:
                ds.need("s3")
                dma_s(TA2, 2*cn)
                dma_e(a, TA2+1, RA_EA + 512*cn)
            a(f"s_set_gpr_idx_on s{si + 2*(e >> 3) + (e & 1)}, 0xc")
            if (e & 1) and (e & 7) != 7:
                q = si + 2*(e >> 3)
                a(f"s_lshr_b64 s[{q}:{q+1}], s[{q}:{q+1}], 8")
                if fill and e < 8: ds.op(*fill.pop(0))
            elif fill: ds.op(*fill.pop(0))
            else: a("s_nop 0")
            a(f"v_mfma_f32_4x4x4_16b_bf16 {vr(ACA,4)}, {vr(M2,2)}, {vr(TA0+(e&14),2)}, {vr(ACA,4)} cbsz:4 abid:{e}")
        assert not fill
        a("s_set_gpr_idx_off")
        if c == 2:
            a("v_add_u32 v2, 384, v2\nv_add_u32 v3, 384, v3\nv_add_u32 v4, 192, v4\nv_add_u32 v15, 48, v15")
        a(f"s_sub_u32 s{S_REM}, s{S_REM}, 1\ns_cmp_eq_u32 s{S_REM}, 0\ns_cbranch_scc1 {name}_a_done")
        assert ds.q == entry, (ds.q, entry)
    a(f"s_branch {name}_a_loop\n{name}_a_done:")

def epilogue(a, name, opt):
    PA = ACA
    D = (208, 224); GATE = 32; AOP = (8, 240); WOP = (24, 28, 58, 62); TMP = (66, 67, 206, 207)
    nt = opt.get('store_nt', ' nt')
    a(f"""
v_lshrrev_b32 v16, 4, v0
v_mul_u32_u24 v1, 56, v16
v_add_u32 v1, s{S_RING}, v1
v_lshrrev_b32 v17, 5, v16
v_bfe_u32 v18, v16, 2, 2
v_lshl_add_u32 v18, v17, 3, v18
v_mul_u32_u24 v2, 56, v18
v_bfe_u32 v18, v16, 4, 1
v_lshl_add_u32 v2, v18, 5, v2
v_and_b32 v18, 3, v16
v_lshl_add_u32 v2, v18, 3, v2
v_add_u32 v2, s{S_RING}, v2
v_add_u32 v3, {L_RING + RA_WS}, v0
v_add_u32 v4, {L_RING + RA_WS + 5*RING}, v0
v_and_b32 v18, 31, v16
v_lshlrev_b32 v18, 2, v18
v_lshl_or_b32 v5, v17, 22, v18
s_lshl_b32 s{S_T0}, s{S_WAVE}, 8
s_add_u32 s{S_T0}, s{S_T0}, s{S_SB}
s_lshl_b32 s{S_T0}, s{S_T0}, 9
v_add_u32 v5, s{S_T0}, v5
v_lshrrev_b32 v6, 2, v0
v_mov_b32 v7, {L_FLAG}
""")
    for p in range(12):
        for i in range(4): a(f"v_cvt_pk_bf16_f32 v{PA+4*p+i}, v{ACA+8*p+i}, v{ACA+8*p+4+i}")
    for i in range(2): a(f"v_cvt_pk_bf16_f32 v{PA+48+i}, v{ACA+96+2*i}, v{ACA+97+2*i}")
    a(f"""
s_waitcnt vmcnt(0)
{name}_spin:
ds_read_b32 v17, v7
s_waitcnt lgkmcnt(0)
v_readfirstlane_b32 s{S_T0}, v17
s_cmp_lt_u32 s{S_T0}, 8
s_cbranch_scc1 {name}_spin
s_add_u32 s{S_T2}, s{S_WBASE}, s{S_WCNT}
s_lshl_b32 s{S_T3}, s2, 3
s_add_u32 s{S_T3}, s{S_T3}, s{S_WAVE}
s_lshl_b32 s{S_T3}, s{S_T3}, 15
""")
    for r in range(13):
        a(f"s_mov_b32 s{80+r}, {(((r >> 2)*8 + (r & 3)) << 20):#x}")
    def ga(i): return (PA+i, 4, PA+48+(i >> 1), i & 1)
    def gb(i): return (PB+i, 7, PB+84+(i >> 1), i & 1)
    groups = [(ga(3), 0, 0), (gb(3), 1, 0)]
    for j in range(3): groups += [(ga(j), 2, j+1), (gb(4+j), 3, j+1), (gb(j), 4, j+1)]
    ds = DS(a)
    def stage(g):
        (base, st, tail, hi), _, _ = groups[g]
        off = (g & 1) * TILE
        ops = []
        if g & 1: ops.append((None, f"v_add_u32 v{TMP[3]}, {TILE}, v1"))
        wv = TMP[3] if g & 1 else 1
        for p in range(0, 12, 2):
            ops.append((f"w{g}", f"ds_write2_b32 v{wv}, v{base+st*p}, v{base+st*(p+1)} offset0:{p} offset1:{p+1}"))
        ops.append((f"w{g}", f"ds_write_b16{'_d16_hi' if hi else ''} v{wv}, v{tail} offset:48"))
        for t in range(4):
            for j in range(2):
                ops.append((f"a{g}_{t}", f"ds_read_b64_tr_b16 {vr(AOP[g&1]+4*t+2*j,2)}, v2 offset:{off + (16*t+4*j)*56}"))
        return ops
    def wop(n):
        g, i = divmod(n, 8)
        r = groups[g][1]*8 + i
        w, k = divmod(r, 5)
        v, o = (3, w*RING) if w < 5 else (4, (w-5)*RING)
        return (f"W{n}", f"ds_read_b128 {vr(WOP[n&3],4)}, v{v} offset:{o + k*1024}")
    def emit(op):
        if op[0] is None: a(op[1])
        else: ds.op(*op)
    for op in stage(0): emit(op)
    for n in range(3): ds.op(*wop(n))
    NG = len(groups)
    for g in range(NG):
        pend = stage(g+1) if g+1 < NG else []
        first = g == 0 or groups[g-1][2] != groups[g][2]
        for i in range(8):
            n = g*8 + i; t, u = i >> 1, i & 1
            if n + 3 < NG*8: ds.op(*wop(n+3))
            ds.need(f"W{n}", f"a{g}_{t}")
            a(f"v_mfma_f32_32x32x16_bf16 {vr(D[u],16)}, {vr(AOP[g&1]+4*t,4)}, {vr(WOP[n&3],4)}, {0 if first and t == 0 else vr(D[u],16)}")
            for _ in range(2):
                if pend: emit(pend.pop(0))
        while pend: emit(pend.pop(0))
        comp = groups[g][2]
        if g+1 < NG and groups[g+1][2] == comp: continue
        a(f"""
s_nop 9
s_cmp_lg_u32 s{S_TOTAL}, s{S_WCNT}
s_cbranch_scc1 {name}_multi{comp}
{name}_fin{comp}:
""")
        for r in range(13):
            t = TMP[r & 1]
            if comp:
                a(f"v_mul_f32 v{D[0]+r}, v{D[0]+r}, v{GATE+2*r}\nv_mul_f32 v{D[1]+r}, v{D[1]+r}, v{GATE+2*r+1}")
            a(f"v_cvt_pk_bf16_f32 v{t}, v{D[0]+r}, v{D[1]+r}")
            a(f"buffer_store_dword v{t}, v5, {srd(SRD_O)}, s{80+r} offen offset:{128*comp}{nt}")
            if not comp:
                for u in range(2): a(f"v_mul_f32 v{GATE+2*r+u}, 0xbfb8aa3b, v{D[u]+r}")
                for u in range(2): a(f"v_exp_f32 v{GATE+2*r+u}, v{GATE+2*r+u}")
                if r:
                    for u in range(2): a(f"v_rcp_f32 v{GATE+2*r-2+u}, v{GATE+2*r-2+u}")
                else: a("s_nop 0")
                for u in range(2): a(f"v_add_f32 v{GATE+2*r+u}, 1.0, v{GATE+2*r+u}")
        if not comp:
            for u in range(2): a(f"v_rcp_f32 v{GATE+24+u}, v{GATE+24+u}")
        a(f"{name}_next{comp}:")
    stamp(a, opt, 5)
    stamps_out(a, opt)
    a(f"""
s_cmp_ge_u32 s{S_T2}, s{S_TOTAL}
s_cbranch_scc1 {name}_end
s_mov_b32 s{S_WBASE}, s{S_T2}
s_waitcnt vmcnt(0) lgkmcnt(0)
s_barrier
s_branch {name}_window
""")
    for comp in range(4):
        a(f"""
{name}_multi{comp}:
s_add_u32 s{S_T0}, s{S_T3}, {comp*8192}
s_add_u32 s{S_T1}, s{S_T0}, 4096
s_cmp_eq_u32 s{S_WBASE}, 0
s_cbranch_scc1 {name}_mst{comp}
""")
        for u in range(2):
            for r in range(13):
                a(f"buffer_load_dword v{TMP[0]}, v6, {srd(SRD_S)}, s{S_T0+u} offen offset:{256*r} sc1\ns_waitcnt vmcnt(0)\nv_add_f32 v{D[u]+r}, v{D[u]+r}, v{TMP[0]}")
        a(f"""
s_cmp_ge_u32 s{S_T2}, s{S_TOTAL}
s_cbranch_scc1 {name}_fin{comp}
{name}_mst{comp}:
""")
        for u in range(2):
            for r in range(13):
                a(f"buffer_store_dword v{D[u]+r}, v6, {srd(SRD_S)}, s{S_T0+u} offen offset:{256*r}")
        a(f"s_waitcnt vmcnt(0)\ns_branch {name}_next{comp}")
    a(f"{name}_end:\ns_endpgm")

def dump_regs(a):
    a("s_waitcnt vmcnt(0) lgkmcnt(0)\ns_nop 15")
    a.srd(96, 76, 128 << 20, 64 << 20)
    a(f"""
v_lshrrev_b32 v0, 2, v0
s_lshl_b32 s{S_T0}, s2, 3
s_add_u32 s{S_T0}, s{S_T0}, s{S_WAVE}
s_lshl_b32 s{S_T0}, s{S_T0}, 16
v_mov_b32 v1, s{S_START}
v_mov_b32 v2, s{S_NB}
""")
    for r in range(256):
        a(f"buffer_store_dword v{r}, v0, s[96:99], s{S_T0} offen\ns_add_u32 s{S_T0}, s{S_T0}, 256")
    a("s_endpgm")

def dump_lds(a):
    a("s_waitcnt vmcnt(0) lgkmcnt(0)\ns_barrier")
    a.srd(96, 76, 16 << 20, 200 << 20)
    a(f"""
s_lshl_b32 s{S_T0}, s2, 16
s_lshl_b32 s{S_T1}, s{S_WAVE}, 13
v_add_u32 v21, s{S_T1}, v0
""")
    for j in range(8):
        a(f"ds_read_b128 v[24:27], v21\ns_waitcnt lgkmcnt(0)\nbuffer_store_dwordx4 v[24:27], v21, s[96:99], s{S_T0} offen\ns_waitcnt vmcnt(0)\nv_add_u32 v21, 1024, v21")

def stamp(a, opt, i):
    if opt.get('stamps'):
        a(f"s_memrealtime s[100:101]\ns_waitcnt lgkmcnt(0)\ns_mov_b32 s{93+i}, s100")

def stamps_out(a, opt):
    if opt.get('stamps'):
        a("s_waitcnt vmcnt(0)")
        stamp(a, opt, 6)
        a.srd(SRD_S, 76, 1 << 20, 240 << 20)
        a(f"s_lshl_b32 s{S_T0}, s2, 3\ns_add_u32 s{S_T0}, s{S_T0}, s{S_WAVE}\ns_lshl_b32 s{S_T0}, s{S_T0}, 5\nv_mov_b32 v0, 0")
        for i in range(7):
            a(f"v_mov_b32 v1, s{93+i}\nbuffer_store_dword v1, v0, {srd(SRD_S)}, s{S_T0} offen offset:{4*i}")
        a(f"v_mov_b32 v1, s{S_NB}\nbuffer_store_dword v1, v0, {srd(SRD_S)}, s{S_T0} offen offset:28\ns_endpgm")

def gen_k2(name, **opt):
    a = Asm()
    prologue(a, name, opt)
    if opt.get('dump'): dump_lds(a)
    pass_b(a, name, opt)
    if opt.get('dump') == 'b': dump_regs(a)
    stamp(a, opt, 2)
    pass_a(a, name, opt)
    if opt.get('dump') == 'a': dump_regs(a)
    stamp(a, opt, 4)
    epilogue(a, name, opt)
    return a.text()
```

```python
import sys
from common import *
import k1, k2

REF = 'standalone__tensor_product_equiv_equiformer__graph.s.ref'

def build(kernels):
    head = [l for l in open(REF).read().split('\n') if l.startswith(';') and '@launch' not in l
            and 'Override launch' not in l and 'grid=ceil' not in l]
    out = '\n'.join(head) + '\n'
    for name, _, grid, block, lds, _ in kernels:
        out += f"; @launch kernel={name} grid=({grid},1,1) block=({block},1,1) lds={lds}\n"
    out += '.amdgcn_target "amdgcn-amd-amdhsa--gfx950"\n.text\n'
    seen = set()
    for name, text, *_ in kernels:
        if name in seen: continue
        seen.add(name)
        out += f".globl {name}\n.p2align 8\n.type {name},@function\n{text}"
    out += '.section .rodata,"a"\n'
    seen = set()
    for name, _, _, _, _, vgpr in kernels:
        if name in seen: continue
        seen.add(name)
        out += ".p2align 6\n" + kernel_desc(name, vgpr)
    return out

def k1_entry(**kw):
    return ('tp_sort_kernel', k1.gen_k1('tp_sort_kernel', **kw), k1.K1_GRID, 1024, k1.K1_LDS, k1.K1_VGPR)

def k2_entry(**kw):
    return ('tp_main_kernel', k2.gen_k2('tp_main_kernel', **kw), 256, 512, k2.K2_LDS, 256)

if __name__ == '__main__':
    open(sys.argv[1], 'w').write(build([k1_entry(), k2_entry()]))
```

```python
from common import *

NSLOT = 3520
CAPW = NSLOT - 128
L_WR = 0
L_MT = 10240
L_FLAG = L_MT + 128
L_YS = L_MT + 256
L_PT = L_YS + NSLOT * 8
L_ID = L_PT + NSLOT * 4
L_RING = 56320
RING = 13440
LINE = 4160
RB_EA = 12416
RA_EA = 6144
RA_WS = 7680
TILE = 3584
K2_LDS = L_RING + 8 * RING
assert L_ID + NSLOT <= L_RING and K2_LDS == 163840
L_HIST = L_RING
L_BASE = L_HIST + 1024
L_WTOT = L_BASE + 1024
L_IDXL = L_WTOT + 64
OOB = 0x40000
XB, EB = N * 512, E * 32

S_WAVE, S_SB, S_RING, S_WBASE, S_TOTAL, S_WCNT, S_START, S_NB, S_REM = 3, 32, 33, 34, 35, 36, 37, 38, 39
SRD_X, SRD_E, SRD_T, SRD_O, SRD_W, SRD_M, SRD_S = 4, 8, 12, 16, 20, 24, 28
S_IDX = (40, 44)
S_T0, S_T1, S_T2, S_T3 = 48, 49, 50, 51
S_MASK = 52
S_XB, S_EB, S_PADDR, S_PINC, S_PSGN = 68, 69, 70, 71, 66

def srd(d): return f"s[{d}:{d+3}]"
def vr(b, n): return f"v[{b}:{b+n-1}]"

class DS:
    def __init__(self, a, init=()):
        self.a, self.q = a, list(init)
    def op(self, tag, text):
        self.a(text); self.q.append(tag)
    def need(self, *tags):
        idx = [i for i, t in enumerate(self.q) if t in tags]
        if not idx: return False
        n = len(self.q) - 1 - max(idx)
        self.a(f"s_waitcnt lgkmcnt({min(n, 15)})")
        self.q = self.q[len(self.q) - min(n, 15):] if n else []
        return True
    def drain(self):
        if self.q: self.a("s_waitcnt lgkmcnt(0)")
        self.q = []

def rho(v_dst, v_e, tmp):
    return f"""
v_bfe_u32 v{v_dst}, v{v_e}, 1, 2
v_and_b32 v{tmp}, 1, v{v_e}
v_lshl_or_b32 v{v_dst}, v{tmp}, 2, v{v_dst}
v_and_or_b32 v{v_dst}, v{v_e}, 8, v{v_dst}
"""

def prologue(a, name, opt):
    a(f"""
{name}:
s_cmp_ge_u32 s2, 256
s_cbranch_scc1 {name}_end
s_load_dwordx2 s[72:73], s[0:1], {KA_X}
s_load_dwordx2 s[74:75], s[0:1], {KA_OUT}
s_load_dwordx2 s[76:77], s[0:1], {KA_WS}
v_lshrrev_b32 v1, 6, v0
s_and_b32 s{S_SB}, s2, 7
v_readfirstlane_b32 s{S_WAVE}, v1
s_lshl_b32 s{S_SB}, s{S_SB}, 5
s_lshr_b32 s{S_T0}, s2, 3
s_add_u32 s{S_SB}, s{S_SB}, s{S_T0}
s_mul_i32 s{S_RING}, s{S_WAVE}, {RING}
s_add_u32 s{S_RING}, s{S_RING}, {L_RING}
s_mov_b32 s{S_XB}, {0 if opt.get('nomem') else XB}
s_mov_b32 s{S_EB}, {0 if opt.get('nomem') else EB}
s_mov_b32 s{S_WBASE}, 0
s_waitcnt lgkmcnt(0)
""")
    stamp(a, opt, 0)
    a.srd(SRD_T, 76, NCH * 1024, WS_TAB)
    a.srd(SRD_X, 72, XB)
    a.srd(SRD_E, 76, EB, WS_EAS)
    a.srd(SRD_O, 74, XB)
    a.srd(SRD_W, 76, 51200, WS_WR)
    a.srd(SRD_M, 76, E * 12, WS_META)
    a.srd(SRD_S, 76, 256 * 8 * 128 * 256, WS_SCR)
    a(f"""
{name}_window:
v_mbcnt_lo_u32_b32 v16, -1, 0
v_mbcnt_hi_u32_b32 v16, -1, v16
v_lshlrev_b32 v0, 4, v16
s_lshl_b32 s{S_T0}, s{S_WAVE}, 6
v_add_u32 v17, s{S_T0}, v16
v_lshrrev_b32 v18, 1, v17
v_lshlrev_b32 v19, 10, v18
s_lshl_b32 s{S_T1}, s{S_SB}, 2
buffer_load_dword v20, v19, {srd(SRD_T)}, s{S_T1} offen
s_lshl_b32 s{S_T1}, s{S_WAVE}, 10
s_mov_b32 m0, s{S_T1}
s_mov_b32 s{SRD_X+2}, s{S_XB}
buffer_load_dwordx4 v0, {srd(SRD_W)}, s{S_T1} offen lds
s_and_b32 s{S_T1}, s{S_T1}, 1024
s_add_u32 s{S_T1}, s{S_T1}, 8192
s_mov_b32 m0, s{S_T1}
v_mov_b32 v21, 0
buffer_load_dwordx4 v0, {srd(SRD_W)}, s{S_T1} offen lds
""")
    npf = opt.get('prefetch', 0)
    if npf:
        a(f"""
s_lshr_b32 s{S_T1}, s2, 3
s_mul_i32 s{S_T1}, s{S_T1}, {npf * 128 * 512}
v_lshrrev_b32 v22, 2, v17
v_and_b32 v23, 3, v17
v_max_u32 v23, 1, v23
v_lshlrev_b32 v23, 7, v23
v_lshl_add_u32 v22, v22, 9, v23
""")
        for j in range(npf):
            a(f"buffer_load_dword v{64+j}, v22, {srd(SRD_X)}, s{S_T1} offen\ns_add_u32 s{S_T1}, s{S_T1}, {128*512}")
    mt = [0x05040c0c, 0x0c0c0302, 0x80000000, 0,
          0x0c0c0504, 0x0c0c0100, 0, 0x8000,
          0x01000302, 0x0c0c0c0c, 0x8000, 0,
          0x03020100, 0x0c0c0504, 0, 0]
    if opt.get('b2', 1):
        mt = [0x05040c0c, 0x03020c0c, 0x80000000, 0,
              0x0c0c0504, 0x01000c0c, 0, 0x80000000,
              0x01000302, 0x0c0c0c0c, 0x8000, 0,
              0x03020100, 0x05040c0c, 0, 0]
    a(f"""
v_and_b32 v22, 0xff, v17
v_lshlrev_b32 v22, 2, v22
v_add_u32 v22, {L_HIST}, v22
ds_write_b32 v22, v21
s_cmp_lg_u32 s{S_WAVE}, 7
s_cbranch_scc1 {name}_nomt
""")
    for i, c in enumerate(mt):
        if c: a(f"s_mov_b32 s{S_T1}, {c:#x}\nv_writelane_b32 v21, s{S_T1}, {i}")
    a(f"""
v_lshlrev_b32 v22, 2, v16
ds_write_b32 v22, v21 offset:{L_MT}
{name}_nomt:
""")
    for r in range(81, 256): a(f"v_mov_b32 v{r}, 0")
    a(f"""
s_waitcnt vmcnt({2 + npf})
v_lshrrev_b32 v21, 16, v20
v_and_b32 v20, 0xffff, v20
v_and_b32 v23, 1, v16
v_cmp_eq_u32 vcc, 0, v23
s_nop 1
v_cndmask_b32 v22, 0, v21, vcc
""")
    a.scan64(22)
    a(f"""
s_nop 0
v_readlane_b32 s{S_T0}, v22, 63
s_lshl_b32 s{S_T1}, s{S_WAVE}, 2
s_add_u32 s{S_T1}, s{S_T1}, {L_WTOT}
v_mov_b32 v24, s{S_T1}
v_mov_b32 v25, s{S_T0}
ds_write_b32 v24, v25
v_and_b32 v24, 7, v16
v_lshlrev_b32 v24, 2, v24
v_add_u32 v24, {L_WTOT}, v24
v_sub_u32 v22, v22, v21
v_mul_u32_u24 v18, {CH}, v18
v_add_u32 v20, v20, v18
s_waitcnt lgkmcnt(0)
s_barrier
ds_read_b32 v25, v24
s_waitcnt lgkmcnt(0)
""")
    for sh in (1, 2, 4):
        a(f"s_nop 1\nv_add_u32_dpp v25, v25, v25 row_shr:{sh} row_mask:0xf bank_mask:0xf bound_ctrl:0")
    a(f"""
s_nop 0
v_readlane_b32 s{S_TOTAL}, v25, 7
v_readlane_b32 s{S_T1}, v25, s{S_WAVE}
s_sub_u32 s{S_T1}, s{S_T1}, s{S_T0}
s_sub_u32 s{S_T1}, s{S_T1}, s{S_WBASE}
s_sub_u32 s{S_WCNT}, s{S_TOTAL}, s{S_WBASE}
s_min_u32 s{S_WCNT}, s{S_WCNT}, {CAPW}
v_add_u32 v22, s{S_T1}, v22
v_sub_u32 v24, 0, v22
v_max_i32 v24, 0, v24
v_sub_u32 v25, {CAPW}, v22
v_min_i32 v25, v25, v21
v_add_u32 v24, v24, v23
v_add_u32 v20, v20, v24
v_mul_u32_u24 v20, 12, v20
v_add_u32 v22, v22, v24
v_lshlrev_b32 v22, 2, v22
v_add_u32 v22, {L_IDXL}, v22
v_cmp_lt_i32 vcc, v24, v25
s_and_b64 exec, exec, vcc
s_cbranch_execz {name}_expanded
{name}_expand:
ds_write_b32 v22, v20
v_add_u32 v24, 2, v24
v_add_u32 v22, 8, v22
v_add_u32 v20, 24, v20
v_cmp_lt_i32 vcc, v24, v25
s_and_b64 exec, exec, vcc
s_cbranch_execnz {name}_expand
{name}_expanded:
s_mov_b64 exec, -1
v_lshlrev_b32 v22, 2, v17
v_add_u32 v22, {L_IDXL}, v22
s_waitcnt lgkmcnt(0)
s_barrier
""")
    REC, RK, BA = 24, 56, 64
    for j in range(7): a(f"ds_read_b32 v{RK+j}, v22 offset:{2048*j}")
    for j in range(7):
        a(f"v_add_u32 v23, {512*j}, v17\nv_cmp_gt_u32 s[{S_MASK+2*j}:{S_MASK+2*j+1}], s{S_WCNT}, v23")
    a("v_bfrev_b32 v23, 1")
    for j in range(7):
        a(f"""
s_waitcnt lgkmcnt({6-j})
v_cndmask_b32 v{RK+j}, v23, v{RK+j}, s[{S_MASK+2*j}:{S_MASK+2*j+1}]
buffer_load_dwordx3 {vr(REC+4*j,3)}, v{RK+j}, {srd(SRD_M)}, 0 offen
""")
    a(f"v_mov_b32 v23, 1\ns_mov_b32 s{S_T0}, {L_HIST}")
    for j in range(7):
        a(f"""
s_waitcnt vmcnt({6-j})
v_bfe_u32 v22, v{REC+4*j+2}, 24, 3
v_lshrrev_b32 v{BA+j}, 27, v{REC+4*j+1}
v_lshl_or_b32 v{BA+j}, v22, 5, v{BA+j}
v_lshl_add_u32 v{BA+j}, v{BA+j}, 2, s{S_T0}
s_mov_b64 exec, s[{S_MASK+2*j}:{S_MASK+2*j+1}]
ds_add_rtn_u32 v{RK+j}, v{BA+j}, v23
s_mov_b64 exec, -1
""")
    a(f"""
v_add_u32 v22, {L_HIST}, v0
s_waitcnt lgkmcnt(0)
s_barrier
ds_read_b128 v[72:75], v22
s_waitcnt lgkmcnt(0)
v_add_u32 v77, v72, v73
v_add_u32 v78, v77, v74
v_add_u32 v79, v78, v75
v_mov_b32 v71, v79
""")
    for sh in (1, 2, 4):
        a(f"s_nop 1\nv_add_u32_dpp v71, v71, v71 row_shr:{sh} row_mask:0xf bank_mask:0xf bound_ctrl:0")
    a(f"""
v_and_b32 v23, 7, v16
v_cmp_eq_u32 vcc, 7, v23
v_sub_u32 v76, 0, v71
v_and_b32 v76, 15, v76
v_cndmask_b32 v76, 0, v76, vcc
v_add_u32 v79, v79, v76
v_mov_b32 v76, v79
""")
    a.scan64(76)
    a(f"""
v_sub_u32 v76, v76, v79
v_add_u32 v79, v76, v78
v_add_u32 v78, v76, v77
v_add_u32 v77, v76, v72
ds_write_b128 v22, v[76:79] offset:1024
s_lshl_b32 s{S_T0}, s{S_WAVE}, 3
s_add_u32 s{S_T1}, s{S_T0}, 7
v_readlane_b32 s{S_START}, v76, s{S_T0}
v_readlane_b32 s{S_T2}, v71, s{S_T1}
""")
    for j in range(7): a(f"ds_read_b32 v{BA+j}, v{BA+j} offset:1024")
    a(f"""
s_add_u32 s{S_NB}, s{S_T2}, 15
s_lshr_b32 s{S_NB}, s{S_NB}, 4
s_lshl_b32 s{S_T3}, s{S_NB}, 4
v_add_u32 v23, s{S_T2}, v16
v_cmp_gt_u32 vcc, s{S_T3}, v23
v_add_u32 v23, s{S_START}, v23
v_mov_b32 v18, 0
v_mov_b32 v19, 0xffff0000
v_mov_b32 v20, 0xffffff
v_lshlrev_b32 v21, 3, v23
v_lshlrev_b32 v22, 2, v23
s_and_b64 exec, exec, vcc
ds_write_b64 v21, v[18:19] offset:{L_YS}
ds_write_b32 v22, v20 offset:{L_PT}
ds_write_b8 v23, v18 offset:{L_ID}
s_mov_b64 exec, -1
s_waitcnt lgkmcnt(0)
""")
    for j in range(7):
        a(f"""
v_add_u32 v23, v{BA+j}, v{RK+j}
v_lshrrev_b32 v20, 27, v{REC+4*j+2}
v_lshlrev_b32 v21, 3, v23
v_mul_u32_u24 v20, 7, v20
v_lshlrev_b32 v22, 2, v23
s_mov_b64 exec, s[{S_MASK+2*j}:{S_MASK+2*j+1}]
ds_write_b64 v21, {vr(REC+4*j,2)} offset:{L_YS}
ds_write_b32 v22, v{REC+4*j+2} offset:{L_PT}
ds_write_b8 v23, v20 offset:{L_ID}
s_mov_b64 exec, -1
""")

def list_addrs(a):
    a("v_lshrrev_b32 v17, 3, v16")
    a(rho(2, 17, 18))
    a("v_lshrrev_b32 v17, 2, v16")
    a(rho(3, 17, 18))
    a("v_bfe_u32 v17, v16, 1, 4")
    a(rho(4, 17, 18))
    a(f"""
v_add_lshl_u32 v2, v2, s{S_START}, 3
v_add_lshl_u32 v3, v3, s{S_START}, 3
v_add_lshl_u32 v4, v4, s{S_START}, 2
v_mov_b32 v15, s{S_START}
v_and_b32 v14, 0x70, v0
""")

def ea_addrs(a, v_a0, v_a1, ring_off):
    a(f"""
v_bfe_u32 v17, v16, 3, 2
v_and_b32 v18, 3, v16
v_lshl_or_b32 v17, v17, 2, v18
v_lshlrev_b32 v17, 5, v17
v_lshrrev_b32 v18, 5, v16
v_lshl_or_b32 v17, v18, 4, v17
v_bfe_u32 v18, v16, 2, 1
v_mul_u32_u24 v18, {OOB + 16}, v18
v_xor_b32 v17, v18, v17
s_add_u32 s{S_T0}, s{S_RING}, {ring_off}
v_add_u32 v{v_a0}, s{S_T0}, v17
v_xor_b32 v17, {OOB + 16}, v17
v_add_u32 v{v_a1}, s{S_T0}, v17
""")

def valid(a, k):
    a(f"""
s_cmp_ge_i32 s{S_REM}, {k}
s_cselect_b32 s{SRD_X+2}, s{S_XB}, 0
s_cselect_b32 s{SRD_E+2}, s{S_EB}, 0
""")

def dma_e(a, v, off, restore=True):
    a(f"""
s_add_u32 m0, s{S_RING}, {off}
s_mov_b32 exec_hi, 0
buffer_load_dwordx4 v{v}, {srd(SRD_E)}, 0 offen lds
""")
    if restore: a("s_mov_b32 exec_hi, -1")

def prio_init(a):
    a(f"""
s_max_u32 s{S_T0}, s{S_NB}, 1
v_cvt_f32_u32 v17, s{S_T0}
v_rcp_f32 v17, v17
s_and_b32 s{S_PADDR}, s{S_WAVE}, 3
s_lshl_b32 s{S_PADDR}, s{S_PADDR}, 2
v_mul_f32 v17, 0x47800000, v17
s_add_u32 s{S_PADDR}, s{S_PADDR}, {L_FLAG + 16}
v_cvt_u32_f32 v17, v17
s_cmp_ge_u32 s{S_WAVE}, 4
s_cselect_b32 s{S_PSGN}, -1, 1
v_readfirstlane_b32 s{S_PINC}, v17
s_mul_i32 s{S_PINC}, s{S_PINC}, s{S_PSGN}
""")
def prio_addr(va, vd): return [f"v_lshl_add_u32 v{va}, v0, 14, s{S_PADDR}", f"v_mov_b32 v{vd}, s{S_PINC}"]
def prio_add(va, vd): return ("pr", f"ds_add_rtn_u32 v{vd}, v{va}, v{vd}")
def prio_read(vd): return [f"v_readfirstlane_b32 s{S_T0}, v{vd}"]
def prio_set():
    return [f"s_mul_i32 s{S_T0}, s{S_T0}, s{S_PSGN}", f"s_cmp_gt_i32 s{S_T0}, 0", "s_setprio 0", "s_cbranch_scc1 1", "s_setprio 1"]

M3, M1, XR, G, T1, T2, T3, ACC = 6, 8, (10, 12), (16, 24), 32, 48, 64, 81

def dma_x(a, v, slot, fill):
    for b in range(3):
        a(f"s_add_u32 m0, s{S_RING}, {b*LINE + slot*1024 - 128*(b+1)}")
        a(fill[b] if b < len(fill) else "s_nop 0")
        a(f"buffer_load_dwordx4 v{v}, {srd(SRD_X)}, 0 offen offset:{128*(b+1)} lds")

def pass_b(a, name, opt):
    def m4(e):
        g, x = G[e & 1], XR[e & 1]
        return [f"v_mfma_f32_4x4x4_16b_bf16 {vr(g,4)}, {vr(M1,2)}, {vr(x,2)}, 0 cbsz:4 abid:{e}",
                f"v_mfma_f32_4x4x4_16b_bf16 {vr(g+4,4)}, {vr(M3,2)}, {vr(x,2)}, 0"]
    def xread(ds, p, e):
        slot = (2*p + (e >> 3)) & 3
        ds.op(f"x{e & 15}", f"ds_read_b64_tr_b16 {vr(XR[e&1],2)}, v1 offset:{slot*1024 + (e & 7)*128}")
    def wread(ds, tag, dst, path):
        for h in range(2):
            ds.op(f"{tag}{h}", f"ds_read_b128 {vr(dst+4*h,4)}, v0 offset:{L_WR + (path*2+h)*1024}")
    def aread(ds, p):
        ds.op("A0", f"ds_read_b128 {vr(G[0],4)}, v5 offset:{p*512}")
        ds.op("A1", f"ds_read_b128 {vr(G[0]+4,4)}, v80 offset:{p*512}")
    if opt.get('solo'): a(f"s_cmp_ge_u32 s{S_WAVE}, 4\ns_cselect_b32 s{S_NB}, 0, s{S_NB}")
    list_addrs(a)
    ea_addrs(a, 5, 80, RB_EA)
    a(f"""
v_bfe_u32 v17, v16, 2, 2
v_min_u32 v17, 2, v17
v_mul_u32_u24 v17, {LINE}, v17
v_lshrrev_b32 v18, 4, v16
v_lshl_add_u32 v17, v18, 5, v17
v_and_b32 v18, 3, v16
v_lshl_add_u32 v17, v18, 3, v17
v_add_u32 v1, s{S_RING}, v17
v_mov_b32 v19, 0x3f80
v_mov_b32 v20, 0x3f800000
v_cmp_eq_u32 vcc, 0, v18
s_nop 1
v_cndmask_b32 v{M3}, 0, v19, vcc
v_cmp_eq_u32 vcc, 1, v18
s_nop 1
v_cndmask_b32 v{M3}, v{M3}, v20, vcc
v_cmp_eq_u32 vcc, 2, v18
s_nop 1
v_cndmask_b32 v{M3+1}, 0, v19, vcc
s_sub_u32 s{S_REM}, s{S_NB}, 1
s_waitcnt vmcnt(0) lgkmcnt(0)
s_barrier
""")
    stamp(a, opt, 1)
    a(f"""
s_cmp_eq_u32 s{S_NB}, 0
s_cbranch_scc1 {name}_b_done
""")
    si = S_IDX[0]
    def tail_reads(off):
        return [("ys", f"ds_read_b64 {vr(T2,2)}, v3 offset:{L_YS + 128*off}"),
                ("sr", f"ds_read_u16 v{T2+2}, v2 offset:{L_YS + 6 + 128*(off+1) + 64}"),
                ("pt", f"ds_read_b32 v{T2+3}, v4 offset:{L_PT + 64*(off+2)}"),
                ("mt", f"ds_read_b128 {vr(T2+4,4)}, v{T1} offset:{L_MT}"),
                ("id", f"ds_read_b128 {vr(T2+8,4)}, v15 offset:{L_ID + 16*off}")]
    def w1(h): return (f"W1{h}", f"ds_read_b128 {vr(T3+4*h,4)}, v0 offset:{L_WR + (8+h)*1024}")
    ds = DS(a)
    for t in range(2): ds.op(f"pt{t}", f"ds_read_b32 v{T1+8+t}, v4 offset:{L_PT + 64*t}")
    for h in range(3): ds.op(f"sr{h}", f"ds_read_u16 v{T1+10+h}, v2 offset:{L_YS + 6 + 64*h}")
    a(f"v_and_b32 v{T1+2}, 16, v0\nv_and_b32 v{T1}, 48, v0")
    for op in tail_reads(0) + [w1(0), w1(1)]: ds.op(*op)
    ds.need("sr2")
    for t in range(2): a(f"v_mad_u32_u24 v{T1+8+t}, v{T1+8+t}, 32, v{T1+2}")
    for h in range(3): a(f"v_lshl_or_b32 v{T1+10+h}, v{T1+10+h}, 9, v14")
    valid(a, 0)
    dma_e(a, T1+8, RB_EA)
    dma_x(a, T1+10, 0, [])
    dma_x(a, T1+11, 1, [])
    valid(a, 1)
    dma_e(a, T1+9, RB_EA + 512)
    dma_x(a, T1+12, 2, [])
    ds.drain()
    a("s_waitcnt vmcnt(10)")
    aread(ds, 0)
    entry = list(ds.q)
    a(f"{name}_b_loop:")
    for p in range(2):
        ds = DS(a, entry)
        def big(tag, tile, w, h):
            ds.need(f"A{h}", f"{tag}{h}")
            a(f"v_mfma_f32_32x32x16_bf16 {vr(tile,16)}, {vr(G[0]+4*h,4)}, {vr(w+4*h,4)}, {vr(tile,16) if h else 0}")
        def m0x(b, slot): return f"s_add_u32 m0, s{S_RING}, {b*LINE + slot*1024 - 128*(b+1)}"
        def ldx(v, b): return f"buffer_load_dwordx4 v{v}, {srd(SRD_X)}, 0 offen offset:{128*(b+1)} lds"
        wread(ds, "W2", T3+8, 1); wread(ds, "W3", G[1], 3)
        big("W1", T1, T3, 0)
        a(f"""
v_perm_b32 v{M1}, v{T2+1}, v{T2}, v{T2+4}
v_perm_b32 v{M1+1}, v{T2+1}, v{T2}, v{T2+5}
v_and_b32 v{XR[1]}, 16, v0
v_xor_b32 v{M1}, v{M1}, v{T2+6}
v_xor_b32 v{M1+1}, v{M1+1}, v{T2+7}
""")
        big("W1", T1, T3, 1)
        a(f"v_lshl_or_b32 v{XR[0]}, v{T2+2}, 9, v14\nv_mad_u32_u24 v{XR[0]+1}, v{T2+3}, 32, v{XR[1]}")
        for i in range(4): a(f"v_readfirstlane_b32 s{si+i}, v{T2+8+i}")
        sl = (2*p + 3) & 3
        a(m0x(0, sl))
        big("W2", T2, T3+8, 0)
        a(f"{ldx(XR[0], 0)}\n{m0x(1, sl)}\ns_nop 0\n{ldx(XR[0], 1)}\n{m0x(2, sl)}")
        big("W2", T2, T3+8, 1)
        a(ldx(XR[0], 2))
        valid(a, 2)
        dma_e(a, XR[0]+1, RB_EA + 512*p)
        big("W3", T3, G[1], 0)
        ds.drain()
        a("s_waitcnt vmcnt(11)")
        xread(ds, p, 0); xread(ds, p, 1)
        big("W3", T3, G[1], 1)
        tr_ = tail_reads(p+1)
        gaps = {
            (1, 1): [("sm", f"ds_read_u16 v{T1+1}, v2 offset:{L_YS + 6 + 128*(p+2)}")],
            (2, 1): [(None, f"v_lshl_or_b32 v{T1+1}, v{T1+1}, 9, v14")],
            (4, 0): [(None, f"v_and_b32 v{T1}, 48, v0")],
            (4, 1): [tr_[0]], (5, 1): [tr_[1], tr_[2]], (6, 1): [tr_[3], tr_[4]],
            (7, 1): [],
        }
        for q in (1, 2, 3, 5, 6, 7):
            r = si + 2*(q >> 2)
            gaps[(q, 0)] = [(None, f"s_lshr_b64 s[{r}:{r+1}], s[{r}:{r+1}], 8")]
        if p == 1:
            gaps[(7, 1)] = [(None, "v_add_u32 v2, 256, v2\nv_add_u32 v3, 256, v3\nv_add_u32 v4, 128, v4\nv_add_u32 v15, 32, v15")]
        def gap(q, k):
            for tag, text in gaps.get((q, k), []):
                if tag: ds.op(tag, text)
                else: a(text)
        def fmas(e):
            for i, tile in enumerate((T1, T1, T1, T2, T3, T3, T3)):
                a(f"v_fmac_f32 v{ACC+i}, v{G[e & 1]+i}, v{tile+e}")
        for q in range(8):
            e = 2*q
            ds.drain()
            ma, mb = m4(e), m4(e+1)
            if q == 3:
                a(f"{m0x(0, 2*p)}\n{ma[0]}\n{ldx(T1+1, 0)}\n{m0x(1, 2*p)}\n{ma[1]}\n{ldx(T1+1, 1)}\n{m0x(2, 2*p)}\n{mb[0]}\n{ldx(T1+1, 2)}")
                gap(q, 0)
                a("s_waitcnt vmcnt(10)")
                xread(ds, p, e+2)
                a(mb[1])
            else:
                a(ma[0]); gap(q, 0); a(ma[1])
                if q < 7: xread(ds, p, e+2)
                else: ds.op(*w1(0))
                a(mb[0]); gap(q, 1); a(mb[1])
            a(f"s_set_gpr_idx_on s{si + 2*(q >> 2)}, 0x8")
            if q < 7: xread(ds, p, e+3)
            else: ds.op(*w1(1))
            fmas(e)
            a(f"s_set_gpr_idx_idx s{si + 2*(q >> 2) + 1}")
            if q == 7: aread(ds, p ^ 1)
            fmas(e+1)
            a("s_set_gpr_idx_off")
        a(f"s_sub_u32 s{S_REM}, s{S_REM}, 1\ns_cbranch_scc1 {name}_b_done")
        assert ds.q[-2:] == entry, (ds.q, entry)
    a(f"s_branch {name}_b_loop\n{name}_b_done:")

def pass_b2(a, name, opt):
    GG, XX, SP, MT, EC = 16, (20, 24), 28, 10, 7
    si = S_IDX[0]
    prio = opt.get('prio', 2)
    def xread(ds, p, e):
        o = ((2*p + (e >> 3)) & 3)*1024 + (e & 7)*128
        ds.op(f"x{e}", f"ds_read_b64_tr_b16 {vr(XX[e&1],2)}, v1 offset:{o}")
        ds.op(f"x{e}", f"ds_read_b64_tr_b16 {vr(XX[e&1]+2,2)}, v6 offset:{o}")
    def wr(tag, dst, path, h): return (f"{tag}{h}", f"ds_read_b128 {vr(dst,4)}, v0 offset:{L_WR + (path*2+h)*1024}")
    W1 = [wr("W1", T3+4*h, 3, h) for h in range(2)]
    W2 = [wr("W2", T3+8+4*h, 4, h) for h in range(2)]
    W3 = [wr("W3", (XX[1], GG)[h], 1, h) for h in range(2)]
    AR = (XX[0], SP)
    def ar(p, h): return (f"A{h}", f"ds_read_b128 {vr(AR[h],4)}, v{(5, 80)[h]} offset:{p*512}")
    def tail_reads(off):
        return [("ys", f"ds_read_b64 {vr(T2,2)}, v3 offset:{L_YS + 128*off}"),
                ("sr", f"ds_read_u16 v{T2+2}, v2 offset:{L_YS + 6 + 128*(off+1) + 64}"),
                ("pt", f"ds_read_b32 v{T2+3}, v4 offset:{L_PT + 64*(off+2)}"),
                ("id", f"ds_read_b128 {vr(T2+4,4)}, v15 offset:{L_ID + 16*off}")]
    if opt.get('solo'): a(f"s_cmp_ge_u32 s{S_WAVE}, 4\ns_cselect_b32 s{S_NB}, 0, s{S_NB}")
    if prio: prio_init(a)
    list_addrs(a)
    ea_addrs(a, 5, 80, RB_EA)
    a(f"""
v_lshrrev_b32 v18, 4, v16
v_lshlrev_b32 v17, 5, v18
v_and_b32 v18, 3, v16
v_lshl_add_u32 v17, v18, 3, v17
v_add_u32 v17, s{S_RING}, v17
v_bfe_u32 v18, v16, 2, 2
v_min_u32 v19, 2, v18
v_mul_u32_u24 v19, {LINE}, v19
v_cmp_eq_u32 vcc, 2, v18
v_mov_b32 v20, {OOB + 192}
v_bfe_u32 v21, v16, 3, 1
v_cndmask_b32 v19, v19, v20, vcc
v_add_u32 v1, v17, v19
v_and_b32 v18, 1, v18
v_cmp_eq_u32 vcc, 0, v18
v_mul_u32_u24 v21, {LINE}, v21
v_and_b32 v{EC}, 16, v0
v_cndmask_b32 v21, v21, v20, vcc
v_add_u32 v6, v17, v21
v_and_b32 v17, 48, v0
s_sub_u32 s{S_REM}, s{S_NB}, 1
s_waitcnt vmcnt(0) lgkmcnt(0)
s_barrier
""")
    stamp(a, opt, 1)
    a(f"""
s_cmp_eq_u32 s{S_NB}, 0
s_cbranch_scc1 {name}_b_done
""")
    ds = DS(a)
    for t in range(2): ds.op(f"pt{t}", f"ds_read_b32 v{T1+8+t}, v4 offset:{L_PT + 64*t}")
    for h in range(3): ds.op(f"sr{h}", f"ds_read_u16 v{T1+10+h}, v2 offset:{L_YS + 6 + 64*h}")
    ds.op("mt", f"ds_read_b128 {vr(MT,4)}, v17 offset:{L_MT}")
    for op in tail_reads(0) + W1: ds.op(*op)
    ds.need("sr2")
    for t in range(2): a(f"v_mad_u32_u24 v{T1+8+t}, v{T1+8+t}, 32, v{EC}")
    for h in range(3): a(f"v_lshl_or_b32 v{T1+10+h}, v{T1+10+h}, 9, v14")
    valid(a, 0)
    dma_e(a, T1+8, RB_EA)
    dma_x(a, T1+10, 0, [])
    dma_x(a, T1+11, 1, [])
    valid(a, 1)
    dma_e(a, T1+9, RB_EA + 512)
    dma_x(a, T1+12, 2, [])
    ds.drain()
    a("s_waitcnt vmcnt(10)")
    for op in (ar(0, 0), ar(0, 1), W2[0], W3[0]): ds.op(*op)
    entry = list(ds.q)
    a(f"{name}_b_loop:")
    for p in range(2):
        ds = DS(a, entry)
        def big(tag, tile, w, h):
            ds.need(f"A{h}", f"{tag}{h}")
            a(f"v_mfma_f32_32x32x16_bf16 {vr(tile,16)}, {vr(AR[h],4)}, {vr(w,4)}, {vr(tile,16) if h else 0}")
        def m0x(b, slot): return f"s_add_u32 m0, s{S_RING}, {b*LINE + slot*1024 - 128*(b+1)}"
        def ldx(v, b): return f"buffer_load_dwordx4 v{v}, {srd(SRD_X)}, 0 offen offset:{128*(b+1)} lds"
        ds.need("A1")
        big("W1", T1, T3, 0)
        ds.op(*W2[1]); ds.op(*W3[1])
        a(f"""
v_perm_b32 v{M1}, v{T2+1}, v{T2}, v{MT}
v_perm_b32 v{M1+1}, v{T2+1}, v{T2}, v{MT+1}
v_xor_b32 v{M1}, v{M1}, v{MT+2}
v_xor_b32 v{M1+1}, v{M1+1}, v{MT+3}
""")
        big("W1", T1, T3+4, 1)
        a(f"v_lshl_or_b32 v{T3}, v{T2+2}, 9, v14\nv_mad_u32_u24 v{T3+1}, v{T2+3}, 32, v{EC}")
        for i in range(4): a(f"v_readfirstlane_b32 s{si+i}, v{T2+4+i}")
        sl = (2*p + 3) & 3
        a(m0x(0, sl))
        ds.drain()
        big("W2", T2, T3+8, 0)
        a(f"{ldx(T3, 0)}\n{m0x(1, sl)}\ns_nop 0\n{ldx(T3, 1)}\n{m0x(2, sl)}")
        big("W2", T2, T3+12, 1)
        a(ldx(T3, 2))
        valid(a, 2)
        dma_e(a, T3+1, RB_EA + 512*p)
        big("W3", T3, XX[1], 0)
        a("s_waitcnt vmcnt(11)")
        xread(ds, p, 0); xread(ds, p, 1)
        big("W3", T3, GG, 1)
        tr_ = tail_reads(p+1)
        pre = {5: [f"v_lshl_or_b32 v{T1+1}, v{T1+1}, 9, v14"]}
        if p == 1: pre[13] = ["v_add_u32 v2, 256, v2", "v_add_u32 v3, 256, v3", "v_add_u32 v4, 128, v4", "v_add_u32 v15, 32, v15"]
        aux = {2: [("sm", f"ds_read_u16 v{T1+1}, v2 offset:{L_YS + 6 + 128*(p+2)}")],
               8: tr_[:2], 10: tr_[2:], 12: W1}
        if prio == 1 or (prio == 2 and p == 0):
            pre[1] = prio_addr(T1, T3); aux[1] = [prio_add(T1, T3)]
            pre[4] = prio_read(T3) + prio_set()
        for e in range(16):
            x = XX[e & 1]
            ds.need(f"x{e}")
            a(f"v_mfma_f32_4x4x4_16b_bf16 {vr(GG,4)}, {vr(M1,2)}, {vr(x,2)}, 0 cbsz:4 abid:{e}")
            for l in pre.get(e, []): a(l)
            if e == 7:
                for b in range(3): a(f"{m0x(b, 2*p)}\ns_nop 0\n{ldx(T1+1, b)}")
            a(f"s_set_gpr_idx_on s{si + 2*(e >> 3) + (e & 1)}, 0x8")
            if e == 0: a("s_nop 0")
            if (e & 1) and (e & 7) != 7:
                r = si + 2*(e >> 3)
                a(f"s_lshr_b64 s[{r}:{r+1}], s[{r}:{r+1}], 8")
            for op in aux.get(e, []): ds.op(*op)
            for i, src in enumerate((x+2, x+3, x+1)): a(f"v_fmac_f32 v{ACC+4+i}, v{src}, v{T1+e}")
            if e == 6: a("s_waitcnt vmcnt(7)")
            if e < 14: xread(ds, p, e+2)
            elif e == 14: ds.op(*ar(p ^ 1, 0)); ds.op(*ar(p ^ 1, 1))
            else: ds.op(*W2[0]); ds.op(*W3[0])
            for i in range(4): a(f"v_fmac_f32 v{ACC+i}, v{GG+i}, v{(T2, T2, T2, T3)[i]+e}")
            a("s_set_gpr_idx_mode 0" if e < 15 else "s_set_gpr_idx_off")
        a(f"s_sub_u32 s{S_REM}, s{S_REM}, 1\ns_cbranch_scc1 {name}_b_done")
        assert ds.q == entry, (ds.q, entry)
    a(f"s_branch {name}_b_loop\n{name}_b_done:")

PB, ACA = 68, 156
TA0, TA2 = 32, 48
SB_ = (10, 12, 64, 66)
M2, SELA, AA, WA = 8, 6, 16, 24

def pass_a(a, name, opt):
    def dma_s(v, slot, fill="s_nop 0"):
        a(f"s_add_u32 m0, s{S_RING}, {slot*1024}\n{fill}\nbuffer_load_dwordx4 v{v}, {srd(SRD_X)}, 0 offen lds")
    def sread(c, m):
        slot = 2*c + (m >> 2)
        return (f"s{m}", f"ds_read_b64_tr_b16 {vr(SB_[m&3],2)}, v1 offset:{slot*1024 + (m & 3)*256}")
    def next_reads(c, off):
        r = [("A0", f"ds_read_b128 {vr(AA,4)}, v5 offset:{c*512}"),
             ("A1", f"ds_read_b128 {vr(AA+4,4)}, v7 offset:{c*512}")]
        r += [sread(c, m) for m in range(4)]
        r += [(f"W0{h}", f"ds_read_b128 {vr(TA2+8+4*h,4)}, v0 offset:{L_WR + h*1024}") for h in range(2)]
        r += [("ys", f"ds_read_b64 {vr(TA2+2,2)}, v3 offset:{L_YS + 128*off}"),
              ("id", f"ds_read_b128 {vr(TA2+4,4)}, v15 offset:{L_ID + 16*off}")]
        return r
    a(f"""
s_waitcnt vmcnt(0) lgkmcnt(0)
s_mul_i32 s{S_T1}, s{S_WAVE}, 5120
s_add_u32 s{S_T1}, s{S_T1}, 10240
""")
    for j in range(5):
        a(f"s_add_u32 m0, s{S_RING}, {RA_WS}\ns_nop 0\nbuffer_load_dwordx4 v0, {srd(SRD_W)}, s{S_T1} offen offset:{1024*j if j < 4 else 0} lds"
          if j < 4 else
          f"s_add_u32 m0, s{S_RING}, {RA_WS+4096}\ns_add_u32 s{S_T1}, s{S_T1}, 4096\nbuffer_load_dwordx4 v0, {srd(SRD_W)}, s{S_T1} offen lds")
    a("v_lshrrev_b32 v16, 4, v0")
    list_addrs(a)
    ds = DS(a)
    for h in range(7): ds.op(f"sr{h}", f"ds_read_u16 v{TA0+h}, v2 offset:{L_YS + 6 + 64*h}")
    for t in range(4): ds.op(f"pt{t}", f"ds_read_b32 v{TA0+8+t}, v4 offset:{L_PT + 64*t}")
    ea_addrs(a, 5, 7, RA_EA)
    a(f"""
v_bfe_u32 v17, v16, 2, 1
v_xor_b32 v17, 1, v17
v_mul_u32_u24 v17, {OOB + 64}, v17
v_bfe_u32 v18, v16, 3, 1
v_lshl_add_u32 v17, v18, 7, v17
v_lshrrev_b32 v18, 4, v16
v_lshl_add_u32 v17, v18, 5, v17
v_and_b32 v18, 3, v16
v_lshl_add_u32 v17, v18, 3, v17
v_add_u32 v1, s{S_RING}, v17
v_mul_u32_u24 v19, 0x202, v18
v_add_u32 v19, 0x0c0c0100, v19
v_cmp_eq_u32 vcc, 3, v18
v_mov_b32 v20, 0x0c0c0c0c
v_mov_b32 v21, 0x3f80
v_cndmask_b32 v19, v19, v20, vcc
v_cndmask_b32 v21, 0, v21, vcc
v_and_b32 v18, 4, v16
v_lshlrev_b32 v18, 2, v18
v_alignbit_b32 v{SELA}, v19, v19, v18
v_lshlrev_b32 v{M2+1}, v18, v21
v_and_b32 v17, 16, v0
s_sub_u32 s{S_REM}, s{S_NB}, 1
""")
    ds.drain()
    for h in range(7): a(f"v_lshl_or_b32 v{TA0+h}, v{TA0+h}, 9, v14")
    for t in range(4): a(f"v_mad_u32_u24 v{TA0+8+t}, v{TA0+8+t}, 32, v17")
    for t in range(3):
        valid(a, t)
        dma_s(TA0+2*t, 2*t)
        dma_e(a, TA0+8+t, RA_EA + 512*t)
        dma_s(TA0+2*t+1, 2*t+1)
    for h in range(2): ds.op(f"W2{h}", f"ds_read_b128 {vr(WA+4*h,4)}, v0 offset:{L_WR + (4+h)*1024}")
    a(f"""
v_lshrrev_b32 v17, 2, v0
s_lshl_b32 s{S_T0}, s{S_NB}, 4
s_mov_b32 s{S_T1}, 0x00ff00ff
s_mov_b32 s{S_T2}, 0x007c007c
s_mov_b32 s{S_T3}, 0x7c007c00
v_mov_b32 v21, 37
{name}_reidx:
v_cmp_gt_u32 vcc, s{S_T0}, v17
s_and_b64 exec, exec, vcc
s_cbranch_execz {name}_reidx_done
v_add_u32 v18, s{S_START}, v17
ds_read_b32 v19, v18 offset:{L_ID}
v_add_u32 v17, 256, v17
s_waitcnt lgkmcnt(0)
v_lshrrev_b32 v20, 8, v19
v_and_b32 v19, s{S_T1}, v19
v_and_b32 v20, s{S_T1}, v20
v_mul_u32_u24 v19, v19, v21
v_mul_u32_u24 v20, v20, v21
v_lshrrev_b32 v19, 6, v19
v_lshlrev_b32 v20, 2, v20
v_and_b32 v19, s{S_T2}, v19
v_and_or_b32 v19, v20, s{S_T3}, v19
ds_write_b32 v18, v19 offset:{L_ID}
s_branch {name}_reidx
{name}_reidx_done:
s_mov_b64 exec, -1
""")
    for p in range(12):
        for i in range(7): a(f"v_cvt_pk_bf16_f32 v{PB+7*p+i}, v{ACC+14*p+i}, v{ACC+14*p+7+i}")
    for i in range(4): a(f"v_cvt_pk_bf16_f32 v{PB+84+i}, v{ACC+168+2*i}, v{ACC+168+min(2*i+1,6)}")
    for r in range(ACA, 256): a(f"v_mov_b32 v{r}, 0")
    a(f"""
s_waitcnt vmcnt(7)
v_mov_b32 v17, {L_FLAG}
v_mov_b32 v18, 1
s_mov_b64 exec, 1
ds_add_u32 v17, v18
s_mov_b64 exec, -1
s_cmp_eq_u32 s{S_NB}, 0
s_cbranch_scc1 {name}_a_done
s_waitcnt lgkmcnt(0)
""")
    ds.q = []
    stamp(a, opt, 3)
    for tag, text in next_reads(0, 0): ds.op(tag, text)
    valid(a, 3)
    ds.need("s3")
    dma_s(TA0+6, 0)
    dma_e(a, TA0+11, RA_EA)
    entry = list(ds.q)
    si = S_IDX[0]
    a(f"{name}_a_loop:")
    for c in range(3):
        ds = DS(a, entry)
        for h in range(2):
            ds.need(f"W0{h}")
            a(f"v_mfma_f32_32x32x16_bf16 {vr(TA0,16)}, {vr(AA+4*h,4)}, {vr(TA2+8+4*h,4)}, {vr(TA0,16) if h else 0}")
        ds.drain()
        a(f"v_perm_b32 v{M2}, v{TA2+3}, v{TA2+2}, v{SELA}")
        for i in range(4): a(f"v_readfirstlane_b32 s{si+i}, v{TA2+4+i}")
        for h in range(2):
            a(f"v_mfma_f32_32x32x16_bf16 {vr(TA2,16)}, {vr(AA+4*h,4)}, {vr(WA+4*h,4)}, {vr(TA2,16) if h else 0}")
        a("s_waitcnt vmcnt(8)\ns_nop 2")
        def mul(tile, m): a(f"v_pk_mul_f32 {vr(tile+2*m,2)}, {vr(tile+2*m,2)}, {vr(SB_[m&3],2)}")
        def cvt_t(m): a(f"v_cvt_pk_bf16_f32 v{TA0+2*m+1}, v{TA0+2*m}, v{TA0+2*m+1}")
        def cvt_u(m): a(f"v_cvt_pk_bf16_f32 v{TA0+2*m}, v{TA2+2*m}, v{TA2+2*m+1}")
        for m in range(8): a(f"v_mul_f32 v{TA0+m}, v{TA0+m}, v{SB_[m>>1] + (m&1)}")
        for m in range(4): cvt_t(m)
        for m in range(4):
            mul(TA2, m)
            ds.op(*sread(c, m+4))
        for m in range(4):
            cvt_u(m)
            if m == 1:
                ds.op("sr1", f"ds_read_u16 v{TA2+2}, v2 offset:{L_YS + 6 + 128*(c+3) + 64}")
                ds.op("sr0", f"ds_read_u16 v{TA2}, v2 offset:{L_YS + 6 + 128*(c+4)}")
                ds.op("pt", f"ds_read_b32 v{TA2+1}, v4 offset:{L_PT + 64*(c+4)}")
        a(f"v_and_b32 v{TA2+3}, 16, v0")
        pra = opt.get('prio', 2) == 1 or (opt.get('prio', 2) == 2 and c == 0)
        if pra:
            for l in prio_addr(TA2+4, TA2+5): a(l)
            ds.op(*prio_add(TA2+4, TA2+5))
        for m in range(4, 8):
            ds.need(f"s{m}")
            mul(TA0, m); mul(TA2, m)
            if m > 4: cvt_t(m-1); cvt_u(m-1)
        ds.drain()
        a(f"v_lshl_or_b32 v{TA2+2}, v{TA2+2}, 9, v14")
        dma_s(TA2+2, 2*c+1, f"v_lshl_or_b32 v{TA2}, v{TA2}, 9, v14")
        cvt_t(7); cvt_u(7)
        a(f"v_mad_u32_u24 v{TA2+1}, v{TA2+1}, 32, v{TA2+3}")
        if pra:
            for l in prio_read(TA2+5) + prio_set(): a(l)
        cn = (c + 1) % 3
        fill = next_reads(cn, c+1)
        valid(a, 4)
        a("s_waitcnt vmcnt(7)")
        for e in range(16):
            if e == 12:
                ds.need("s3")
                dma_s(TA2, 2*cn)
                dma_e(a, TA2+1, RA_EA + 512*cn)
            a(f"s_set_gpr_idx_on s{si + 2*(e >> 3) + (e & 1)}, 0xc")
            if (e & 1) and (e & 7) != 7:
                q = si + 2*(e >> 3)
                a(f"s_lshr_b64 s[{q}:{q+1}], s[{q}:{q+1}], 8")
                if fill and e < 8: ds.op(*fill.pop(0))
            elif fill: ds.op(*fill.pop(0))
            else: a("s_nop 0")
            a(f"v_mfma_f32_4x4x4_16b_bf16 {vr(ACA,4)}, {vr(M2,2)}, {vr(TA0+(e&14),2)}, {vr(ACA,4)} cbsz:4 abid:{e}")
        assert not fill
        a("s_set_gpr_idx_off")
        if c == 2:
            a("v_add_u32 v2, 384, v2\nv_add_u32 v3, 384, v3\nv_add_u32 v4, 192, v4\nv_add_u32 v15, 48, v15")
        a(f"s_sub_u32 s{S_REM}, s{S_REM}, 1\ns_cbranch_scc1 {name}_a_done")
        assert ds.q == entry, (ds.q, entry)
    a(f"s_branch {name}_a_loop\n{name}_a_done:")

def epilogue(a, name, opt):
    PA = ACA
    D = (208, 224); GATE = 32; AOP = (8, 240); WOP = (24, 28, 58, 62); TMP = (66, 67, 206, 207)
    nt = opt.get('store_nt', ' nt')
    a(f"""
v_lshrrev_b32 v16, 4, v0
v_mul_u32_u24 v1, 56, v16
v_add_u32 v1, s{S_RING}, v1
v_lshrrev_b32 v17, 5, v16
v_bfe_u32 v18, v16, 2, 2
v_lshl_add_u32 v18, v17, 3, v18
v_mul_u32_u24 v2, 56, v18
v_bfe_u32 v18, v16, 4, 1
v_lshl_add_u32 v2, v18, 5, v2
v_and_b32 v18, 3, v16
v_lshl_add_u32 v2, v18, 3, v2
v_add_u32 v2, s{S_RING}, v2
v_add_u32 v3, {L_RING + RA_WS}, v0
v_add_u32 v4, {L_RING + RA_WS + 5*RING}, v0
v_and_b32 v18, 31, v16
v_lshlrev_b32 v18, 2, v18
v_lshl_or_b32 v5, v17, 22, v18
s_lshl_b32 s{S_T0}, s{S_WAVE}, 8
s_add_u32 s{S_T0}, s{S_T0}, s{S_SB}
s_lshl_b32 s{S_T0}, s{S_T0}, 9
v_add_u32 v5, s{S_T0}, v5
v_lshrrev_b32 v6, 2, v0
v_mov_b32 v7, {L_FLAG}
""")
    for p in range(12):
        for i in range(4): a(f"v_cvt_pk_bf16_f32 v{PA+4*p+i}, v{ACA+8*p+i}, v{ACA+8*p+4+i}")
    for i in range(2): a(f"v_cvt_pk_bf16_f32 v{PA+48+i}, v{ACA+96+2*i}, v{ACA+97+2*i}")
    a(f"""
s_waitcnt vmcnt(0)
{name}_spin:
ds_read_b32 v17, v7
s_waitcnt lgkmcnt(0)
v_readfirstlane_b32 s{S_T0}, v17
s_cmp_lt_u32 s{S_T0}, 8
s_cbranch_scc1 {name}_spin
s_add_u32 s{S_T2}, s{S_WBASE}, s{S_WCNT}
s_lshl_b32 s{S_T3}, s2, 3
s_add_u32 s{S_T3}, s{S_T3}, s{S_WAVE}
s_lshl_b32 s{S_T3}, s{S_T3}, 15
""")
    for r in range(13):
        a(f"s_mov_b32 s{80+r}, {(((r >> 2)*8 + (r & 3)) << 20):#x}")
    def ga(i): return (PA+i, 4, PA+48+(i >> 1), i & 1)
    def gb(i): return (PB+i, 7, PB+84+(i >> 1), i & 1)
    groups = [(ga(3), 0, 0), (gb(3), 1, 0)]
    for j in range(3): groups += [(ga(j), 2, j+1), (gb(4+j), 3, j+1), (gb(j), 4, j+1)]
    ds = DS(a)
    def stage(g):
        (base, st, tail, hi), _, _ = groups[g]
        off = (g & 1) * TILE
        ops = []
        if g & 1: ops.append((None, f"v_add_u32 v{TMP[3]}, {TILE}, v1"))
        wv = TMP[3] if g & 1 else 1
        for p in range(0, 12, 2):
            ops.append((f"w{g}", f"ds_write2_b32 v{wv}, v{base+st*p}, v{base+st*(p+1)} offset0:{p} offset1:{p+1}"))
        ops.append((f"w{g}", f"ds_write_b16{'_d16_hi' if hi else ''} v{wv}, v{tail} offset:48"))
        for t in range(4):
            for j in range(2):
                ops.append((f"a{g}_{t}", f"ds_read_b64_tr_b16 {vr(AOP[g&1]+4*t+2*j,2)}, v2 offset:{off + (16*t+4*j)*56}"))
        return ops
    def wop(n):
        g, i = divmod(n, 8)
        r = groups[g][1]*8 + i
        w, k = divmod(r, 5)
        v, o = (3, w*RING) if w < 5 else (4, (w-5)*RING)
        return (f"W{n}", f"ds_read_b128 {vr(WOP[n&3],4)}, v{v} offset:{o + k*1024}")
    def emit(op):
        if op[0] is None: a(op[1])
        else: ds.op(*op)
    for op in stage(0): emit(op)
    for n in range(3): ds.op(*wop(n))
    NG = len(groups)
    for g in range(NG):
        pend = stage(g+1) if g+1 < NG else []
        first = g == 0 or groups[g-1][2] != groups[g][2]
        for i in range(8):
            n = g*8 + i; t, u = i >> 1, i & 1
            if n + 3 < NG*8: ds.op(*wop(n+3))
            ds.need(f"W{n}", f"a{g}_{t}")
            a(f"v_mfma_f32_32x32x16_bf16 {vr(D[u],16)}, {vr(AOP[g&1]+4*t,4)}, {vr(WOP[n&3],4)}, {0 if first and t == 0 else vr(D[u],16)}")
            for _ in range(2):
                if pend: emit(pend.pop(0))
        while pend: emit(pend.pop(0))
        comp = groups[g][2]
        if g+1 < NG and groups[g+1][2] == comp: continue
        a(f"""
s_nop 9
s_cmp_lg_u32 s{S_TOTAL}, s{S_WCNT}
s_cbranch_scc1 {name}_multi{comp}
{name}_fin{comp}:
""")
        for r in range(13):
            t = TMP[r & 1]
            if comp:
                a(f"v_mul_f32 v{D[0]+r}, v{D[0]+r}, v{GATE+2*r}\nv_mul_f32 v{D[1]+r}, v{D[1]+r}, v{GATE+2*r+1}")
            a(f"v_cvt_pk_bf16_f32 v{t}, v{D[0]+r}, v{D[1]+r}")
            a(f"buffer_store_dword v{t}, v5, {srd(SRD_O)}, s{80+r} offen offset:{128*comp}{nt}")
            if not comp:
                for u in range(2): a(f"v_mul_f32 v{GATE+2*r+u}, 0xbfb8aa3b, v{D[u]+r}")
                for u in range(2): a(f"v_exp_f32 v{GATE+2*r+u}, v{GATE+2*r+u}")
                if r:
                    for u in range(2): a(f"v_rcp_f32 v{GATE+2*r-2+u}, v{GATE+2*r-2+u}")
                else: a("s_nop 0")
                for u in range(2): a(f"v_add_f32 v{GATE+2*r+u}, 1.0, v{GATE+2*r+u}")
        if not comp:
            for u in range(2): a(f"v_rcp_f32 v{GATE+24+u}, v{GATE+24+u}")
        a(f"{name}_next{comp}:")
    stamp(a, opt, 5)
    stamps_out(a, opt)
    a(f"""
s_cmp_ge_u32 s{S_T2}, s{S_TOTAL}
s_cbranch_scc1 {name}_end
s_mov_b32 s{S_WBASE}, s{S_T2}
s_waitcnt vmcnt(0) lgkmcnt(0)
s_barrier
s_branch {name}_window
""")
    for comp in range(4):
        a(f"""
{name}_multi{comp}:
s_add_u32 s{S_T0}, s{S_T3}, {comp*8192}
s_add_u32 s{S_T1}, s{S_T0}, 4096
s_cmp_eq_u32 s{S_WBASE}, 0
s_cbranch_scc1 {name}_mst{comp}
""")
        for u in range(2):
            for r in range(13):
                a(f"buffer_load_dword v{TMP[0]}, v6, {srd(SRD_S)}, s{S_T0+u} offen offset:{256*r} sc1\ns_waitcnt vmcnt(0)\nv_add_f32 v{D[u]+r}, v{D[u]+r}, v{TMP[0]}")
        a(f"""
s_cmp_ge_u32 s{S_T2}, s{S_TOTAL}
s_cbranch_scc1 {name}_fin{comp}
{name}_mst{comp}:
""")
        for u in range(2):
            for r in range(13):
                a(f"buffer_store_dword v{D[u]+r}, v6, {srd(SRD_S)}, s{S_T0+u} offen offset:{256*r}")
        a(f"s_waitcnt vmcnt(0)\ns_branch {name}_next{comp}")
    a(f"{name}_end:\ns_endpgm")

def dump_regs(a):
    a("s_waitcnt vmcnt(0) lgkmcnt(0)\ns_nop 15")
    a.srd(96, 76, 128 << 20, 64 << 20)
    a(f"""
v_lshrrev_b32 v0, 2, v0
s_lshl_b32 s{S_T0}, s2, 3
s_add_u32 s{S_T0}, s{S_T0}, s{S_WAVE}
s_lshl_b32 s{S_T0}, s{S_T0}, 16
v_mov_b32 v1, s{S_START}
v_mov_b32 v2, s{S_NB}
""")
    for r in range(256):
        a(f"buffer_store_dword v{r}, v0, s[96:99], s{S_T0} offen\ns_add_u32 s{S_T0}, s{S_T0}, 256")
    a("s_endpgm")

def dump_lds(a):
    a("s_waitcnt vmcnt(0) lgkmcnt(0)\ns_barrier")
    a.srd(96, 76, 16 << 20, 200 << 20)
    a(f"""
s_lshl_b32 s{S_T0}, s2, 16
s_lshl_b32 s{S_T1}, s{S_WAVE}, 13
v_add_u32 v21, s{S_T1}, v0
""")
    for j in range(8):
        a(f"ds_read_b128 v[24:27], v21\ns_waitcnt lgkmcnt(0)\nbuffer_store_dwordx4 v[24:27], v21, s[96:99], s{S_T0} offen\ns_waitcnt vmcnt(0)\nv_add_u32 v21, 1024, v21")

def stamp(a, opt, i):
    if opt.get('stamps'):
        a(f"{'s_memtime' if opt['stamps'] == 2 else 's_memrealtime'} s[100:101]\ns_waitcnt lgkmcnt(0)\ns_mov_b32 s{93+i}, s100")

def stamps_out(a, opt):
    if opt.get('stamps'):
        a("s_waitcnt vmcnt(0)")
        stamp(a, opt, 6)
        a.srd(SRD_S, 76, 1 << 20, 240 << 20)
        a(f"s_lshl_b32 s{S_T0}, s2, 3\ns_add_u32 s{S_T0}, s{S_T0}, s{S_WAVE}\ns_lshl_b32 s{S_T0}, s{S_T0}, 5\nv_mov_b32 v0, 0")
        for i in range(7):
            a(f"v_mov_b32 v1, s{93+i}\nbuffer_store_dword v1, v0, {srd(SRD_S)}, s{S_T0} offen offset:{4*i}")
        a(f"v_mov_b32 v1, s{S_NB}\nbuffer_store_dword v1, v0, {srd(SRD_S)}, s{S_T0} offen offset:28\ns_endpgm")

def gen_k2(name, **opt):
    a = Asm()
    prologue(a, name, opt)
    if opt.get('dump'): dump_lds(a)
    (pass_b2 if opt.get('b2', 1) else pass_b)(a, name, opt)
    if opt.get('dump') == 'b': dump_regs(a)
    stamp(a, opt, 2)
    pass_a(a, name, opt)
    if opt.get('dump') == 'a': dump_regs(a)
    stamp(a, opt, 4)
    epilogue(a, name, opt)
    for key, ps in (('drop', 'b'), ('dropa', 'a')):
        if opt.get(key):
            import re
            lo = a.lines.index(f"{name}_{ps}_loop:"); hi = a.lines.index(f"{name}_{ps}_done:")
            a.lines[lo:hi] = [l for l in a.lines[lo:hi] if not re.search(opt[key], l)]
    return a.text()
```

```python
from common import *

K1_LDS_EA = 0
K1_LDS_META = CH * 32
K1_LDS_INV = K1_LDS_META + CH * 12
K1_LDS_HIST = K1_LDS_INV + CH * 2
K1_LDS = K1_LDS_HIST + 2048
K1_GRID = NCH + 4
K1_VGPR = 64
QSHIFT = 12

def gen_k1(name, nt='', st=' sc1', stm=' sc1'):
    a = Asm()
    a(f"""
{name}:
s_cmp_ge_u32 s2, {K1_GRID}
s_cbranch_scc1 {name}_end
s_load_dwordx8 s[4:11], s[0:1], {KA_RHAT}
s_load_dwordx2 s[12:13], s[0:1], {KA_WS}
s_cmp_ge_u32 s2, {NCH}
s_cbranch_scc1 {name}_weights
v_lshrrev_b32 v1, 6, v0
v_lshlrev_b32 v2, 4, v0
v_readfirstlane_b32 s3, v1
v_mul_u32_u24 v3, 24, v0
v_and_b32 v4, 63, v0
v_lshlrev_b32 v4, 4, v4
v_mov_b32 v5, 0
v_lshlrev_b32 v6, 2, v0
s_mul_i32 s40, s2, {CH*4}
s_mul_i32 s41, s2, {CH*6}
s_mul_i32 s42, s2, {CH*32}
s_mul_i32 s43, s2, {CH*12}
s_mul_i32 s44, s2, {CH}
s_waitcnt lgkmcnt(0)
""")
    a.srd(16, 10, E * 4)
    a.srd(20, 8, E * 4)
    a.srd(24, 4, E * 6)
    a.srd(28, 6, E * 32)
    a.srd(32, 12, E * 32, WS_EAS)
    a.srd(36, 12, E * 12, WS_META)
    a.srd(48, 12, NCH * 1024, WS_TAB)
    a(f"""
v_cmp_gt_u32 vcc, 512, v0
s_and_saveexec_b64 s[46:47], vcc
v_add_u32 v7, {K1_LDS_HIST}, v6
ds_write_b32 v7, v5
s_mov_b64 exec, s[46:47]
v_cmp_gt_u32 vcc, {CH//4}, v0
s_and_saveexec_b64 s[46:47], vcc
s_mov_b64 s[52:53], exec
s_cbranch_execz {name}_noload
buffer_load_dwordx4 v[8:11], v2, s[16:19], s40 offen{nt}
buffer_load_dwordx4 v[12:15], v2, s[20:23], s40 offen{nt}
buffer_load_dwordx4 v[16:19], v3, s[24:27], s41 offen{nt}
buffer_load_dwordx2 v[20:21], v3, s[24:27], s41 offen offset:16{nt}
{name}_noload:
s_mov_b64 exec, s[46:47]
s_lshl_b32 s14, s3, 10
s_add_u32 s15, s14, s42
""")
    for j in range(7):
        if j == 6:
            a(f"s_cmp_ge_u32 s3, 4\ns_cbranch_scc1 {name}_dma_done")
        a(f"""
s_mov_b32 m0, s14
s_add_u32 s14, s14, 0x4000
buffer_load_dwordx4 v4, s[28:31], s15 offen{nt} lds
s_add_u32 s15, s15, 0x4000
""")
        if j == 6:
            a("s_waitcnt vmcnt(9)")
            a(f"s_branch {name}_keys")
    a(f"""
{name}_dma_done:
s_waitcnt vmcnt(8)
{name}_keys:
s_waitcnt lgkmcnt(0)
s_barrier
s_mov_b64 exec, s[52:53]
s_cbranch_execz {name}_nohist
v_mov_b32 v5, 1
s_mov_b32 s14, {K1_LDS_HIST}
s_mov_b32 s15, {K1_LDS_HIST + 1024}
""")
    for k in range(4):
        a(f"""
v_and_b32 v{24+k}, 0xff, v{8+k}
v_lshrrev_b32 v{28+k}, {QSHIFT}, v{12+k}
v_bfe_u32 v1, v{8+k}, 5, 3
v_lshl_add_u32 v{24+k}, v{24+k}, 2, s14
v_lshl_add_u32 v{28+k}, v1, 5, v{28+k}
ds_add_rtn_u32 v{32+k}, v{24+k}, v5
v_lshl_add_u32 v{28+k}, v{28+k}, 2, s15
ds_add_rtn_u32 v{36+k}, v{28+k}, v5
""")
    a(f"""
{name}_nohist:
s_mov_b64 exec, -1
s_waitcnt lgkmcnt(0)
s_barrier
s_cmp_ge_u32 s3, 2
s_cbranch_scc1 {name}_noscan
v_add_u32 v7, {K1_LDS_HIST}, v2
ds_read_b128 v[40:43], v7
s_waitcnt lgkmcnt(0)
v_add_u32 v45, v40, v41
v_add_u32 v46, v45, v42
v_add_u32 v47, v46, v43
v_mov_b32 v44, v47
""")
    a.scan64(44)
    a(f"""
v_sub_u32 v44, v44, v47
v_add_u32 v47, v44, v46
v_add_u32 v46, v44, v45
v_add_u32 v45, v44, v40
ds_write_b128 v7, v[44:47]
s_cmp_eq_u32 s3, 0
s_cbranch_scc0 {name}_noscan
v_lshl_or_b32 v40, v40, 16, v44
v_lshl_or_b32 v41, v41, 16, v45
v_lshl_or_b32 v42, v42, 16, v46
v_lshl_or_b32 v43, v43, 16, v47
s_lshl_b32 s14, s2, 10
buffer_store_dwordx4 v[40:43], v2, s[48:51], s14 offen
{name}_noscan:
s_waitcnt lgkmcnt(0)
s_barrier
s_mov_b64 exec, s[52:53]
s_cbranch_execz {name}_noplace
""")
    for k in range(4):
        a(f"ds_read_b32 v{24+k}, v{24+k}\nds_read_b32 v{28+k}, v{28+k}")
    a(f"""
s_waitcnt vmcnt(6)
s_mov_b32 s14, 0x05040100
s_mov_b32 s15, 0x05040302
v_mov_b32 v48, v16
v_perm_b32 v49, v12, v17, s14
v_alignbit_b32 v50, v18, v17, 16
v_perm_b32 v51, v13, v18, s15
v_mov_b32 v52, v19
v_perm_b32 v53, v14, v20, s14
v_alignbit_b32 v54, v21, v20, 16
v_perm_b32 v55, v15, v21, s15
s_mov_b32 s14, {K1_LDS_META}
s_mov_b32 s15, {K1_LDS_INV}
v_mov_b32 v22, 12
s_waitcnt lgkmcnt(0)
""")
    for k in range(4):
        a(f"""
v_add_u32 v{24+k}, v{24+k}, v{32+k}
v_add_u32 v{28+k}, v{28+k}, v{36+k}
v_mad_u32_u24 v{24+k}, v{24+k}, v22, s14
v_lshrrev_b32 v1, 8, v{8+k}
v_add_u32 v23, s44, v{28+k}
v_lshl_or_b32 v23, v1, 24, v23
ds_write2_b32 v{24+k}, v{48+2*k}, v{49+2*k} offset0:0 offset1:1
ds_write_b32 v{24+k}, v23 offset:8
v_lshl_add_u32 v{28+k}, v{28+k}, 1, s15
v_add_u32 v1, {k}, v6
ds_write_b16 v{28+k}, v1
""")
    a(f"""
{name}_noplace:
s_mov_b64 exec, -1
s_waitcnt lgkmcnt(0)
s_barrier
v_add_u32 v7, {K1_LDS_META}, v2
ds_read_b128 v[8:11], v7
ds_read_b128 v[12:15], v7 offset:16384
ds_read_b128 v[16:19], v7 offset:32768
v_and_b32 v1, 0x3fe, v0
v_add_u32 v1, {K1_LDS_INV}, v1
""")
    for j in range(7):
        a(f"ds_read_u16 v{24+j}, v1 offset:{1024*j}")
    a(f"""
s_add_u32 s14, s43, 16384
s_add_u32 s15, s43, 32768
v_and_b32 v1, 1, v0
v_lshlrev_b32 v1, 4, v1
v_cmp_gt_u32 vcc, {CH*12//16 - 2048}, v0
s_waitcnt lgkmcnt(7)
buffer_store_dwordx4 v[8:11], v2, s[36:39], s43 offen{stm}
buffer_store_dwordx4 v[12:15], v2, s[36:39], s14 offen{stm}
s_and_saveexec_b64 s[46:47], vcc
s_cbranch_execz {name}_nom3
buffer_store_dwordx4 v[16:19], v2, s[36:39], s15 offen{stm}
{name}_nom3:
s_mov_b64 exec, s[46:47]
s_waitcnt lgkmcnt(0)
""")
    for j in range(7):
        a(f"v_lshl_add_u32 v{24+j}, v{24+j}, 5, v1")
    a("s_waitcnt vmcnt(2)\ns_barrier")
    for j in range(6):
        a(f"ds_read_b128 v[{32+4*j}:{35+4*j}], v{24+j}")
    a(f"""
s_cmp_ge_u32 s3, 4
s_cbranch_scc1 {name}_no7
ds_read_b128 v[56:59], v30
s_add_u32 s14, s42, {6*16384}
s_waitcnt lgkmcnt(0)
buffer_store_dwordx4 v[56:59], v2, s[32:35], s14 offen{st}
{name}_no7:
""")
    for j in range(6):
        a(f"""
s_waitcnt lgkmcnt({5-j})
buffer_store_dwordx4 v[{32+4*j}:{35+4*j}], v2, s[32:35], s42 offen{st}
s_add_u32 s42, s42, 16384
""")
    a(f"""
s_endpgm
{name}_weights:
s_load_dwordx4 s[56:59], s[0:1], {KA_WRAD}
s_load_dwordx2 s[60:61], s[0:1], {KA_WSI1}
s_sub_u32 s3, s2, {NCH}
s_lshl_b32 s3, s3, 4
v_lshrrev_b32 v1, 6, v0
v_and_b32 v2, 31, v0
v_readfirstlane_b32 s14, v1
v_bfe_u32 v3, v0, 5, 1
s_add_u32 s3, s3, s14
s_waitcnt lgkmcnt(0)
""")
    a.srd(16, 56, 16 * 640)
    a.srd(20, 58, 128 * 128)
    a.srd(24, 60, 192 * 128)
    a.srd(28, 12, 51200, WS_WR)
    a(f"""
s_cmp_ge_u32 s3, 50
s_cbranch_scc1 {name}_end
v_and_b32 v5, 63, v0
v_lshlrev_b32 v5, 4, v5
s_lshl_b32 s40, s3, 10
s_cmp_ge_u32 s3, 10
s_cbranch_scc1 {name}_wsi
v_mul_u32_u24 v4, {8*640}, v3
v_lshl_add_u32 v4, v2, 1, v4
s_lshl_b32 s15, s3, 6
""")
    for k in range(8):
        a(f"buffer_load_ushort v{8+k}, v4, s[16:19], s15 offen\ns_add_u32 s15, s15, 640")
    a(f"""
s_branch {name}_wpack
{name}_wsi:
s_sub_u32 s14, s3, 10
v_lshlrev_b32 v4, 10, v3
v_lshl_add_u32 v4, v2, 2, v4
s_and_b32 s15, s14, 1
s_lshl_b32 s15, s15, 1
s_lshr_b32 s14, s14, 1
s_lshl_b32 s41, s14, 11
s_add_u32 s15, s15, s41
s_cmp_ge_u32 s14, 8
s_cbranch_scc1 {name}_wsi1
""")
    for k in range(8):
        a(f"buffer_load_ushort v{8+k}, v4, s[20:23], s15 offen offset:{128*k}")
    a(f"""
s_branch {name}_wpack
{name}_wsi1:
s_sub_u32 s15, s15, {128*128}
""")
    for k in range(8):
        a(f"buffer_load_ushort v{8+k}, v4, s[24:27], s15 offen offset:{128*k}")
    a(f"""
{name}_wpack:
s_waitcnt vmcnt(0)
v_lshl_or_b32 v16, v9, 16, v8
v_lshl_or_b32 v17, v11, 16, v10
v_lshl_or_b32 v18, v13, 16, v12
v_lshl_or_b32 v19, v15, 16, v14
buffer_store_dwordx4 v[16:19], v5, s[28:31], s40 offen
{name}_end:
s_endpgm
""")
    return a.text()
```

```python
from common import *

NSLOT = 3504
CAPW = NSLOT - 120
L_WR = 0
L_MT = 10240
L_FLAG = L_MT + 128
L_INV = L_MT + 256
L_YS = L_INV + 256
L_PT = L_YS + NSLOT * 8
L_ID = L_PT + NSLOT * 4
L_RING = 56320
RING = 13440
LINE = 4160
RB_EA = 12416
RA_EA = 6144
RA_WS = 7680
TILE = 3584
K2_LDS = L_RING + 8 * RING
assert L_ID + NSLOT <= L_RING and K2_LDS == 163840
L_HIST = L_RING
L_DEG = L_HIST + 1024
L_BASE = L_DEG + 1024
L_MAP = L_BASE + 1024
L_CNT = L_MAP + 1024
L_WTOT = L_CNT + 256
L_IDXL = L_WTOT + 64
OOB = 0x40000
XB, EB = N * 512, E * 32

S_WAVE, S_SB, S_RING, S_WBASE, S_TOTAL, S_WCNT, S_START, S_NB, S_REM = 3, 32, 33, 34, 35, 36, 37, 38, 39
SRD_X, SRD_E, SRD_T, SRD_O, SRD_W, SRD_M, SRD_S = 4, 8, 12, 16, 20, 24, 28
S_IDX = (40, 44)
S_T0, S_T1, S_T2, S_T3 = 48, 49, 50, 51
S_MASK = 52
S_VAL = 80
S_VON, S_VOFF, S_PADDR, S_PINC, S_PSGN, S_PVAL, S_PF, S_PFO = 68, 69, 70, 71, 66, 67, 78, 79

def srd(d): return f"s[{d}:{d+3}]"
def vr(b, n): return f"v[{b}:{b+n-1}]"

class DS:
    def __init__(self, a, init=()):
        self.a, self.q = a, list(init)
    def op(self, tag, text):
        self.a(text); self.q.append(tag)
    def need(self, *tags, vm=None):
        idx = [i for i, t in enumerate(self.q) if t in tags]
        if not idx:
            if vm is not None: self.a(f"s_waitcnt vmcnt({vm})")
            return False
        n = len(self.q) - 1 - max(idx)
        self.a(f"s_waitcnt {'' if vm is None else 'vmcnt(%d) ' % vm}lgkmcnt({min(n, 15)})")
        self.q = self.q[len(self.q) - min(n, 15):] if n else []
        return True
    def drain(self):
        if self.q: self.a("s_waitcnt lgkmcnt(0)")
        self.q = []

def rho(v_dst, v_e, tmp):
    return f"""
v_bfe_u32 v{v_dst}, v{v_e}, 1, 2
v_and_b32 v{tmp}, 1, v{v_e}
v_lshl_or_b32 v{v_dst}, v{tmp}, 2, v{v_dst}
v_and_or_b32 v{v_dst}, v{v_e}, 8, v{v_dst}
"""

def prologue(a, name, opt):
    a(f"""
{name}:
s_cmp_ge_u32 s2, 256
s_cbranch_scc1 {name}_end
s_load_dwordx2 s[72:73], s[0:1], {KA_X}
s_load_dwordx2 s[74:75], s[0:1], {KA_OUT}
s_load_dwordx2 s[76:77], s[0:1], {KA_WS}
v_lshrrev_b32 v1, 6, v0
s_and_b32 s{S_SB}, s2, 7
v_readfirstlane_b32 s{S_WAVE}, v1
s_lshl_b32 s{S_SB}, s{S_SB}, 5
s_lshr_b32 s{S_T0}, s2, 3
s_add_u32 s{S_SB}, s{S_SB}, s{S_T0}
s_mul_i32 s{S_RING}, s{S_WAVE}, {RING}
s_add_u32 s{S_RING}, s{S_RING}, {L_RING}
s_mov_b32 s{S_VON}, {0x80000000 if opt.get('nomem') else 0}
s_mov_b32 s{S_VOFF}, 0x80000000
s_mov_b32 s{S_WBASE}, 0
s_waitcnt lgkmcnt(0)
""")
    stamp(a, opt, 0)
    a.srd(SRD_T, 76, NCH * 1024, WS_TAB)
    a.srd(SRD_X, 72, XB)
    a.srd(SRD_E, 76, EB, WS_EAS)
    a.srd(SRD_O, 74, XB)
    a.srd(SRD_W, 76, 51200, WS_WR)
    a.srd(SRD_M, 76, E * 12, WS_META)
    a.srd(SRD_S, 76, 256 * 8 * 128 * 256, WS_SCR)
    a(f"""
{name}_window:
v_mbcnt_lo_u32_b32 v16, -1, 0
v_mbcnt_hi_u32_b32 v16, -1, v16
v_lshlrev_b32 v0, 4, v16
s_lshl_b32 s{S_T0}, s{S_WAVE}, 6
v_add_u32 v17, s{S_T0}, v16
v_lshrrev_b32 v18, 1, v17
v_lshlrev_b32 v19, 10, v18
s_lshl_b32 s{S_T1}, s{S_SB}, 2
buffer_load_dword v20, v19, {srd(SRD_T)}, s{S_T1} offen
s_lshl_b32 s{S_T1}, s{S_WAVE}, 10
s_mov_b32 m0, s{S_T1}
s_nop 0
buffer_load_dwordx4 v0, {srd(SRD_W)}, s{S_T1} offen lds
s_and_b32 s{S_T1}, s{S_T1}, 1024
s_add_u32 s{S_T1}, s{S_T1}, 8192
s_mov_b32 m0, s{S_T1}
v_mov_b32 v21, 0
buffer_load_dwordx4 v0, {srd(SRD_W)}, s{S_T1} offen lds
""")
    mt = [0x05040c0c, 0x03020c0c, 0x80000000, 0,
              0x0c0c0504, 0x01000c0c, 0, 0x80000000,
              0x01000302, 0x0c0c0c0c, 0x8000, 0,
              0x03020100, 0x05040c0c, 0, 0]
    a(f"""
v_lshlrev_b32 v22, 2, v17
ds_write_b32 v22, v21 offset:{L_HIST}
v_lshlrev_b32 v22, 2, v16
v_mov_b32 v23, -1
v_mov_b32 v63, v17
s_cmp_lg_u32 s{S_WAVE}, 7
s_cbranch_scc1 {name}_nomt
ds_write_b32 v22, v21 offset:{L_CNT}
ds_write_b32 v22, v23 offset:{L_INV}
""")
    for i, c in enumerate(mt):
        if c: a(f"s_mov_b32 s{S_T1}, {c:#x}\nv_writelane_b32 v21, s{S_T1}, {i}")
    a(f"""
ds_write_b32 v22, v21 offset:{L_MT}
{name}_nomt:
""")
    for r in range(81, 150): a(f"v_mov_b32 v{r}, 0")
    a("s_waitcnt vmcnt(2)")
    stamp(a, opt, 1, 1)
    a(f"""
v_lshrrev_b32 v21, 16, v20
v_and_b32 v20, 0xffff, v20
v_and_b32 v23, 1, v16
v_cmp_eq_u32 vcc, 0, v23
s_nop 1
v_cndmask_b32 v22, 0, v21, vcc
""")
    a.scan64(22)
    a(f"""
s_nop 0
v_readlane_b32 s{S_T0}, v22, 63
s_lshl_b32 s{S_T1}, s{S_WAVE}, 2
s_add_u32 s{S_T1}, s{S_T1}, {L_WTOT}
v_mov_b32 v24, s{S_T1}
v_mov_b32 v25, s{S_T0}
ds_write_b32 v24, v25
v_and_b32 v24, 7, v16
v_lshlrev_b32 v24, 2, v24
v_add_u32 v24, {L_WTOT}, v24
v_sub_u32 v22, v22, v21
v_mul_u32_u24 v18, {CH}, v18
v_add_u32 v20, v20, v18
s_waitcnt lgkmcnt(0)
s_barrier
ds_read_b32 v25, v24
s_waitcnt lgkmcnt(0)
""")
    for sh in (1, 2, 4):
        a(f"s_nop 1\nv_add_u32_dpp v25, v25, v25 row_shr:{sh} row_mask:0xf bank_mask:0xf bound_ctrl:0")
    a(f"""
s_nop 0
v_readlane_b32 s{S_TOTAL}, v25, 7
v_readlane_b32 s{S_T1}, v25, s{S_WAVE}
s_sub_u32 s{S_T1}, s{S_T1}, s{S_T0}
s_sub_u32 s{S_T1}, s{S_T1}, s{S_WBASE}
s_sub_u32 s{S_WCNT}, s{S_TOTAL}, s{S_WBASE}
s_min_u32 s{S_WCNT}, s{S_WCNT}, {CAPW}
v_add_u32 v22, s{S_T1}, v22
v_sub_u32 v24, 0, v22
v_max_i32 v24, 0, v24
v_sub_u32 v25, {CAPW}, v22
v_min_i32 v25, v25, v21
v_add_u32 v24, v24, v23
v_add_u32 v20, v20, v24
v_mul_u32_u24 v20, 12, v20
v_add_u32 v22, v22, v24
v_lshlrev_b32 v22, 2, v22
v_add_u32 v22, {L_IDXL}, v22
v_cmp_lt_i32 vcc, v24, v25
s_and_b64 exec, exec, vcc
s_cbranch_execz {name}_expanded
{name}_expand:
ds_write_b32 v22, v20
v_add_u32 v24, 2, v24
v_add_u32 v22, 8, v22
v_add_u32 v20, 24, v20
v_cmp_lt_i32 vcc, v24, v25
s_and_b64 exec, exec, vcc
s_cbranch_execnz {name}_expand
{name}_expanded:
s_mov_b64 exec, -1
v_lshlrev_b32 v22, 2, v17
v_add_u32 v22, {L_IDXL}, v22
s_waitcnt lgkmcnt(0)
s_barrier
""")
    stamp(a, opt, 2, 1)
    REC, RK, BA = 24, 56, 64
    for j in range(7): a(f"ds_read_b32 v{RK+j}, v22 offset:{2048*j}")
    for j in range(7):
        a(f"v_add_u32 v23, {512*j}, v17\nv_cmp_gt_u32 s[{S_MASK+2*j}:{S_MASK+2*j+1}], s{S_WCNT}, v23")
    a("v_bfrev_b32 v23, 1")
    for j in range(7):
        a(f"""
s_waitcnt lgkmcnt({6-j})
v_cndmask_b32 v{RK+j}, v23, v{RK+j}, s[{S_MASK+2*j}:{S_MASK+2*j+1}]
buffer_load_dwordx3 {vr(REC+4*j,3)}, v{RK+j}, {srd(SRD_M)}, 0 offen
""")
    lane_consts_b(a)
    npf = opt.get('prefetch', 1)
    if npf:
        a(f"""
s_lshr_b32 s{S_T1}, s2, 3
s_mul_i32 s{S_T1}, s{S_T1}, {npf * 128 * 512}
v_lshrrev_b32 v8, 2, v63
v_and_b32 v9, 3, v63
v_max_u32 v9, 1, v9
v_lshlrev_b32 v9, 7, v9
v_lshl_add_u32 v8, v8, 9, v9
""")
    for r in range(150, 256): a(f"v_mov_b32 v{r}, 0")
    def mask(j): return f"s_mov_b64 exec, s[{S_MASK+2*j}:{S_MASK+2*j+1}]"
    a("v_mov_b32 v23, 1")
    for j in range(7):
        a(f"""
s_waitcnt vmcnt({6-j})
v_lshrrev_b32 v{BA+j}, 24, v{REC+4*j+2}
{mask(j)}
v_lshlrev_b32 v{BA+j}, 2, v{BA+j}
ds_add_u32 v{BA+j}, v23 offset:{L_DEG}
""")
    a(f"""
s_mov_b64 exec, -1
v_lshlrev_b32 v22, 2, v63
v_cmp_gt_u32 vcc, 200, v63
s_waitcnt lgkmcnt(0)
s_barrier
""")
    if npf:
        for j in range(npf):
            a(f"buffer_load_dword v9, v8, {srd(SRD_X)}, s{S_T1} offen\ns_add_u32 s{S_T1}, s{S_T1}, {128*512}")
    a(f"""
s_and_b64 exec, exec, vcc
ds_read_b32 v21, v22 offset:{L_DEG}
s_waitcnt lgkmcnt(0)
v_min_u32 v21, 63, v21
v_sub_u32 v21, 63, v21
v_lshlrev_b32 v21, 2, v21
ds_add_rtn_u32 v20, v21, v23 offset:{L_CNT}
s_mov_b64 exec, -1
v_lshlrev_b32 v19, 2, v16
s_waitcnt lgkmcnt(0)
s_barrier
s_cmp_ge_u32 s{S_WAVE}, 4
s_cbranch_scc1 {name}_nomap
ds_read_b32 v18, v19 offset:{L_CNT}
s_waitcnt lgkmcnt(0)
v_mov_b32 v19, v18
""")
    a.scan64(19)
    a(f"""
v_sub_u32 v19, v19, v18
ds_bpermute_b32 v19, v21, v19
s_cmp_lg_u32 s{S_TOTAL}, s{S_WCNT}
s_cselect_b64 s[{S_T2}:{S_T3}], -1, 0
s_and_b64 exec, exec, vcc
s_waitcnt lgkmcnt(0)
v_add_u32 v19, v19, v20
v_cndmask_b32 v19, v19, v63, s[{S_T2}:{S_T3}]
v_lshrrev_b32 v18, 3, v19
v_bfe_i32 v20, v19, 3, 1
v_xor_b32 v19, v19, v20
v_and_b32 v19, 7, v19
v_lshl_add_u32 v20, v19, 5, v18
ds_write_b8 v20, v63 offset:{L_INV}
v_mul_u32_u24 v18, {7 << 16}, v18
v_lshl_or_b32 v18, v19, 7, v18
ds_write_b32 v22, v18 offset:{L_MAP}
s_mov_b64 exec, -1
{name}_nomap:
s_waitcnt lgkmcnt(0)
s_barrier
""")
    for j in range(7): a(f"ds_read_b32 v{REC+4*j+3}, v{BA+j} offset:{L_MAP}")
    for j in range(7): a(f"v_lshrrev_b32 v{BA+j}, 27, v{REC+4*j+1}\nv_mul_u32_u24 v{REC+4*j+2}, 32, v{REC+4*j+2}")
    for j in range(7):
        a(f"""
s_waitcnt lgkmcnt(6)
v_and_b32 v22, 0xffff, v{REC+4*j+3}
{mask(j)}
v_lshl_add_u32 v{BA+j}, v{BA+j}, 2, v22
ds_add_rtn_u32 v{RK+j}, v{BA+j}, v23 offset:{L_HIST}
""".replace("lgkmcnt(6)", "lgkmcnt(0)") if j == 0 else f"""
v_and_b32 v22, 0xffff, v{REC+4*j+3}
{mask(j)}
v_lshl_add_u32 v{BA+j}, v{BA+j}, 2, v22
ds_add_rtn_u32 v{RK+j}, v{BA+j}, v23 offset:{L_HIST}
""")
    a("s_mov_b64 exec, -1")
    stamp(a, opt, 3, 1)
    a(f"""
s_waitcnt lgkmcnt(0)
s_barrier
ds_read_b128 v[72:75], v0 offset:{L_HIST}
s_waitcnt lgkmcnt(0)
v_add_u32 v77, v72, v73
v_add_u32 v78, v77, v74
v_add_u32 v79, v78, v75
v_mov_b32 v71, v79
""")
    for sh in (1, 2, 4):
        a(f"s_nop 1\nv_add_u32_dpp v71, v71, v71 row_shr:{sh} row_mask:0xf bank_mask:0xf bound_ctrl:0")
    a(f"""
v_and_b32 v23, 7, v16
v_cmp_eq_u32 vcc, 7, v23
v_sub_u32 v76, 0, v71
v_and_b32 v76, 15, v76
v_cndmask_b32 v76, 0, v76, vcc
v_add_u32 v79, v79, v76
v_mov_b32 v76, v79
""")
    a.scan64(76)
    a(f"""
v_sub_u32 v76, v76, v79
v_add_u32 v79, v76, v78
v_add_u32 v78, v76, v77
v_add_u32 v77, v76, v72
ds_write_b128 v0, v[76:79] offset:{L_BASE}
s_lshl_b32 s{S_T0}, s{S_WAVE}, 3
s_add_u32 s{S_T1}, s{S_T0}, 7
v_readlane_b32 s{S_START}, v76, s{S_T0}
v_readlane_b32 s{S_T2}, v71, s{S_T1}
""")
    for j in range(7): a(f"ds_read_b32 v{BA+j}, v{BA+j} offset:{L_BASE}")
    a(f"""
s_add_u32 s{S_NB}, s{S_T2}, 15
s_lshr_b32 s{S_NB}, s{S_NB}, 4
s_lshl_b32 s{S_T3}, s{S_NB}, 4
v_add_u32 v23, s{S_T2}, v16
v_cmp_gt_u32 vcc, s{S_T3}, v23
v_add_u32 v23, s{S_START}, v23
v_mov_b32 v18, 0
v_mov_b32 v19, 0xffff0000
v_mov_b32 v20, 0x1fffffe0
v_lshlrev_b32 v21, 3, v23
v_lshlrev_b32 v22, 2, v23
s_and_b64 exec, exec, vcc
ds_write_b64 v21, v[18:19] offset:{L_YS}
ds_write_b32 v22, v20 offset:{L_PT}
ds_write_b8 v23, v18 offset:{L_ID}
s_mov_b64 exec, -1
s_waitcnt lgkmcnt(0)
""")
    for j in range(7):
        a(f"""
{mask(j)}
v_add_u32 v23, v{BA+j}, v{RK+j}
v_add_lshl_u32 v21, v{BA+j}, v{RK+j}, 3
v_add_lshl_u32 v22, v{BA+j}, v{RK+j}, 2
ds_write_b8_d16_hi v23, v{REC+4*j+3} offset:{L_ID}
ds_write_b64 v21, {vr(REC+4*j,2)} offset:{L_YS}
ds_write_b32 v22, v{REC+4*j+2} offset:{L_PT}
""")
    a("s_mov_b64 exec, -1")

def list_lanes(a):
    a("v_lshrrev_b32 v17, 3, v16")
    a(rho(2, 17, 18))
    a("v_lshrrev_b32 v17, 2, v16")
    a(rho(3, 17, 18))
    a("v_bfe_u32 v17, v16, 1, 4")
    a(rho(4, 17, 18))
    a("v_and_b32 v14, 0x70, v0")

def list_addrs(a):
    a(f"""
v_add_lshl_u32 v2, v2, s{S_START}, 3
v_add_lshl_u32 v3, v3, s{S_START}, 3
v_add_lshl_u32 v4, v4, s{S_START}, 2
v_and_b32 v15, 3, v16
v_lshl_add_u32 v15, v15, 2, s{S_START}
""")

def ea_addrs(a, v_a0, v_a1, ring_off):
    a(f"""
v_bfe_u32 v17, v16, 3, 2
v_and_b32 v18, 3, v16
v_lshl_or_b32 v17, v17, 2, v18
v_lshlrev_b32 v17, 5, v17
v_lshrrev_b32 v18, 5, v16
v_lshl_or_b32 v17, v18, 4, v17
v_bfe_u32 v18, v16, 2, 1
v_mul_u32_u24 v18, {OOB + 16}, v18
v_xor_b32 v17, v18, v17
s_add_u32 s{S_T0}, s{S_RING}, {ring_off}
v_add_u32 v{v_a0}, s{S_T0}, v17
v_xor_b32 v17, {OOB + 16}, v17
v_add_u32 v{v_a1}, s{S_T0}, v17
""")

def valid(a, k):
    a(f"""
s_cmp_ge_i32 s{S_REM}, {k}
s_cselect_b32 s{S_VAL}, s{S_VON}, s{S_VOFF}
""")

def dma_e(a, v, off, restore=True):
    a(f"""
s_add_u32 m0, s{S_RING}, {off}
s_mov_b32 exec_hi, 0
buffer_load_dwordx4 v{v}, {srd(SRD_E)}, s{S_VAL} offen lds
""")
    if restore: a("s_mov_b32 exec_hi, -1")

def align(a, k):
    if k is None: return
    a(".p2alignl 5, 0xbf800000")
    for _ in range(k): a("s_nop 0")

def prio_init(a):
    a(f"""
s_max_u32 s{S_T0}, s{S_NB}, 1
v_cvt_f32_u32 v17, s{S_T0}
v_rcp_f32 v17, v17
s_and_b32 s{S_PADDR}, s{S_WAVE}, 3
s_lshl_b32 s{S_PADDR}, s{S_PADDR}, 2
v_mul_f32 v17, 0x47800000, v17
s_add_u32 s{S_PADDR}, s{S_PADDR}, {L_FLAG + 16}
v_cvt_u32_f32 v17, v17
s_cmp_ge_u32 s{S_WAVE}, 4
s_cselect_b32 s{S_PSGN}, -1, 1
v_readfirstlane_b32 s{S_PINC}, v17
s_mul_i32 s{S_PINC}, s{S_PINC}, s{S_PSGN}
s_mov_b32 s{S_PVAL}, 0
""")
def prio_addr(va, vd): return [f"v_lshl_add_u32 v{va}, v0, 14, s{S_PADDR}", f"v_mov_b32 v{vd}, s{S_PINC}"]
def prio_add(va, vd): return ("pr", f"ds_add_rtn_u32 v{vd}, v{va}, v{vd}")
def prio_read(vd): return [f"v_readfirstlane_b32 s{S_PVAL}, v{vd}", f"s_mul_i32 s{S_PVAL}, s{S_PVAL}, s{S_PSGN}"]
def prio_set(base=0):
    return [f"s_cmp_ge_i32 s{S_PVAL}, 0", f"s_setprio {base}", "s_cbranch_scc1 1", f"s_setprio {base+1}"]

M3, M1, XR, G, T1, T2, T3, ACC = 6, 8, (10, 12), (16, 24), 32, 48, 64, 81

def dma_x(a, v, slot, fill):
    for b in range(3):
        a(f"s_add_u32 m0, s{S_RING}, {b*LINE + slot*1024 - 128*(b+1)}")
        a(fill[b] if b < len(fill) else "s_nop 0")
        a(f"buffer_load_dwordx4 v{v}, {srd(SRD_X)}, s{S_VAL} offen offset:{128*(b+1)} lds")

GG, XX, MT, EC = 16, (20, 24, 28), 10, 7

def lane_consts_b(a):
    list_lanes(a)
    ea_addrs(a, 5, 80, RB_EA)
    a(f"""
v_lshrrev_b32 v18, 4, v16
v_lshlrev_b32 v17, 5, v18
v_and_b32 v18, 3, v16
v_lshl_add_u32 v17, v18, 3, v17
v_add_u32 v17, s{S_RING}, v17
v_bfe_u32 v18, v16, 2, 2
v_min_u32 v19, 2, v18
v_mul_u32_u24 v19, {LINE}, v19
v_cmp_eq_u32 vcc, 2, v18
v_mov_b32 v20, {OOB + 192}
v_bfe_u32 v21, v16, 3, 1
v_cndmask_b32 v19, v19, v20, vcc
v_add_u32 v1, v17, v19
v_and_b32 v18, 1, v18
v_cmp_eq_u32 vcc, 0, v18
v_mul_u32_u24 v21, {LINE}, v21
s_nop 0
v_cndmask_b32 v21, v21, v20, vcc
v_add_u32 v6, v17, v21
v_and_b32 v17, 48, v0
ds_read_b128 {vr(MT,4)}, v17 offset:{L_MT}
""")

def pass_b(a, name, opt):
    si = S_IDX[0]
    prio = opt.get('prio', 2)
    def xread(ds, p, e):
        o = ((2*p + (e >> 3)) & 3)*1024 + (e & 7)*128
        ds.op(f"x{e}", f"ds_read_b64_tr_b16 {vr(XX[e%3],2)}, v1 offset:{o}")
        ds.op(f"x{e}", f"ds_read_b64_tr_b16 {vr(XX[e%3]+2,2)}, v6 offset:{o}")
    def wr(tag, dst, path, h): return (f"{tag}{h}", f"ds_read_b128 {vr(dst,4)}, v0 offset:{L_WR + (path*2+h)*1024}")
    W1 = [wr("W1", T3+4*h, 3, h) for h in range(2)]
    W2 = [wr("W2", T3+8+4*h, 4, h) for h in range(2)]
    W3 = [wr("W3", (XX[0], GG)[h], 1, h) for h in range(2)]
    AR = (XX[1], XX[2])
    def ar(p, h): return (f"A{h}", f"ds_read_b128 {vr(AR[h],4)}, v{(5, 80)[h]} offset:{p*512}")
    def tail_reads(off):
        return [("ys", f"ds_read_b64 {vr(T2,2)}, v3 offset:{L_YS + 128*off}"),
                ("sr", f"ds_read_u16 v{T2+2}, v2 offset:{L_YS + 6 + 128*(off+1) + 64}"),
                ("pt", f"ds_read_b32 v{T2+3}, v4 offset:{L_PT + 64*(off+2)}"),
                ("id", f"ds_read_b32 v{T2+4}, v15 offset:{L_ID + 16*off}")]
    if opt.get('solo'): a(f"s_cmp_ge_u32 s{S_WAVE}, 4\ns_cselect_b32 s{S_NB}, 0, s{S_NB}")
    if prio: prio_init(a)
    list_addrs(a)
    if opt.get('ahead', 0):
        a(f"""
s_lshl_b32 s{S_T0}, s{S_WAVE}, 8
s_add_u32 s{S_T0}, s{S_T0}, s2
s_lshl_b32 s{S_PFO}, s{S_T0}, 14
s_sub_u32 s{S_T0}, {1563 + opt.get('lead', 190)}, s{S_T0}
s_mul_i32 s{S_T0}, s{S_T0}, s{S_NB}
s_mul_i32 s{S_T0}, s{S_T0}, 42
s_ashr_i32 s{S_PF}, s{S_T0}, 16
""")
    a(f"""
s_sub_u32 s{S_REM}, s{S_NB}, 1
s_waitcnt lgkmcnt(0)
s_barrier
""")
    stamp(a, opt, 1)
    stamp(a, opt, 4, 1)
    a(f"""
s_cmp_eq_u32 s{S_NB}, 0
s_cbranch_scc1 {name}_b_done
""")
    ds = DS(a)
    for t in range(2): ds.op(f"pt{t}", f"ds_read_b32 v{T1+8+t}, v4 offset:{L_PT + 64*t}")
    for h in range(3): ds.op(f"sr{h}", f"ds_read_u16 v{T1+10+h}, v2 offset:{L_YS + 6 + 64*h}")
    for op in tail_reads(0) + W1: ds.op(*op)
    ds.need("sr2")
    for t in range(2): a(f"v_and_or_b32 v{T1+8+t}, v0, 16, v{T1+8+t}")
    for h in range(3): a(f"v_lshl_or_b32 v{T1+10+h}, v{T1+10+h}, 9, v14")
    valid(a, 0)
    dma_e(a, T1+8, RB_EA)
    dma_x(a, T1+10, 0, [])
    dma_x(a, T1+11, 1, [])
    valid(a, 1)
    dma_e(a, T1+9, RB_EA + 512)
    dma_x(a, T1+12, 2, [])
    ds.drain()
    a("s_waitcnt vmcnt(10)")
    stamp(a, opt, 5, 1)
    for op in (ar(0, 0), W2[0], ar(0, 1)): ds.op(*op)
    entry = list(ds.q)
    align(a, opt.get('alb'))
    a(f"{name}_b_loop:")
    for p in range(2):
        ds = DS(a, entry)
        def big(tag, tile, w, h):
            ds.need(f"A{h}", f"{tag}{h}")
            a(f"v_mfma_f32_32x32x16_bf16 {vr(tile,16)}, {vr(AR[h],4)}, {vr(w,4)}, {vr(tile,16) if h else 0}")
        def m0x(b, slot): return f"s_add_u32 m0, s{S_RING}, {b*LINE + slot*1024 - 128*(b+1)}"
        def ldx(v, b): return f"buffer_load_dwordx4 v{v}, {srd(SRD_X)}, s{S_VAL} offen offset:{128*(b+1)} lds"
        if p == 0 and opt.get('ahead', 0):
            a(f"s_cmp_le_i32 s{S_REM}, s{S_PF}\ns_cbranch_scc1 {name}_b_ahead\n{name}_b_back:")
        if opt.get('rprio'): a("s_setprio 0")
        big("W1", T1, T3, 0)
        ds.op(*W2[1]); ds.op(*W3[0]); ds.op(*W3[1])
        a(f"""
v_perm_b32 v{M1}, v{T2+1}, v{T2}, v{MT}
v_perm_b32 v{M1+1}, v{T2+1}, v{T2}, v{MT+1}
v_xor_b32 v{M1}, v{M1}, v{MT+2}
v_xor_b32 v{M1+1}, v{M1+1}, v{MT+3}
""")
        big("W1", T1, T3+4, 1)
        a(f"v_lshl_or_b32 v{T3}, v{T2+2}, 9, v14\nv_and_or_b32 v{T3+1}, v0, 16, v{T2+3}")
        for i in range(4): a(f"v_readlane_b32 s{si+i}, v{T2+4}, {i}")
        sl = (2*p + 3) & 3
        a(m0x(0, sl))
        big("W2", T2, T3+8, 0)
        a(f"{ldx(T3, 0)}\n{m0x(1, sl)}")
        ds.drain()
        a(f"{ldx(T3, 1)}\n{m0x(2, sl)}")
        big("W2", T2, T3+12, 1)
        a(ldx(T3, 2))
        valid(a, 2)
        dma_e(a, T3+1, RB_EA + 512*p)
        big("W3", T3, XX[0], 0)
        a("s_waitcnt vmcnt(11)")
        xread(ds, p, 0); xread(ds, p, 1)
        big("W3", T3, GG, 1)
        tr_ = tail_reads(p+1)
        pre = {5: [f"v_lshl_or_b32 v{T1+1}, v{T1+1}, 9, v14"]}
        if p == 1: pre[13] = ["v_add_u32 v2, 256, v2", "v_add_u32 v3, 256, v3", "v_add_u32 v4, 128, v4", "v_add_u32 v15, 32, v15"]
        aux = {2: [("sm", f"ds_read_u16 v{T1+1}, v2 offset:{L_YS + 6 + 128*(p+2)}")],
               4: tr_[:2], 8: tr_[2:3], 10: tr_[3:], 12: W1}
        if prio == 1 or (prio == 2 and p == 0):
            pre[1] = prio_addr(T1, T3); aux[1] = [prio_add(T1, T3)]
            pre[4] = prio_read(T3) + ([] if opt.get('rprio') else prio_set())
        if opt.get('rprio'):
            for l in prio_set(1): a(l)
        for e in range(16):
            x = XX[e % 3]
            if e in (8, 9, 10): a(m0x(e-8, 2*p))
            ds.need(f"x{e}", vm=7 if e == 6 else None)
            if e in (8, 9, 10): a(f"{ldx(T1+1, e-8)}\ns_set_gpr_idx_mode 0")
            a(f"v_mfma_f32_4x4x4_16b_bf16 {vr(GG,4)}, {vr(M1,2)}, {vr(x,2)}, 0 cbsz:4 abid:{e}")
            for l in pre.get(e, []): a(l)
            a(f"s_set_gpr_idx_on s{si + 2*(e >> 3) + (e & 1)}, 0x8")
            if (e & 1) and (e & 7) != 7:
                r = si + 2*(e >> 3)
                a(f"s_lshr_b64 s[{r}:{r+1}], s[{r}:{r+1}], 8")
            for op in aux.get(e, []): ds.op(*op)
            if e < 14: xread(ds, p, e+2)
            elif e == 14: ds.op(*ar(p ^ 1, 0)); ds.op(*W2[0])
            else: ds.op(*ar(p ^ 1, 1))
            if e == 0: a("s_nop 0")
            for i, src in enumerate((x+2, x+3, x+1)): a(f"v_fmac_f32 v{ACC+4+i}, v{src}, v{T1+e}")
            for i in range(4): a(f"v_fmac_f32 v{ACC+i}, v{GG+i}, v{(T2, T2, T2, T3)[i]+e}")
            if e == 15: a("s_set_gpr_idx_off")
            elif e + 1 not in (8, 9, 10): a("s_set_gpr_idx_mode 0")
        a(f"s_sub_u32 s{S_REM}, s{S_REM}, 1\ns_cbranch_scc1 {name}_b_done")
        assert ds.q == entry, (ds.q, entry)
    a(f"s_branch {name}_b_loop")
    if opt.get('ahead', 0):
        a(f"""
{name}_b_ahead:
v_lshlrev_b32 v{T1}, 3, v0
s_mov_b32 m0, {L_MT}
s_mov_b32 s{S_PF}, -100
s_mov_b32 exec_hi, 0
""")
        for i in range(4): a(f"buffer_load_dword v{T1}, {srd(SRD_X)}, s{S_PFO} offen lds\ns_add_u32 s{S_PFO}, s{S_PFO}, 4096")
        a(f"s_mov_b32 exec_hi, -1\ns_branch {name}_b_back")
    a(f"{name}_b_done:")

def pack(a, ops, spare):
    ops, spare, moves = list(ops), list(spare), []
    while ops:
        for k, (d, x, y) in enumerate(ops):
            if not any(d in o[1:] for j, o in enumerate(ops) if j != k): break
        else:
            k = 0; d, x, y = ops[0]; t = spare.pop(); moves.append((d, t)); d = t
        a(f"v_cvt_pk_bf16_f32 v{d}, v{x}, v{y}"); ops.pop(k)
    for d, t in moves: a(f"v_mov_b32 v{d}, v{t}")

ORD_B = (3, 4, 0, 5, 1, 6, 2)
ORD_A = (2, 1, 0, 3)
PB, ACA = 68, 156
TA0, TA2 = 32, 48
SB_ = (10, 12, 64, 66)
M2, SELA, AA, WA = 8, 6, 16, 24

def pass_a(a, name, opt):
    def dma_s(v, slot, fill="s_nop 0"):
        a(f"s_add_u32 m0, s{S_RING}, {slot*1024}\n{fill}\nbuffer_load_dwordx4 v{v}, {srd(SRD_X)}, s{S_VAL} offen lds")
    SR = SB_ + (AA, AA+2, AA+4, AA+6)
    def sread(c, m):
        slot = 2*c + (m >> 2)
        return (f"s{m}", f"ds_read_b64_tr_b16 {vr(SR[m],2)}, v1 offset:{slot*1024 + (m & 3)*256}")
    def next_reads(c, off):
        r = [("sr1", f"ds_read_u16 v{TA2+2}, v2 offset:{L_YS + 6 + 128*(off+2) + 64}"),
             ("sr0", f"ds_read_u16 v{TA2+3}, v2 offset:{L_YS + 6 + 128*(off+3)}"),
             ("pt", f"ds_read_b32 v{TA2+5}, v4 offset:{L_PT + 64*(off+3)}")]
        r += [(f"W0{h}", f"ds_read_b128 {vr(TA2+8+4*h,4)}, v0 offset:{L_WR + h*1024}") for h in range(2)]
        r += [("A0", f"ds_read_b128 {vr(AA,4)}, v5 offset:{c*512}"),
              ("A1", f"ds_read_b128 {vr(AA+4,4)}, v7 offset:{c*512}")]
        r += [sread(c, m) for m in range(4)]
        r += [("ys", f"ds_read_b64 {vr(TA2,2)}, v3 offset:{L_YS + 128*off}"),
              ("id", f"ds_read_b32 v{TA2+4}, v15 offset:{L_ID + 16*off}")]
        return r
    a(f"""
s_waitcnt vmcnt(0) lgkmcnt(0)
s_mul_i32 s{S_T1}, s{S_WAVE}, 5120
s_add_u32 s{S_T1}, s{S_T1}, 10240
""")
    for j in range(5):
        a(f"s_add_u32 m0, s{S_RING}, {RA_WS}\ns_nop 0\nbuffer_load_dwordx4 v0, {srd(SRD_W)}, s{S_T1} offen offset:{1024*j if j < 4 else 0} lds"
          if j < 4 else
          f"s_add_u32 m0, s{S_RING}, {RA_WS+4096}\ns_add_u32 s{S_T1}, s{S_T1}, 4096\nbuffer_load_dwordx4 v0, {srd(SRD_W)}, s{S_T1} offen lds")
    a("v_lshrrev_b32 v16, 4, v0")
    list_lanes(a)
    list_addrs(a)
    ds = DS(a)
    for h in range(5): ds.op(f"sr{h}", f"ds_read_u16 v{TA0+h}, v2 offset:{L_YS + 6 + 64*h}")
    for t in range(3): ds.op(f"pt{t}", f"ds_read_b32 v{TA0+8+t}, v4 offset:{L_PT + 64*t}")
    ea_addrs(a, 5, 7, RA_EA)
    a(f"""
v_bfe_u32 v17, v16, 2, 1
v_xor_b32 v17, 1, v17
v_mul_u32_u24 v17, {OOB + 64}, v17
v_bfe_u32 v18, v16, 3, 1
v_lshl_add_u32 v17, v18, 7, v17
v_lshrrev_b32 v18, 4, v16
v_lshl_add_u32 v17, v18, 5, v17
v_and_b32 v18, 3, v16
v_lshl_add_u32 v17, v18, 3, v17
v_add_u32 v1, s{S_RING}, v17
v_mul_u32_u24 v19, 0x202, v18
v_add_u32 v19, 0x0c0c0100, v19
v_cmp_eq_u32 vcc, 3, v18
v_mov_b32 v20, 0x0c0c0c0c
v_mov_b32 v21, 0x3f80
v_cndmask_b32 v19, v19, v20, vcc
v_cndmask_b32 v21, 0, v21, vcc
v_and_b32 v18, 4, v16
v_lshlrev_b32 v18, 2, v18
v_alignbit_b32 v{SELA}, v19, v19, v18
v_lshlrev_b32 v{M2+1}, v18, v21
s_sub_u32 s{S_REM}, s{S_NB}, 1
""")
    ds.drain()
    for h in range(5): a(f"v_lshl_or_b32 v{TA0+h}, v{TA0+h}, 9, v14")
    for t in range(3): a(f"v_and_or_b32 v{TA0+8+t}, v0, 16, v{TA0+8+t}")
    for t in range(3):
        valid(a, t)
        dma_s(TA0+2*t, 2*t)
        dma_e(a, TA0+8+t, RA_EA + 512*t)
        if t < 2: dma_s(TA0+2*t+1, 2*t+1)
    for h in range(2): ds.op(f"W2{h}", f"ds_read_b128 {vr(WA+4*h,4)}, v0 offset:{L_WR + (4+h)*1024}")
    a(f"""
v_lshrrev_b32 v17, 2, v0
s_lshl_b32 s{S_T0}, s{S_NB}, 4
s_mov_b32 s{S_T1}, 0x00ff00ff
s_mov_b32 s{S_T2}, 0x007c007c
s_mov_b32 s{S_T3}, 0x7c007c00
v_mov_b32 v21, 37
{name}_reidx:
v_cmp_gt_u32 vcc, s{S_T0}, v17
s_and_b64 exec, exec, vcc
s_cbranch_execz {name}_reidx_done
v_add_u32 v18, s{S_START}, v17
ds_read_b32 v19, v18 offset:{L_ID}
v_add_u32 v17, 256, v17
s_waitcnt lgkmcnt(0)
v_lshrrev_b32 v20, 8, v19
v_and_b32 v19, s{S_T1}, v19
v_and_b32 v20, s{S_T1}, v20
v_mul_u32_u24 v19, v19, v21
v_mul_u32_u24 v20, v20, v21
v_lshrrev_b32 v19, 6, v19
v_lshlrev_b32 v20, 2, v20
v_and_b32 v19, s{S_T2}, v19
v_and_or_b32 v19, v20, s{S_T3}, v19
ds_write_b32 v18, v19 offset:{L_ID}
s_branch {name}_reidx
{name}_reidx_done:
s_mov_b64 exec, -1
""")
    pack(a, [(PB + 12*ORD_B.index(i) + p, ACC+14*p+i, ACC+14*p+7+i) for p in range(12) for i in range(7)]
            + [(PB+84+i, ACC+168+2*i, ACC+168+min(2*i+1, 6)) for i in range(4)], range(48, 64))
    for r in range(ACA, 256): a(f"v_mov_b32 v{r}, 0")
    a(f"""
s_waitcnt vmcnt(6)
v_mov_b32 v17, {L_FLAG}
v_mov_b32 v18, 1
s_mov_b64 exec, 1
ds_add_u32 v17, v18
s_mov_b64 exec, -1
s_cmp_eq_u32 s{S_NB}, 0
s_cbranch_scc1 {name}_a_done
s_waitcnt lgkmcnt(0)
""")
    ds.q = []
    stamp(a, opt, 3)
    for tag, text in next_reads(0, 0): ds.op(tag, text)
    entry = list(ds.q)
    si = S_IDX[0]
    align(a, opt.get('ala'))
    a(f"{name}_a_loop:")
    for c in range(3):
        ds = DS(a, entry)
        pra = opt.get('prio', 2) == 1 or (opt.get('prio', 2) == 2 and c == 0)
        def big(tile, w, h): a(f"v_mfma_f32_32x32x16_bf16 {vr(tile,16)}, {vr(AA+4*h,4)}, {vr(w+4*h,4)}, {vr(tile,16) if h else 0}")
        def mul(tile, *ms):
            for m in ms:
                for i in range(2): a(f"v_mul_f32 v{tile+2*m+i}, v{tile+2*m+i}, v{SR[m]+i}")
        def cvt_t(*ms):
            for m in ms: a(f"v_cvt_pk_bf16_f32 v{TA0+2*m+1}, v{TA0+2*m}, v{TA0+2*m+1}")
        def cvt_u(*ms):
            for m in ms: a(f"v_cvt_pk_bf16_f32 v{TA0+2*m}, v{TA2+2*m}, v{TA2+2*m+1}")
        ds.need("s3")
        big(TA0, TA2+8, 0)
        a(f"v_lshl_or_b32 v{TA2+2}, v{TA2+2}, 9, v14")
        dma_s(TA2+2, (2*c+5) % 6, f"v_lshl_or_b32 v{TA2+3}, v{TA2+3}, 9, v14")
        valid(a, 3)
        a(f"s_add_u32 m0, s{S_RING}, {2*c*1024}")
        big(TA0, TA2+8, 1)
        a(f"buffer_load_dwordx4 v{TA2+3}, {srd(SRD_X)}, s{S_VAL} offen lds\nv_and_or_b32 v{TA2+5}, v0, 16, v{TA2+5}")
        dma_e(a, TA2+5, RA_EA + 512*c)
        ds.need("id", vm=6)
        a(f"v_perm_b32 v{M2}, v{TA2+1}, v{TA2}, v{SELA}")
        for i in range(4): a(f"v_readlane_b32 s{si+i}, v{TA2+4}, {i}")
        big(TA2, WA, 0)
        ds.op(*sread(c, 4)); ds.op(*sread(c, 5))
        mul(TA0, 0, 1)
        big(TA2, WA, 1)
        ds.op(*sread(c, 6)); ds.op(*sread(c, 7))
        mul(TA0, 2, 3); cvt_t(0, 1, 2, 3)
        ds.need("s5")
        mul(TA0, 4, 5); mul(TA2, 0, 1, 2, 3)
        ds.need("s7")
        cvt_u(0, 1, 2, 3)
        mul(TA0, 6, 7); mul(TA2, 4, 5)
        if pra:
            for l in prio_addr(TA2+6, TA2+7): a(l)
        cvt_t(4, 5, 6, 7)
        mul(TA2, 6, 7)
        cvt_u(4, 5, 6, 7)
        fill = ([prio_add(TA2+6, TA2+7)] if pra else []) + next_reads((c + 1) % 3, c+1)
        for e in range(16):
            a(f"s_set_gpr_idx_on s{si + 2*(e >> 3) + (e & 1)}, 0xc")
            if (e & 1) and (e & 7) != 7:
                q = si + 2*(e >> 3)
                a(f"s_lshr_b64 s[{q}:{q+1}], s[{q}:{q+1}], 8")
                if e < 8 or (pra and e == 9): ds.op(*fill.pop(0))
            else: ds.op(*fill.pop(0))
            a(f"v_mfma_f32_4x4x4_16b_bf16 {vr(ACA,4)}, {vr(M2,2)}, {vr(TA0+(e&14),2)}, {vr(ACA,4)} cbsz:4 abid:{e}")
        assert not fill
        a("s_set_gpr_idx_off")
        if pra:
            ds.need("pr")
            for l in prio_read(TA2+7) + prio_set(): a(l)
        if c == 2:
            a("v_add_u32 v2, 384, v2\nv_add_u32 v3, 384, v3\nv_add_u32 v4, 192, v4\nv_add_u32 v15, 48, v15")
        a(f"s_sub_u32 s{S_REM}, s{S_REM}, 1\ns_cbranch_scc1 {name}_a_done")
        assert ds.q == entry, (ds.q, entry)
    a(f"s_branch {name}_a_loop\n{name}_a_done:")

def epilogue(a, name, opt):
    PA = ACA
    DT = ((224, 240), (192, 208), (74, 176), (192, 208))
    AOP, WOP, TMP, ROW = 8, 24, (56, 57, 58, 59), 60
    nt = opt.get('store_nt', ' sc1')
    a(f"""
s_waitcnt lgkmcnt(0)
v_mov_b32 v7, {L_FLAG}
v_lshrrev_b32 v16, 4, v0
v_mul_u32_u24 v1, 56, v16
v_add_u32 v1, s{S_RING}, v1
v_lshrrev_b32 v17, 5, v16
v_bfe_u32 v18, v16, 2, 2
v_lshl_add_u32 v18, v17, 3, v18
v_mul_u32_u24 v2, 56, v18
v_bfe_u32 v18, v16, 4, 1
v_lshl_add_u32 v2, v18, 5, v2
v_and_b32 v18, 3, v16
v_lshl_add_u32 v2, v18, 3, v2
v_add_u32 v2, s{S_RING}, v2
v_add_u32 v3, {L_RING + RA_WS}, v0
v_add_u32 v4, {L_RING + RA_WS + 5*RING}, v0
v_and_b32 v18, 31, v16
v_lshlrev_b32 v18, 2, v18
s_lshl_b32 s{S_T0}, s{S_SB}, 9
v_add_u32 v5, s{S_T0}, v18
s_lshl_b32 s{S_T0}, s{S_WAVE}, 5
v_lshl_add_u32 v6, v17, 2, s{S_T0}
s_add_u32 s{S_T2}, s{S_WBASE}, s{S_WCNT}
s_cmp_ge_u32 s{S_T2}, s{S_TOTAL}
s_cselect_b32 s{SRD_O+2}, {0 if opt.get('nostore') else XB}, 0
s_lshl_b32 s{S_T3}, s2, 3
s_add_u32 s{S_T3}, s{S_T3}, s{S_WAVE}
s_lshl_b32 s{S_T3}, s{S_T3}, 15
{name}_spin:
ds_read_b32 v17, v7
s_waitcnt lgkmcnt(0)
v_readfirstlane_b32 s{S_T0}, v17
s_cmp_lt_u32 s{S_T0}, 8
s_cbranch_scc1 {name}_spin
""")
    def ga(i): return (PA + 2 + 12*ORD_A.index(i), PA + (i >> 1), i & 1)
    def gb(i): return (PB + 12*ORD_B.index(i), PB + 84 + (i >> 1), i & 1)
    groups = [(gb(3), 1, 0), (ga(3), 0, 0)]
    for j in range(3): groups += [(ga(j), 2, j+1), (gb(4+j), 3, j+1), (gb(j), 4, j+1)]
    NG = len(groups)
    ds = DS(a)
    def writes(g):
        base, tail, hi = groups[g][0]
        off = (g & 1) * TILE
        return [(f"w{g}", f"ds_write_b64 v1, {vr(base+2*q,2)} offset:{off + 8*q}") for q in range(6)] + \
               [(f"w{g}", f"ds_write_b16{'_d16_hi' if hi else ''} v1, v{tail} offset:{off + 48}")]
    def aread(m):
        g, t = divmod(m, 4)
        return [(f"a{m}", f"ds_read_b64_tr_b16 {vr(AOP+4*t+2*j,2)}, v2 offset:{(g & 1)*TILE + (16*t+4*j)*56}") for j in range(2)]
    def wread(n):
        g, i = divmod(n, 8)
        w, k = divmod(groups[g][1]*8 + i, 5)
        v, o = (3, w*RING) if w < 5 else (4, (w-5)*RING)
        return (f"W{n}", f"ds_read_b128 {vr(WOP+4*(n&7),4)}, v{v} offset:{o + k*1024}")
    def fin(comp):
        D, G_ = DT[comp], DT[0]
        out = []
        for r in range(13):
            t = TMP[r & 3]
            if comp: out += [f"v_mul_f32 v{D[u]+r}, v{D[u]+r}, v{G_[u]+r}" for u in range(2)]
            out += [f"v_cvt_pk_bf16_f32 v{t}, v{D[0]+r}, v{D[1]+r}"]
            if not comp:
                out += [f"v_mul_f32 v{D[u]+r}, 0xbfb8aa3b, v{D[u]+r}" for u in range(2)]
                out += [f"v_exp_f32 v{D[u]+r}, v{D[u]+r}" for u in range(2)]
            out += [f"buffer_store_dword v{t}, v{ROW+r}, {srd(SRD_O)}, 0 offen offset:{128*comp}{nt}"]
            if not comp:
                out += [f"v_add_f32 v{D[u]+r}, 1.0, v{D[u]+r}" for u in range(2)]
                out += [f"v_rcp_f32 v{D[u]+r}, v{D[u]+r}" for u in range(2)]
        return out
    a("s_waitcnt vmcnt(0)")
    for op in writes(0) + aread(0) + [wread(0), wread(1)] + aread(1) + [wread(2), wread(3)]: ds.op(*op)
    pack(a, [(ga(i)[0] + p, ACA+8*p+i, ACA+8*p+4+i) for p in range(12) for i in range(4)]
            + [(PA+i, ACA+96+2*i, ACA+97+2*i) for i in range(2)], range(40, 68))
    side = []
    for m in range(4*NG):
        g, t = divmod(m, 4)
        comp = groups[g][2]
        first = (g == 0 or groups[g-1][2] != comp) and t == 0
        D = DT[comp]
        ops = []
        if g+1 < NG and t < 2: ops += writes(g+1)[4*t:4*t+4]
        if m+2 < 4*NG: ops += aread(m+2) + [wread(2*m+4), wread(2*m+5)]
        if m == 2: ops += [("row", f"ds_read_u8 v{ROW+r}, v6 offset:{L_INV + (r >> 2)*8 + (r & 3)}") for r in range(13)]
        if m == 6: side = [f"v_lshl_add_u32 v{ROW+r}, v{ROW+r}, 17, v5" for r in range(13)]
        ds.need(f"a{m}", f"W{2*m+1}")
        for u in range(2):
            a(f"v_mfma_f32_32x32x16_bf16 {vr(D[u],16)}, {vr(AOP+4*t,4)}, {vr(WOP+4*((2*m+u)&7),4)}, {0 if first else vr(D[u],16)}")
            k = (len(ops) + 1 - u) // (2 - u)
            for op in ops[:k]: ds.op(*op)
            ops = ops[k:]
            if not first:
                for l in side[:opt.get('side', 6)]: a(l)
                side = side[opt.get('side', 6):]
        if t == 3 and (g+1 == NG or groups[g+1][2] != comp):
            for l in side: a(l)
            a(f"s_cmp_lg_u32 s{S_TOTAL}, s{S_WCNT}\ns_cbranch_scc1 {name}_multi{comp}\n{name}_fin{comp}:")
            side = fin(comp)
    a("s_nop 9")
    for l in side: a(l)
    a(f"{name}_next3:")
    stamp(a, opt, 5)
    stamps_out(a, opt)
    a(f"""
s_cmp_ge_u32 s{S_T2}, s{S_TOTAL}
s_cbranch_scc1 {name}_end
s_mov_b32 s{S_WBASE}, s{S_T2}
s_setprio 0
s_waitcnt vmcnt(0) lgkmcnt(0)
s_barrier
s_branch {name}_window
""")
    for comp in range(4):
        D = DT[comp]
        a(f"""
{name}_multi{comp}:
s_nop 15
v_lshrrev_b32 v7, 2, v0
s_add_u32 s{S_T0}, s{S_T3}, {comp*8192}
s_add_u32 s{S_T1}, s{S_T0}, 4096
s_cmp_eq_u32 s{S_WBASE}, 0
s_cbranch_scc1 {name}_mst{comp}
""")
        for u in range(2):
            for r in range(13):
                a(f"buffer_load_dword v{TMP[0]}, v7, {srd(SRD_S)}, s{S_T0+u} offen offset:{256*r} sc1\ns_waitcnt vmcnt(0)\nv_add_f32 v{D[u]+r}, v{D[u]+r}, v{TMP[0]}")
        a(f"{name}_mst{comp}:")
        for u in range(2):
            for r in range(13):
                a(f"buffer_store_dword v{D[u]+r}, v7, {srd(SRD_S)}, s{S_T0+u} offen offset:{256*r}")
        a(f"s_waitcnt vmcnt(0)\ns_branch {name}_fin{comp}")
    a(f"{name}_end:\ns_endpgm")

def dump_regs(a):
    a("s_waitcnt vmcnt(0) lgkmcnt(0)\ns_nop 15")
    a.srd(96, 76, 128 << 20, 64 << 20)
    a(f"""
v_lshrrev_b32 v0, 2, v0
s_lshl_b32 s{S_T0}, s2, 3
s_add_u32 s{S_T0}, s{S_T0}, s{S_WAVE}
s_lshl_b32 s{S_T0}, s{S_T0}, 16
v_mov_b32 v1, s{S_START}
v_mov_b32 v2, s{S_NB}
""")
    for r in range(256):
        a(f"buffer_store_dword v{r}, v0, s[96:99], s{S_T0} offen\ns_add_u32 s{S_T0}, s{S_T0}, 256")
    a("s_endpgm")

def dump_lds(a):
    a("s_waitcnt vmcnt(0) lgkmcnt(0)\ns_barrier")
    a.srd(96, 76, 16 << 20, 200 << 20)
    a(f"""
s_lshl_b32 s{S_T0}, s2, 16
s_lshl_b32 s{S_T1}, s{S_WAVE}, 13
v_add_u32 v21, s{S_T1}, v0
""")
    for j in range(8):
        a(f"ds_read_b128 v[24:27], v21\ns_waitcnt lgkmcnt(0)\nbuffer_store_dwordx4 v[24:27], v21, s[96:99], s{S_T0} offen\ns_waitcnt vmcnt(0)\nv_add_u32 v21, 1024, v21")

def stamp(a, opt, i, grp=0):
    if opt.get('stamps') and (i in (0, 6) or grp == opt.get('grp', 0)):
        a(f"{'s_memtime' if opt['stamps'] == 2 else 's_memrealtime'} s[100:101]\ns_waitcnt lgkmcnt(0)\ns_mov_b32 s{93+i}, s100")

def stamps_out(a, opt):
    if opt.get('stamps'):
        a("s_waitcnt vmcnt(0)")
        stamp(a, opt, 6)
        a.srd(SRD_S, 76, 1 << 20, 240 << 20)
        a(f"s_lshl_b32 s{S_T0}, s2, 3\ns_add_u32 s{S_T0}, s{S_T0}, s{S_WAVE}\ns_lshl_b32 s{S_T0}, s{S_T0}, 5\nv_mov_b32 v0, 0")
        for i in range(7):
            a(f"v_mov_b32 v1, s{93+i}\nbuffer_store_dword v1, v0, {srd(SRD_S)}, s{S_T0} offen offset:{4*i}")
        a(f"v_mov_b32 v1, s{S_NB}\nbuffer_store_dword v1, v0, {srd(SRD_S)}, s{S_T0} offen offset:28\ns_endpgm")

def gen_k2(name, **opt):
    a = Asm()
    prologue(a, name, opt)
    if opt.get('dump'): dump_lds(a)
    pass_b(a, name, opt)
    if opt.get('dump') == 'b': dump_regs(a)
    stamp(a, opt, 2)
    pass_a(a, name, opt)
    if opt.get('dump') == 'a': dump_regs(a)
    stamp(a, opt, 4)
    epilogue(a, name, opt)
    if opt.get('drope'):
        import re
        lo = a.lines.index(f"{name}_spin:") + 6; hi = a.lines.index(f"{name}_next3:")
        a.lines[lo:hi] = [l for l in a.lines[lo:hi] if not re.search(opt['drope'], l)]
    for key, ps in (('drop', 'b'), ('dropa', 'a')):
        if opt.get(key):
            import re
            lo = a.lines.index(f"{name}_{ps}_loop:"); hi = a.lines.index(f"{name}_{ps}_done:")
            a.lines[lo:hi] = [l for l in a.lines[lo:hi] if not re.search(opt[key], l)]
    return a.text()
```

```python
from common import *

K1_LDS_EA = 0
K1_LDS_META = CH * 32
K1_LDS_INV = K1_LDS_META + CH * 12
K1_LDS_HIST = K1_LDS_INV + CH * 2
K1_LDS = K1_LDS_HIST + 2048
K1_GRID = NCH + 4
K1_VGPR = 64
QSHIFT = 12

def gen_k1(name, nt=' nt', st=' sc1', stm=' sc1'):
    a = Asm()
    a(f"""
{name}:
s_cmp_ge_u32 s2, {K1_GRID}
s_cbranch_scc1 {name}_end
s_load_dwordx8 s[4:11], s[0:1], {KA_RHAT}
s_load_dwordx2 s[12:13], s[0:1], {KA_WS}
s_cmp_ge_u32 s2, {NCH}
s_cbranch_scc1 {name}_weights
v_lshrrev_b32 v1, 6, v0
v_lshlrev_b32 v2, 4, v0
v_readfirstlane_b32 s3, v1
v_mul_u32_u24 v3, 24, v0
v_and_b32 v4, 63, v0
v_lshlrev_b32 v4, 4, v4
v_mov_b32 v5, 0
v_lshlrev_b32 v6, 2, v0
s_mul_i32 s40, s2, {CH*4}
s_mul_i32 s41, s2, {CH*6}
s_mul_i32 s42, s2, {CH*32}
s_mul_i32 s43, s2, {CH*8}
s_mul_i32 s44, s2, {CH}
s_waitcnt lgkmcnt(0)
""")
    a.srd(16, 10, E * 4)
    a.srd(20, 8, E * 4)
    a.srd(24, 4, E * 6)
    a.srd(28, 6, E * 32)
    a.srd(32, 12, E * 32, WS_EAS)
    a.srd(36, 12, E * 8, WS_META)
    a.srd(56, 12, E * 4, WS_KEY)
    a.srd(48, 12, NCH * 1024, WS_TAB)
    a(f"""
v_cmp_gt_u32 vcc, 512, v0
s_and_saveexec_b64 s[46:47], vcc
v_add_u32 v7, {K1_LDS_HIST}, v6
ds_write_b32 v7, v5
s_mov_b64 exec, s[46:47]
v_cmp_gt_u32 vcc, {CH//4}, v0
s_and_saveexec_b64 s[46:47], vcc
s_mov_b64 s[52:53], exec
s_cbranch_execz {name}_noload
buffer_load_dwordx4 v[8:11], v2, s[16:19], s40 offen{nt}
buffer_load_dwordx4 v[12:15], v2, s[20:23], s40 offen{nt}
buffer_load_dwordx4 v[16:19], v3, s[24:27], s41 offen{nt}
buffer_load_dwordx2 v[20:21], v3, s[24:27], s41 offen offset:16{nt}
{name}_noload:
s_mov_b64 exec, s[46:47]
s_lshl_b32 s14, s3, 10
s_add_u32 s15, s14, s42
""")
    for j in range(7):
        if j == 6:
            a(f"s_cmp_ge_u32 s3, 4\ns_cbranch_scc1 {name}_dma_done")
        a(f"""
s_mov_b32 m0, s14
s_add_u32 s14, s14, 0x4000
buffer_load_dwordx4 v4, s[28:31], s15 offen{nt} lds
s_add_u32 s15, s15, 0x4000
""")
        if j == 6:
            a("s_waitcnt vmcnt(9)")
            a(f"s_branch {name}_keys")
    a(f"""
{name}_dma_done:
s_waitcnt vmcnt(8)
{name}_keys:
s_waitcnt lgkmcnt(0)
s_barrier
s_mov_b64 exec, s[52:53]
s_cbranch_execz {name}_nohist
v_mov_b32 v5, 1
s_mov_b32 s14, {K1_LDS_HIST}
s_mov_b32 s15, {K1_LDS_HIST + 1024}
""")
    for k in range(4):
        a(f"""
v_and_b32 v{24+k}, 0xff, v{8+k}
v_lshrrev_b32 v{28+k}, {QSHIFT}, v{12+k}
v_bfe_u32 v1, v{8+k}, 5, 3
v_lshl_add_u32 v{24+k}, v{24+k}, 2, s14
v_lshl_add_u32 v{28+k}, v1, 5, v{28+k}
ds_add_rtn_u32 v{32+k}, v{24+k}, v5
v_lshl_add_u32 v{28+k}, v{28+k}, 2, s15
ds_add_rtn_u32 v{36+k}, v{28+k}, v5
""")
    a(f"""
{name}_nohist:
s_mov_b64 exec, -1
s_waitcnt lgkmcnt(0)
s_barrier
s_cmp_ge_u32 s3, 2
s_cbranch_scc1 {name}_noscan
v_add_u32 v7, {K1_LDS_HIST}, v2
ds_read_b128 v[40:43], v7
s_waitcnt lgkmcnt(0)
v_add_u32 v45, v40, v41
v_add_u32 v46, v45, v42
v_add_u32 v47, v46, v43
v_mov_b32 v44, v47
""")
    a.scan64(44)
    a(f"""
v_sub_u32 v44, v44, v47
v_add_u32 v47, v44, v46
v_add_u32 v46, v44, v45
v_add_u32 v45, v44, v40
ds_write_b128 v7, v[44:47]
s_cmp_eq_u32 s3, 0
s_cbranch_scc0 {name}_noscan
v_lshl_or_b32 v40, v40, 16, v44
v_lshl_or_b32 v41, v41, 16, v45
v_lshl_or_b32 v42, v42, 16, v46
v_lshl_or_b32 v43, v43, 16, v47
s_lshl_b32 s14, s2, 10
buffer_store_dwordx4 v[40:43], v2, s[48:51], s14 offen
{name}_noscan:
s_waitcnt lgkmcnt(0)
s_barrier
s_mov_b64 exec, s[52:53]
s_cbranch_execz {name}_noplace
""")
    for k in range(4):
        a(f"ds_read_b32 v{24+k}, v{24+k}\nds_read_b32 v{28+k}, v{28+k}")
    a(f"""
s_waitcnt vmcnt(6)
s_mov_b32 s14, 0x05040100
s_mov_b32 s15, 0x05040302
s_mov_b32 s45, 0x0c050100
s_mov_b32 s46, 0x06020100
v_mov_b32 v48, v16
v_alignbit_b32 v50, v18, v17, 16
v_mov_b32 v52, v19
v_alignbit_b32 v54, v21, v20, 16
""")
    for k in range(4): a(f"v_perm_b32 v{12+k}, v{8+k}, v{12+k}, s45")
    a(f"""
s_mov_b32 s47, {K1_LDS_META}
s_mov_b32 s60, {K1_LDS_META + CH*8}
s_mov_b32 s61, {K1_LDS_INV}
s_waitcnt lgkmcnt(0)
""")
    for k in range(4):
        a(f"""
v_add_u32 v{24+k}, v{24+k}, v{32+k}
v_add_u32 v{28+k}, v{28+k}, v{36+k}
v_add_u32 v23, s44, v{28+k}
v_lshl_add_u32 v22, v{24+k}, 3, s47
v_perm_b32 v{49+2*k}, v23, v{(17, 18, 20, 21)[k]}, s{14 + (k & 1)}
v_perm_b32 v23, v23, v{12+k}, s46
v_lshl_add_u32 v{24+k}, v{24+k}, 2, s60
v_lshl_add_u32 v{28+k}, v{28+k}, 1, s61
v_add_u32 v1, {k}, v6
ds_write_b64 v22, v[{48+2*k}:{49+2*k}]
ds_write_b32 v{24+k}, v23
ds_write_b16 v{28+k}, v1
""")
    a(f"""
{name}_noplace:
s_mov_b64 exec, -1
s_waitcnt lgkmcnt(0)
s_barrier
v_add_u32 v7, {K1_LDS_META}, v2
ds_read_b128 v[8:11], v7
ds_read_b128 v[12:15], v7 offset:16384
ds_read_b128 v[16:19], v7 offset:{CH*8}
v_and_b32 v1, 0x3fe, v0
v_add_u32 v1, {K1_LDS_INV}, v1
""")
    for j in range(7):
        a(f"ds_read_u16 v{24+j}, v1 offset:{1024*j}")
    a(f"""
s_add_u32 s14, s43, 16384
v_and_b32 v1, 1, v0
v_lshlrev_b32 v1, 4, v1
v_cmp_gt_u32 vcc, {CH*8//16 - 1024}, v0
v_bfrev_b32 v3, 1
s_nop 0
v_cndmask_b32 v4, v3, v2, vcc
v_cndmask_b32 v3, v3, v2, s[52:53]
s_waitcnt lgkmcnt(7)
buffer_store_dwordx4 v[16:19], v3, s[56:59], s40 offen{stm}
buffer_store_dwordx4 v[8:11], v2, s[36:39], s43 offen{stm}
buffer_store_dwordx4 v[12:15], v4, s[36:39], s14 offen{stm}
s_waitcnt lgkmcnt(0)
""")
    for j in range(7):
        a(f"v_lshl_add_u32 v{24+j}, v{24+j}, 5, v1")
    a("s_waitcnt vmcnt(3)\ns_barrier")
    for j in range(6):
        a(f"ds_read_b128 v[{32+4*j}:{35+4*j}], v{24+j}")
    a(f"""
s_cmp_ge_u32 s3, 4
s_cbranch_scc1 {name}_no7
ds_read_b128 v[56:59], v30
s_add_u32 s14, s42, {6*16384}
s_waitcnt lgkmcnt(0)
buffer_store_dwordx4 v[56:59], v2, s[32:35], s14 offen{st}
{name}_no7:
""")
    for j in range(6):
        a(f"""
s_waitcnt lgkmcnt({5-j})
buffer_store_dwordx4 v[{32+4*j}:{35+4*j}], v2, s[32:35], s42 offen{st}
s_add_u32 s42, s42, 16384
""")
    a(f"""
s_endpgm
{name}_weights:
s_load_dwordx4 s[56:59], s[0:1], {KA_WRAD}
s_load_dwordx2 s[60:61], s[0:1], {KA_WSI1}
s_sub_u32 s3, s2, {NCH}
s_lshl_b32 s3, s3, 4
v_lshrrev_b32 v1, 6, v0
v_and_b32 v2, 31, v0
v_readfirstlane_b32 s14, v1
v_bfe_u32 v3, v0, 5, 1
s_add_u32 s3, s3, s14
s_waitcnt lgkmcnt(0)
""")
    a.srd(16, 56, 16 * 640)
    a.srd(20, 58, 128 * 128)
    a.srd(24, 60, 192 * 128)
    a.srd(28, 12, 51200, WS_WR)
    a(f"""
s_cmp_ge_u32 s3, 50
s_cbranch_scc1 {name}_end
v_and_b32 v5, 63, v0
v_lshlrev_b32 v5, 4, v5
s_lshl_b32 s40, s3, 10
s_cmp_ge_u32 s3, 10
s_cbranch_scc1 {name}_wsi
v_mul_u32_u24 v4, {8*640}, v3
v_lshl_add_u32 v4, v2, 1, v4
s_lshl_b32 s15, s3, 6
""")
    for k in range(8):
        a(f"buffer_load_ushort v{8+k}, v4, s[16:19], s15 offen\ns_add_u32 s15, s15, 640")
    a(f"""
s_branch {name}_wpack
{name}_wsi:
s_sub_u32 s14, s3, 10
v_lshlrev_b32 v4, 10, v3
v_lshl_add_u32 v4, v2, 2, v4
s_and_b32 s15, s14, 1
s_lshl_b32 s15, s15, 1
s_lshr_b32 s14, s14, 1
s_lshl_b32 s41, s14, 11
s_add_u32 s15, s15, s41
s_cmp_ge_u32 s14, 8
s_cbranch_scc1 {name}_wsi1
""")
    for k in range(8):
        a(f"buffer_load_ushort v{8+k}, v4, s[20:23], s15 offen offset:{128*k}")
    a(f"""
s_branch {name}_wpack
{name}_wsi1:
s_sub_u32 s15, s15, {128*128}
""")
    for k in range(8):
        a(f"buffer_load_ushort v{8+k}, v4, s[24:27], s15 offen offset:{128*k}")
    a(f"""
{name}_wpack:
s_waitcnt vmcnt(0)
v_lshl_or_b32 v16, v9, 16, v8
v_lshl_or_b32 v17, v11, 16, v10
v_lshl_or_b32 v18, v13, 16, v12
v_lshl_or_b32 v19, v15, 16, v14
buffer_store_dwordx4 v[16:19], v5, s[28:31], s40 offen
{name}_end:
s_endpgm
""")
    return a.text()
```

```python
from common import *

NSLOT = 3504
CAPW = NSLOT - 120
L_WR = 0
L_MT = 10240
L_FLAG = L_MT + 128
L_INV = L_MT + 256
L_YS = L_INV + 256
L_PT = L_YS + NSLOT * 8
L_ID = L_PT + NSLOT * 4
L_RING = 56320
RING = 13440
LINE = 4160
RB_EA = 12416
RA_EA = 6144
RA_WS = 7680
TILE = 3584
K2_LDS = L_RING + 8 * RING
assert L_ID + NSLOT <= L_RING and K2_LDS == 163840
L_HIST = L_RING
L_DEG = L_HIST + 1024
L_BASE = L_DEG + 1024
L_MAP = L_BASE + 1024
L_CNT = L_MAP + 1024
L_WTOT = L_CNT + 256
L_IDXL = L_WTOT + 64
OOB = 0x40000
XB, EB = N * 512, E * 32

S_WAVE, S_SB, S_RING, S_WBASE, S_TOTAL, S_WCNT, S_START, S_NB, S_REM = 3, 32, 33, 34, 35, 36, 37, 38, 39
SRD_X, SRD_E, SRD_T, SRD_O, SRD_W, SRD_M, SRD_S = 4, 8, 12, 16, 20, 24, 28
S_IDX = (40, 44)
S_T0, S_T1, S_T2, S_T3 = 48, 49, 50, 51
S_MASK = 52
S_VAL = 80
SRD_K = 84
S_VON, S_VOFF, S_PADDR, S_PINC, S_PSGN, S_PVAL, S_PF, S_PFO = 68, 69, 70, 71, 66, 67, 78, 79

def srd(d): return f"s[{d}:{d+3}]"
def vr(b, n): return f"v[{b}:{b+n-1}]"

class DS:
    def __init__(self, a, init=()):
        self.a, self.q = a, list(init)
    def op(self, tag, text):
        self.a(text); self.q.append(tag)
    def need(self, *tags, vm=None):
        idx = [i for i, t in enumerate(self.q) if t in tags]
        if not idx:
            if vm is not None: self.a(f"s_waitcnt vmcnt({vm})")
            return False
        n = len(self.q) - 1 - max(idx)
        self.a(f"s_waitcnt {'' if vm is None else 'vmcnt(%d) ' % vm}lgkmcnt({min(n, 15)})")
        self.q = self.q[len(self.q) - min(n, 15):] if n else []
        return True
    def drain(self):
        if self.q: self.a("s_waitcnt lgkmcnt(0)")
        self.q = []

def rho(v_dst, v_e, tmp):
    return f"""
v_bfe_u32 v{v_dst}, v{v_e}, 1, 2
v_and_b32 v{tmp}, 1, v{v_e}
v_lshl_or_b32 v{v_dst}, v{tmp}, 2, v{v_dst}
v_and_or_b32 v{v_dst}, v{v_e}, 8, v{v_dst}
"""

def prologue(a, name, opt):
    a(f"""
{name}:
s_cmp_ge_u32 s2, 256
s_cbranch_scc1 {name}_end
s_load_dwordx2 s[72:73], s[0:1], {KA_X}
s_load_dwordx2 s[74:75], s[0:1], {KA_OUT}
s_load_dwordx2 s[76:77], s[0:1], {KA_WS}
v_lshrrev_b32 v1, 6, v0
s_and_b32 s{S_SB}, s2, 7
v_readfirstlane_b32 s{S_WAVE}, v1
s_lshl_b32 s{S_SB}, s{S_SB}, 5
s_lshr_b32 s{S_T0}, s2, 3
s_add_u32 s{S_SB}, s{S_SB}, s{S_T0}
s_mul_i32 s{S_RING}, s{S_WAVE}, {RING}
s_add_u32 s{S_RING}, s{S_RING}, {L_RING}
s_mov_b32 s{S_VON}, {0x80000000 if opt.get('nomem') else 0}
s_mov_b32 s{S_VOFF}, 0x80000000
s_mov_b32 s{S_WBASE}, 0
s_waitcnt lgkmcnt(0)
""")
    stamp(a, opt, 0)
    a.srd(SRD_T, 76, NCH * 1024, WS_TAB)
    a(f"""
{name}_window:
v_mbcnt_lo_u32_b32 v16, -1, 0
v_mbcnt_hi_u32_b32 v16, -1, v16
v_lshlrev_b32 v0, 4, v16
s_lshl_b32 s{S_T0}, s{S_WAVE}, 6
v_add_u32 v17, s{S_T0}, v16
v_lshrrev_b32 v26, 1, v17
v_lshlrev_b32 v19, 10, v26
s_lshl_b32 s{S_T1}, s{S_SB}, 2
buffer_load_dword v27, v19, {srd(SRD_T)}, s{S_T1} offen
v_mov_b32 v21, 0
""")
    a.srd(SRD_X, 72, XB)
    a.srd(SRD_E, 76, EB, WS_EAS)
    a.srd(SRD_O, 74, XB)
    a.srd(SRD_W, 76, 51200, WS_WR)
    a.srd(SRD_M, 76, E * 8, WS_META)
    a.srd(SRD_K, 76, E * 4, WS_KEY)
    a.srd(SRD_S, 76, 256 * 8 * 128 * 256, WS_SCR)
    mt = [0x05040c0c, 0x03020c0c, 0x80000000, 0,
              0x0c0c0504, 0x01000c0c, 0, 0x80000000,
              0x01000302, 0x0c0c0c0c, 0x8000, 0,
              0x03020100, 0x05040c0c, 0, 0]
    a(f"""
v_lshlrev_b32 v22, 2, v17
ds_write_b32 v22, v21 offset:{L_HIST}
v_lshlrev_b32 v22, 2, v16
v_mov_b32 v23, -1
v_mov_b32 v63, v17
s_cmp_lg_u32 s{S_WAVE}, 7
s_cbranch_scc1 {name}_nomt
ds_write_b32 v22, v21 offset:{L_CNT}
ds_write_b32 v22, v23 offset:{L_INV}
""")
    for i, c in enumerate(mt):
        if c: a(f"s_mov_b32 s{S_T1}, {c:#x}\nv_writelane_b32 v21, s{S_T1}, {i}")
    a(f"""
ds_write_b32 v22, v21 offset:{L_MT}
{name}_nomt:
""")
    lane_consts_b(a)
    npf0, npf = opt.get('pf0', 1), opt.get('prefetch', 1)
    a(f"""
s_lshr_b32 s{S_PFO}, s2, 3
s_lshl_b32 s{S_PFO}, s{S_PFO}, 15
v_lshrrev_b32 v8, 3, v63
v_and_b32 v9, 3, v63
v_max_u32 v9, 1, v9
v_lshlrev_b32 v9, 7, v9
v_lshl_add_u32 v8, v8, 9, v9
s_waitcnt vmcnt(0)
""")
    stamp(a, opt, 1, 1)
    def warm(n):
        for _ in range(n): a(f"buffer_load_dword v9, v8, {srd(SRD_X)}, s{S_PFO} offen\ns_add_u32 s{S_PFO}, s{S_PFO}, {1 << 20}")
    warm(npf0)
    a(f"""
s_lshl_b32 s{S_T1}, s{S_WAVE}, 10
s_mov_b32 m0, s{S_T1}
s_and_b32 s{S_T2}, s{S_T1}, 1024
buffer_load_dwordx4 v0, {srd(SRD_W)}, s{S_T1} offen lds
s_add_u32 s{S_T2}, s{S_T2}, 8192
s_mov_b32 m0, s{S_T2}
s_nop 0
buffer_load_dwordx4 v0, {srd(SRD_W)}, s{S_T2} offen lds
v_lshrrev_b32 v21, 16, v27
v_and_b32 v20, 0xffff, v27
v_and_b32 v23, 1, v16
v_cmp_eq_u32 vcc, 0, v23
s_nop 1
v_cndmask_b32 v22, 0, v21, vcc
""")
    a.scan64(22)
    a(f"""
s_nop 0
v_readlane_b32 s{S_T0}, v22, 63
s_lshl_b32 s{S_T1}, s{S_WAVE}, 2
s_add_u32 s{S_T1}, s{S_T1}, {L_WTOT}
v_mov_b32 v24, s{S_T1}
v_mov_b32 v25, s{S_T0}
ds_write_b32 v24, v25
v_and_b32 v24, 7, v16
v_lshlrev_b32 v24, 2, v24
v_add_u32 v24, {L_WTOT}, v24
v_sub_u32 v22, v22, v21
v_mul_u32_u24 v18, {CH}, v26
v_add_u32 v20, v20, v18
s_waitcnt lgkmcnt(0)
s_barrier
ds_read_b32 v25, v24
s_waitcnt lgkmcnt(0)
""")
    for sh in (1, 2, 4):
        a(f"s_nop 1\nv_add_u32_dpp v25, v25, v25 row_shr:{sh} row_mask:0xf bank_mask:0xf bound_ctrl:0")
    a(f"""
s_nop 0
v_readlane_b32 s{S_TOTAL}, v25, 7
v_readlane_b32 s{S_T1}, v25, s{S_WAVE}
s_sub_u32 s{S_T1}, s{S_T1}, s{S_T0}
s_sub_u32 s{S_T1}, s{S_T1}, s{S_WBASE}
s_sub_u32 s{S_WCNT}, s{S_TOTAL}, s{S_WBASE}
s_min_u32 s{S_WCNT}, s{S_WCNT}, {CAPW}
v_add_u32 v22, s{S_T1}, v22
v_sub_u32 v24, 0, v22
v_max_i32 v24, 0, v24
v_sub_u32 v25, {CAPW}, v22
v_min_i32 v25, v25, v21
v_add_u32 v24, v24, v23
v_sub_u32 v20, v20, v22
v_sub_u32 v25, v25, v24
v_add_lshl_u32 v22, v22, v24, 2
{name}_expand:
""")
    for k in range(8):
        a(f"v_cmpx_lt_i32 vcc, {2*k}, v25")
        if k in (0, 4): a(f"s_cbranch_execz {name}_expanded")
        a(f"ds_write_b32 v22, v20 offset:{L_IDXL + 8*k}")
    a(f"""
v_add_u32 v22, 64, v22
v_subrev_u32 v25, 16, v25
s_branch {name}_expand
{name}_expanded:
s_mov_b64 exec, -1
v_lshlrev_b32 v22, 2, v63
v_add_u32 v22, {L_IDXL}, v22
""")
    REC, RK, BA, PAD = 24, 56, 64, 72
    for j in range(7):
        a(f"v_add_u32 v{BA+j}, {512*j}, v63\nv_cmp_gt_u32 s[{S_MASK+2*j}:{S_MASK+2*j+1}], s{S_WCNT}, v{BA+j}")
    a("v_bfrev_b32 v23, 2")
    a("s_waitcnt lgkmcnt(0)\ns_barrier")
    stamp(a, opt, 2, 1)
    def pay(js):
        for j in js: a(f"buffer_load_dwordx2 {vr(REC+4*j,2)}, v{PAD+j}, {srd(SRD_M)}, 0 offen")
    for j in range(7): a(f"ds_read_b32 v{RK+j}, v22 offset:{2048*j}")
    for j in range(7):
        a(f"""
s_waitcnt lgkmcnt({6-j})
v_add_lshl_u32 v{RK+j}, v{RK+j}, v{BA+j}, 2
v_cndmask_b32 v{RK+j}, v23, v{RK+j}, s[{S_MASK+2*j}:{S_MASK+2*j+1}]
buffer_load_dword v{REC+4*j+2}, v{RK+j}, {srd(SRD_K)}, 0 offen
""")
    stamp(a, opt, 1, 3)
    for j in range(7): a(f"v_lshlrev_b32 v{PAD+j}, 1, v{RK+j}")
    a(f"v_and_b32 v17, 48, v0\nds_read_b128 {vr(MT,4)}, v17 offset:{L_MT}")
    def mask(j): return f"s_mov_b64 exec, s[{S_MASK+2*j}:{S_MASK+2*j+1}]"
    a("v_mov_b32 v23, 1")
    for j in range(7):
        a(f"""
s_waitcnt vmcnt({6-j})
v_bfe_u32 v{BA+j}, v{REC+4*j+2}, 16, 8
{mask(j)}
v_lshlrev_b32 v{BA+j}, 2, v{BA+j}
v_bfe_u32 v{RK+j}, v{REC+4*j+2}, 11, 5
ds_add_u32 v{BA+j}, v23 offset:{L_DEG}
v_lshlrev_b32 v{RK+j}, 2, v{RK+j}
""")
        if j == 0: stamp(a, opt, 2, 3)
        if j == 6: stamp(a, opt, 3, 3)
    a("s_mov_b64 exec, -1")
    stamp(a, opt, 4, 3)
    a(f"""
v_lshlrev_b32 v22, 2, v63
v_cmp_gt_u32 vcc, 200, v63
s_waitcnt lgkmcnt(0)
s_barrier
""")
    stamp(a, opt, 1, 2)
    stamp(a, opt, 5, 3)
    a(f"s_cmp_lt_u32 s{S_WAVE}, 4\ns_cbranch_scc1 {name}_rank")
    pay(range(4))
    a("s_barrier")
    pay(range(4, 7))
    a(f"s_branch {name}_nomap\n{name}_rank:")
    a(f"""
s_and_b64 exec, exec, vcc
ds_read_b32 v21, v22 offset:{L_DEG}
s_waitcnt lgkmcnt(0)
v_min_u32 v21, 63, v21
v_sub_u32 v21, 63, v21
v_lshlrev_b32 v21, 2, v21
ds_add_rtn_u32 v20, v21, v23 offset:{L_CNT}
s_mov_b64 exec, -1
v_lshlrev_b32 v19, 2, v16
s_waitcnt lgkmcnt(0)
s_barrier
""")
    stamp(a, opt, 2, 2)
    a(f"""
ds_read_b32 v18, v19 offset:{L_CNT}
s_waitcnt lgkmcnt(0)
v_mov_b32 v19, v18
""")
    a.scan64(19)
    a(f"""
v_sub_u32 v19, v19, v18
ds_bpermute_b32 v19, v21, v19
s_cmp_lg_u32 s{S_TOTAL}, s{S_WCNT}
s_cselect_b64 s[{S_T2}:{S_T3}], -1, 0
s_and_b64 exec, exec, vcc
s_waitcnt lgkmcnt(0)
v_add_u32 v19, v19, v20
v_cndmask_b32 v19, v19, v63, s[{S_T2}:{S_T3}]
v_lshrrev_b32 v18, 3, v19
v_bfe_i32 v20, v19, 3, 1
v_xor_b32 v19, v19, v20
v_and_b32 v19, 7, v19
v_lshl_add_u32 v20, v19, 5, v18
ds_write_b8 v20, v63 offset:{L_INV}
v_mul_u32_u24 v18, {7 << 16}, v18
v_lshl_or_b32 v18, v19, 7, v18
ds_write_b32 v22, v18 offset:{L_MAP}
s_mov_b64 exec, -1
{name}_nomap:
""")
    a("s_waitcnt lgkmcnt(0)\ns_barrier")
    stamp(a, opt, 3, 2)
    for j in range(7): a(f"ds_read_b32 v{REC+4*j+3}, v{BA+j} offset:{L_MAP}")
    a(f"s_cmp_ge_u32 s{S_WAVE}, 4\ns_cbranch_scc1 {name}_nopay1")
    pay(range(3))
    a(f"{name}_nopay1:\ns_waitcnt lgkmcnt(0)")
    for j in range(7):
        a(f"v_add_u32_sdwa v{BA+j}, v{RK+j}, v{REC+4*j+3} dst_sel:DWORD dst_unused:UNUSED_PAD src0_sel:DWORD src1_sel:WORD_0")
    for j in range(7): a(f"{mask(j)}\nds_add_rtn_u32 v{RK+j}, v{BA+j}, v23 offset:{L_HIST}")
    a(f"s_mov_b64 exec, -1\ns_cbranch_scc1 {name}_nopay2")
    pay(range(3, 7))
    a(f"{name}_nopay2:")
    stamp(a, opt, 3, 1)
    a(f"""
s_waitcnt lgkmcnt(0)
s_barrier
""")
    stamp(a, opt, 4, 2)
    a(f"""
ds_read_b128 v[72:75], v0 offset:{L_HIST}
""")
    warm(npf)
    a(f"""
s_waitcnt lgkmcnt(0)
v_add_u32 v77, v72, v73
v_add_u32 v78, v77, v74
v_add_u32 v79, v78, v75
v_mov_b32 v71, v79
""")
    for sh in (1, 2, 4):
        a(f"s_nop 1\nv_add_u32_dpp v71, v71, v71 row_shr:{sh} row_mask:0xf bank_mask:0xf bound_ctrl:0")
    a(f"""
v_and_b32 v23, 7, v16
v_cmp_eq_u32 vcc, 7, v23
v_sub_u32 v76, 0, v71
v_and_b32 v76, 15, v76
v_cndmask_b32 v76, 0, v76, vcc
v_add_u32 v79, v79, v76
v_mov_b32 v76, v79
""")
    a.scan64(76)
    a(f"""
v_sub_u32 v76, v76, v79
v_add_u32 v79, v76, v78
v_add_u32 v78, v76, v77
v_add_u32 v77, v76, v72
ds_write_b128 v0, v[76:79] offset:{L_BASE}
s_lshl_b32 s{S_T0}, s{S_WAVE}, 3
s_add_u32 s{S_T1}, s{S_T0}, 7
v_readlane_b32 s{S_START}, v76, s{S_T0}
v_readlane_b32 s{S_T2}, v71, s{S_T1}
""")
    for j in range(7): a(f"ds_read_b32 v{BA+j}, v{BA+j} offset:{L_BASE}")
    a(f"""
s_add_u32 s{S_NB}, s{S_T2}, 15
s_lshr_b32 s{S_NB}, s{S_NB}, 4
s_lshl_b32 s{S_T3}, s{S_NB}, 4
v_add_u32 v23, s{S_T2}, v16
v_cmp_gt_u32 vcc, s{S_T3}, v23
v_add_u32 v23, s{S_START}, v23
v_mov_b32 v18, 0
v_mov_b32 v19, 0xffff0000
v_mov_b32 v20, 0x1fffffe0
v_lshlrev_b32 v21, 3, v23
v_lshlrev_b32 v22, 2, v23
s_and_b64 exec, exec, vcc
ds_write_b64 v21, v[18:19] offset:{L_YS}
ds_write_b32 v22, v20 offset:{L_PT}
ds_write_b8 v23, v18 offset:{L_ID}
s_mov_b64 exec, -1
s_waitcnt lgkmcnt(0)
""")
    stamp(a, opt, 5, 2)
    a(f"s_mov_b32 s{S_T0}, 0x0c070302\ns_mov_b32 s{S_T1}, 0x05040100\ns_waitcnt vmcnt({npf})")
    for j in range(7):
        a(f"""
{mask(j)}
v_perm_b32 v20, v{REC+4*j+2}, v{REC+4*j+1}, s{S_T0}
v_perm_b32 v{REC+4*j+1}, v{REC+4*j+2}, v{REC+4*j+1}, s{S_T1}
v_lshlrev_b32 v{REC+4*j+2}, 5, v20
v_add_u32 v23, v{BA+j}, v{RK+j}
v_add_lshl_u32 v21, v{BA+j}, v{RK+j}, 3
v_add_lshl_u32 v22, v{BA+j}, v{RK+j}, 2
ds_write_b8_d16_hi v23, v{REC+4*j+3} offset:{L_ID}
ds_write_b64 v21, {vr(REC+4*j,2)} offset:{L_YS}
ds_write_b32 v22, v{REC+4*j+2} offset:{L_PT}
""")
    a("s_mov_b64 exec, -1")

def list_lanes(a):
    a("v_lshrrev_b32 v17, 3, v16")
    a(rho(2, 17, 18))
    a("v_lshrrev_b32 v17, 2, v16")
    a(rho(3, 17, 18))
    a("v_bfe_u32 v17, v16, 1, 4")
    a(rho(4, 17, 18))
    a("v_and_b32 v14, 0x70, v0")

def list_addrs(a):
    a(f"""
v_add_lshl_u32 v2, v2, s{S_START}, 3
v_add_lshl_u32 v3, v3, s{S_START}, 3
v_add_lshl_u32 v4, v4, s{S_START}, 2
v_and_b32 v15, 3, v16
v_lshl_add_u32 v15, v15, 2, s{S_START}
""")

def ea_addrs(a, v_a0, v_a1, ring_off):
    a(f"""
v_bfe_u32 v17, v16, 3, 2
v_and_b32 v18, 3, v16
v_lshl_or_b32 v17, v17, 2, v18
v_lshlrev_b32 v17, 5, v17
v_lshrrev_b32 v18, 5, v16
v_lshl_or_b32 v17, v18, 4, v17
v_bfe_u32 v18, v16, 2, 1
v_mul_u32_u24 v18, {OOB + 16}, v18
v_xor_b32 v17, v18, v17
s_add_u32 s{S_T0}, s{S_RING}, {ring_off}
v_add_u32 v{v_a0}, s{S_T0}, v17
v_xor_b32 v17, {OOB + 16}, v17
v_add_u32 v{v_a1}, s{S_T0}, v17
""")

def valid(a, k):
    a(f"""
s_cmp_ge_i32 s{S_REM}, {k}
s_cselect_b32 s{S_VAL}, s{S_VON}, s{S_VOFF}
""")

def dma_e(a, v, off, restore=True):
    a(f"""
s_add_u32 m0, s{S_RING}, {off}
s_mov_b32 exec_hi, 0
buffer_load_dwordx4 v{v}, {srd(SRD_E)}, s{S_VAL} offen lds
""")
    if restore: a("s_mov_b32 exec_hi, -1")

def align(a, k):
    if k is None: return
    a(".p2alignl 5, 0xbf800000")
    for _ in range(k): a("s_nop 0")

def prio_init(a):
    a(f"""
s_max_u32 s{S_T0}, s{S_NB}, 1
v_cvt_f32_u32 v17, s{S_T0}
v_rcp_f32 v17, v17
s_and_b32 s{S_PADDR}, s{S_WAVE}, 3
s_lshl_b32 s{S_PADDR}, s{S_PADDR}, 2
v_mul_f32 v17, 0x47800000, v17
s_add_u32 s{S_PADDR}, s{S_PADDR}, {L_FLAG + 16}
v_cvt_u32_f32 v17, v17
s_cmp_ge_u32 s{S_WAVE}, 4
s_cselect_b32 s{S_PSGN}, -1, 1
v_readfirstlane_b32 s{S_PINC}, v17
s_mul_i32 s{S_PINC}, s{S_PINC}, s{S_PSGN}
s_mov_b32 s{S_PVAL}, 0
""")
def prio_addr(va, vd): return [f"v_lshl_add_u32 v{va}, v0, 14, s{S_PADDR}", f"v_mov_b32 v{vd}, s{S_PINC}"]
def prio_add(va, vd): return ("pr", f"ds_add_rtn_u32 v{vd}, v{va}, v{vd}")
def prio_read(vd): return [f"v_readfirstlane_b32 s{S_PVAL}, v{vd}", f"s_mul_i32 s{S_PVAL}, s{S_PVAL}, s{S_PSGN}"]
def prio_set(base=0):
    return [f"s_cmp_ge_i32 s{S_PVAL}, 0", f"s_setprio {base}", "s_cbranch_scc1 1", f"s_setprio {base+1}"]

M3, M1, XR, G, T1, T2, T3, ACC = 6, 8, (10, 12), (16, 24), 32, 48, 64, 81

def dma_x(a, v, slot, fill):
    for b in range(3):
        a(f"s_add_u32 m0, s{S_RING}, {b*LINE + slot*1024 - 128*(b+1)}")
        a(fill[b] if b < len(fill) else "s_nop 0")
        a(f"buffer_load_dwordx4 v{v}, {srd(SRD_X)}, s{S_VAL} offen offset:{128*(b+1)} lds")

GG, XX, MT, EC = 16, (20, 24, 28), 10, 7

def lane_consts_b(a):
    list_lanes(a)
    ea_addrs(a, 5, 80, RB_EA)
    a(f"""
v_lshrrev_b32 v18, 4, v16
v_lshlrev_b32 v17, 5, v18
v_and_b32 v18, 3, v16
v_lshl_add_u32 v17, v18, 3, v17
v_add_u32 v17, s{S_RING}, v17
v_bfe_u32 v18, v16, 2, 2
v_min_u32 v19, 2, v18
v_mul_u32_u24 v19, {LINE}, v19
v_cmp_eq_u32 vcc, 2, v18
v_mov_b32 v20, {OOB + 192}
v_bfe_u32 v21, v16, 3, 1
v_cndmask_b32 v19, v19, v20, vcc
v_add_u32 v1, v17, v19
v_and_b32 v18, 1, v18
v_cmp_eq_u32 vcc, 0, v18
v_mul_u32_u24 v21, {LINE}, v21
s_nop 0
v_cndmask_b32 v21, v21, v20, vcc
v_add_u32 v6, v17, v21
""")

def pass_b(a, name, opt):
    si = S_IDX[0]
    prio = opt.get('prio', 2)
    def xread(ds, p, e):
        o = ((2*p + (e >> 3)) & 3)*1024 + (e & 7)*128
        ds.op(f"x{e}", f"ds_read_b64_tr_b16 {vr(XX[e%3],2)}, v1 offset:{o}")
        ds.op(f"x{e}", f"ds_read_b64_tr_b16 {vr(XX[e%3]+2,2)}, v6 offset:{o}")
    def wr(tag, dst, path, h): return (f"{tag}{h}", f"ds_read_b128 {vr(dst,4)}, v0 offset:{L_WR + (path*2+h)*1024}")
    W1 = [wr("W1", T3+4*h, 3, h) for h in range(2)]
    W2 = [wr("W2", T3+8+4*h, 4, h) for h in range(2)]
    W3 = [wr("W3", (XX[0], GG)[h], 1, h) for h in range(2)]
    AR = (XX[1], XX[2])
    def ar(p, h): return (f"A{h}", f"ds_read_b128 {vr(AR[h],4)}, v{(5, 80)[h]} offset:{p*512}")
    def tail_reads(off):
        return [("ys", f"ds_read_b64 {vr(T2,2)}, v3 offset:{L_YS + 128*off}"),
                ("sr", f"ds_read_u16 v{T2+2}, v2 offset:{L_YS + 6 + 128*(off+1) + 64}"),
                ("pt", f"ds_read_b32 v{T2+3}, v4 offset:{L_PT + 64*(off+2)}"),
                ("id", f"ds_read_b32 v{T2+4}, v15 offset:{L_ID + 16*off}")]
    if opt.get('solo'): a(f"s_cmp_ge_u32 s{S_WAVE}, 4\ns_cselect_b32 s{S_NB}, 0, s{S_NB}")
    if prio: prio_init(a)
    list_addrs(a)
    if opt.get('ahead', 0):
        a(f"""
s_lshl_b32 s{S_T0}, s{S_WAVE}, 8
s_add_u32 s{S_T0}, s{S_T0}, s2
s_lshl_b32 s{S_PFO}, s{S_T0}, 14
s_sub_u32 s{S_T0}, {1563 + opt.get('lead', 190)}, s{S_T0}
s_mul_i32 s{S_T0}, s{S_T0}, s{S_NB}
s_mul_i32 s{S_T0}, s{S_T0}, 42
s_ashr_i32 s{S_PF}, s{S_T0}, 16
""")
    a(f"""
s_sub_u32 s{S_REM}, s{S_NB}, 1
s_waitcnt lgkmcnt(0)
s_barrier
""")
    stamp(a, opt, 1)
    stamp(a, opt, 4, 1)
    ds = DS(a)
    for t in range(2): ds.op(f"pt{t}", f"ds_read_b32 v{T1+8+t}, v4 offset:{L_PT + 64*t}")
    for h in range(3): ds.op(f"sr{h}", f"ds_read_u16 v{T1+10+h}, v2 offset:{L_YS + 6 + 64*h}")
    for op in tail_reads(0) + W1: ds.op(*op)
    ds.need("sr2")
    for t in range(2): a(f"v_and_or_b32 v{T1+8+t}, v0, 16, v{T1+8+t}")
    for h in range(3): a(f"v_lshl_or_b32 v{T1+10+h}, v{T1+10+h}, 9, v14")
    valid(a, 0)
    dma_e(a, T1+8, RB_EA)
    dma_x(a, T1+10, 0, [])
    if opt.get('startbar', 0): a("s_barrier")
    for r in range(ACC, ACC + opt.get('zsplit', 60)): a(f"v_mov_b32 v{r}, 0")
    dma_x(a, T1+11, 1, [])
    valid(a, 1)
    dma_e(a, T1+9, RB_EA + 512)
    dma_x(a, T1+12, 2, [])
    for r in range(ACC + opt.get('zsplit', 60), 256): a(f"v_mov_b32 v{r}, 0")
    a(f"s_cmp_eq_u32 s{S_NB}, 0\ns_cbranch_scc1 {name}_b_done")
    ds.drain()
    a("s_waitcnt vmcnt(10)")
    stamp(a, opt, 5, 1)
    for op in (ar(0, 0), W2[0], ar(0, 1)): ds.op(*op)
    entry = list(ds.q)
    align(a, opt.get('alb'))
    a(f"{name}_b_loop:")
    for p in range(2):
        ds = DS(a, entry)
        def big(tag, tile, w, h):
            ds.need(f"A{h}", f"{tag}{h}")
            a(f"v_mfma_f32_32x32x16_bf16 {vr(tile,16)}, {vr(AR[h],4)}, {vr(w,4)}, {vr(tile,16) if h else 0}")
        def m0x(b, slot): return f"s_add_u32 m0, s{S_RING}, {b*LINE + slot*1024 - 128*(b+1)}"
        def ldx(v, b): return f"buffer_load_dwordx4 v{v}, {srd(SRD_X)}, s{S_VAL} offen offset:{128*(b+1)} lds"
        if p == 0 and opt.get('ahead', 0):
            a(f"s_cmp_le_i32 s{S_REM}, s{S_PF}\ns_cbranch_scc1 {name}_b_ahead\n{name}_b_back:")
        if opt.get('rprio'): a("s_setprio 0")
        big("W1", T1, T3, 0)
        ds.op(*W2[1]); ds.op(*W3[0]); ds.op(*W3[1])
        a(f"""
v_perm_b32 v{M1}, v{T2+1}, v{T2}, v{MT}
v_perm_b32 v{M1+1}, v{T2+1}, v{T2}, v{MT+1}
v_xor_b32 v{M1}, v{M1}, v{MT+2}
v_xor_b32 v{M1+1}, v{M1+1}, v{MT+3}
""")
        big("W1", T1, T3+4, 1)
        a(f"v_lshl_or_b32 v{T3}, v{T2+2}, 9, v14\nv_and_or_b32 v{T3+1}, v0, 16, v{T2+3}")
        for i in range(4): a(f"v_readlane_b32 s{si+i}, v{T2+4}, {i}")
        sl = (2*p + 3) & 3
        a(m0x(0, sl))
        big("W2", T2, T3+8, 0)
        a(f"{ldx(T3, 0)}\n{m0x(1, sl)}")
        ds.drain()
        a(f"{ldx(T3, 1)}\n{m0x(2, sl)}")
        big("W2", T2, T3+12, 1)
        a(ldx(T3, 2))
        valid(a, 2)
        dma_e(a, T3+1, RB_EA + 512*p)
        big("W3", T3, XX[0], 0)
        a("s_waitcnt vmcnt(11)")
        xread(ds, p, 0); xread(ds, p, 1)
        big("W3", T3, GG, 1)
        tr_ = tail_reads(p+1)
        pre = {5: [f"v_lshl_or_b32 v{T1+1}, v{T1+1}, 9, v14"]}
        if p == 1: pre[13] = ["v_add_u32 v2, 256, v2", "v_add_u32 v3, 256, v3", "v_add_u32 v4, 128, v4", "v_add_u32 v15, 32, v15"]
        aux = {2: [("sm", f"ds_read_u16 v{T1+1}, v2 offset:{L_YS + 6 + 128*(p+2)}")],
               4: tr_[:2], 8: tr_[2:3], 10: tr_[3:], 12: W1}
        if prio == 1 or (prio == 2 and p == 0):
            pre[1] = prio_addr(T1, T3); aux[1] = [prio_add(T1, T3)]
            pre[4] = prio_read(T3) + ([] if opt.get('rprio') else prio_set())
        if opt.get('rprio'):
            for l in prio_set(1): a(l)
        for e in range(16):
            x = XX[e % 3]
            if e in (8, 9, 10): a(m0x(e-8, 2*p))
            ds.need(f"x{e}", vm=7 if e == 6 else None)
            if e in (8, 9, 10): a(f"{ldx(T1+1, e-8)}\ns_set_gpr_idx_mode 0")
            a(f"v_mfma_f32_4x4x4_16b_bf16 {vr(GG,4)}, {vr(M1,2)}, {vr(x,2)}, 0 cbsz:4 abid:{e}")
            for l in pre.get(e, []): a(l)
            a(f"s_set_gpr_idx_on s{si + 2*(e >> 3) + (e & 1)}, 0x8")
            if (e & 1) and (e & 7) != 7:
                r = si + 2*(e >> 3)
                a(f"s_lshr_b64 s[{r}:{r+1}], s[{r}:{r+1}], 8")
            for op in aux.get(e, []): ds.op(*op)
            if e < 14: xread(ds, p, e+2)
            elif e == 14: ds.op(*ar(p ^ 1, 0)); ds.op(*W2[0])
            else: ds.op(*ar(p ^ 1, 1))
            if e == 0: a("s_nop 0")
            for i, src in enumerate((x+2, x+3, x+1)): a(f"v_fmac_f32 v{ACC+4+i}, v{src}, v{T1+e}")
            for i in range(4): a(f"v_fmac_f32 v{ACC+i}, v{GG+i}, v{(T2, T2, T2, T3)[i]+e}")
            if e == 15: a("s_set_gpr_idx_off")
            elif e + 1 not in (8, 9, 10): a("s_set_gpr_idx_mode 0")
        a(f"s_sub_u32 s{S_REM}, s{S_REM}, 1\ns_cbranch_scc1 {name}_b_done")
        assert ds.q == entry, (ds.q, entry)
    a(f"s_branch {name}_b_loop")
    if opt.get('ahead', 0):
        a(f"""
{name}_b_ahead:
v_lshlrev_b32 v{T1}, 3, v0
s_mov_b32 m0, {L_MT}
s_mov_b32 s{S_PF}, -100
s_mov_b32 exec_hi, 0
""")
        for i in range(4): a(f"buffer_load_dword v{T1}, {srd(SRD_X)}, s{S_PFO} offen lds\ns_add_u32 s{S_PFO}, s{S_PFO}, 4096")
        a(f"s_mov_b32 exec_hi, -1\ns_branch {name}_b_back")
    a(f"{name}_b_done:")

def pack(a, ops, spare):
    ops, spare, moves = list(ops), list(spare), []
    while ops:
        for k, (d, x, y) in enumerate(ops):
            if not any(d in o[1:] for j, o in enumerate(ops) if j != k): break
        else:
            k = 0; d, x, y = ops[0]; t = spare.pop(); moves.append((d, t)); d = t
        a(f"v_cvt_pk_bf16_f32 v{d}, v{x}, v{y}"); ops.pop(k)
    for d, t in moves: a(f"v_mov_b32 v{d}, v{t}")

ORD_B = (3, 4, 0, 5, 1, 6, 2)
ORD_A = (2, 1, 0, 3)
PB, ACA = 68, 156
TA0, TA2 = 32, 48
SB_ = (10, 12, 64, 66)
M2, SELA, AA, WA = 8, 6, 16, 24

def pass_a(a, name, opt):
    def dma_s(v, slot, fill="s_nop 0"):
        a(f"s_add_u32 m0, s{S_RING}, {slot*1024}\n{fill}\nbuffer_load_dwordx4 v{v}, {srd(SRD_X)}, s{S_VAL} offen lds")
    SR = SB_ + (AA, AA+2, AA+4, AA+6)
    def sread(c, m):
        slot = 2*c + (m >> 2)
        return (f"s{m}", f"ds_read_b64_tr_b16 {vr(SR[m],2)}, v1 offset:{slot*1024 + (m & 3)*256}")
    def next_reads(c, off):
        r = [("sr1", f"ds_read_u16 v{TA2+2}, v2 offset:{L_YS + 6 + 128*(off+2) + 64}"),
             ("sr0", f"ds_read_u16 v{TA2+3}, v2 offset:{L_YS + 6 + 128*(off+3)}"),
             ("pt", f"ds_read_b32 v{TA2+5}, v4 offset:{L_PT + 64*(off+3)}")]
        r += [(f"W0{h}", f"ds_read_b128 {vr(TA2+8+4*h,4)}, v0 offset:{L_WR + h*1024}") for h in range(2)]
        r += [("A0", f"ds_read_b128 {vr(AA,4)}, v5 offset:{c*512}"),
              ("A1", f"ds_read_b128 {vr(AA+4,4)}, v7 offset:{c*512}")]
        r += [sread(c, m) for m in range(4)]
        r += [("ys", f"ds_read_b64 {vr(TA2,2)}, v3 offset:{L_YS + 128*off}"),
              ("id", f"ds_read_b32 v{TA2+4}, v15 offset:{L_ID + 16*off}")]
        return r
    a(f"""
s_waitcnt vmcnt(0) lgkmcnt(0)
s_mul_i32 s{S_T1}, s{S_WAVE}, 5120
s_add_u32 s{S_T1}, s{S_T1}, 10240
""")
    for j in range(5):
        a(f"s_add_u32 m0, s{S_RING}, {RA_WS}\ns_nop 0\nbuffer_load_dwordx4 v0, {srd(SRD_W)}, s{S_T1} offen offset:{1024*j if j < 4 else 0} lds"
          if j < 4 else
          f"s_add_u32 m0, s{S_RING}, {RA_WS+4096}\ns_add_u32 s{S_T1}, s{S_T1}, 4096\nbuffer_load_dwordx4 v0, {srd(SRD_W)}, s{S_T1} offen lds")
    a("v_lshrrev_b32 v16, 4, v0")
    list_lanes(a)
    list_addrs(a)
    ds = DS(a)
    for h in range(5): ds.op(f"sr{h}", f"ds_read_u16 v{TA0+h}, v2 offset:{L_YS + 6 + 64*h}")
    for t in range(3): ds.op(f"pt{t}", f"ds_read_b32 v{TA0+8+t}, v4 offset:{L_PT + 64*t}")
    ea_addrs(a, 5, 7, RA_EA)
    a(f"""
v_bfe_u32 v17, v16, 2, 1
v_xor_b32 v17, 1, v17
v_mul_u32_u24 v17, {OOB + 64}, v17
v_bfe_u32 v18, v16, 3, 1
v_lshl_add_u32 v17, v18, 7, v17
v_lshrrev_b32 v18, 4, v16
v_lshl_add_u32 v17, v18, 5, v17
v_and_b32 v18, 3, v16
v_lshl_add_u32 v17, v18, 3, v17
v_add_u32 v1, s{S_RING}, v17
v_mul_u32_u24 v19, 0x202, v18
v_add_u32 v19, 0x0c0c0100, v19
v_cmp_eq_u32 vcc, 3, v18
v_mov_b32 v20, 0x0c0c0c0c
v_mov_b32 v21, 0x3f80
v_cndmask_b32 v19, v19, v20, vcc
v_cndmask_b32 v21, 0, v21, vcc
v_and_b32 v18, 4, v16
v_lshlrev_b32 v18, 2, v18
v_alignbit_b32 v{SELA}, v19, v19, v18
v_lshlrev_b32 v{M2+1}, v18, v21
s_sub_u32 s{S_REM}, s{S_NB}, 1
""")
    ds.drain()
    for h in range(5): a(f"v_lshl_or_b32 v{TA0+h}, v{TA0+h}, 9, v14")
    for t in range(3): a(f"v_and_or_b32 v{TA0+8+t}, v0, 16, v{TA0+8+t}")
    for t in range(3):
        valid(a, t)
        dma_s(TA0+2*t, 2*t)
        dma_e(a, TA0+8+t, RA_EA + 512*t)
        if t < 2: dma_s(TA0+2*t+1, 2*t+1)
    for h in range(2): ds.op(f"W2{h}", f"ds_read_b128 {vr(WA+4*h,4)}, v0 offset:{L_WR + (4+h)*1024}")
    a(f"""
v_lshrrev_b32 v17, 2, v0
s_lshl_b32 s{S_T0}, s{S_NB}, 4
s_mov_b32 s{S_T1}, 0x00ff00ff
s_mov_b32 s{S_T2}, 0x007c007c
s_mov_b32 s{S_T3}, 0x7c007c00
v_mov_b32 v21, 37
{name}_reidx:
v_cmp_gt_u32 vcc, s{S_T0}, v17
s_and_b64 exec, exec, vcc
s_cbranch_execz {name}_reidx_done
v_add_u32 v18, s{S_START}, v17
ds_read_b32 v19, v18 offset:{L_ID}
v_add_u32 v17, 256, v17
s_waitcnt lgkmcnt(0)
v_lshrrev_b32 v20, 8, v19
v_and_b32 v19, s{S_T1}, v19
v_and_b32 v20, s{S_T1}, v20
v_mul_u32_u24 v19, v19, v21
v_mul_u32_u24 v20, v20, v21
v_lshrrev_b32 v19, 6, v19
v_lshlrev_b32 v20, 2, v20
v_and_b32 v19, s{S_T2}, v19
v_and_or_b32 v19, v20, s{S_T3}, v19
ds_write_b32 v18, v19 offset:{L_ID}
s_branch {name}_reidx
{name}_reidx_done:
s_mov_b64 exec, -1
""")
    pack(a, [(PB + 12*ORD_B.index(i) + p, ACC+14*p+i, ACC+14*p+7+i) for p in range(12) for i in range(7)]
            + [(PB+84+i, ACC+168+2*i, ACC+168+min(2*i+1, 6)) for i in range(4)], range(48, 64))
    for r in range(ACA, 256): a(f"v_mov_b32 v{r}, 0")
    a(f"""
s_waitcnt vmcnt(6)
v_mov_b32 v17, {L_FLAG}
v_mov_b32 v18, 1
s_mov_b64 exec, 1
ds_add_u32 v17, v18
s_mov_b64 exec, -1
s_cmp_eq_u32 s{S_NB}, 0
s_cbranch_scc1 {name}_a_done
s_waitcnt lgkmcnt(0)
""")
    ds.q = []
    stamp(a, opt, 3)
    for tag, text in next_reads(0, 0): ds.op(tag, text)
    entry = list(ds.q)
    si = S_IDX[0]
    align(a, opt.get('ala'))
    a(f"{name}_a_loop:")
    for c in range(3):
        ds = DS(a, entry)
        pra = opt.get('prio', 2) == 1 or (opt.get('prio', 2) == 2 and c == 0)
        def big(tile, w, h): a(f"v_mfma_f32_32x32x16_bf16 {vr(tile,16)}, {vr(AA+4*h,4)}, {vr(w+4*h,4)}, {vr(tile,16) if h else 0}")
        def mul(tile, *ms):
            for m in ms:
                for i in range(2): a(f"v_mul_f32 v{tile+2*m+i}, v{tile+2*m+i}, v{SR[m]+i}")
        def cvt_t(*ms):
            for m in ms: a(f"v_cvt_pk_bf16_f32 v{TA0+2*m+1}, v{TA0+2*m}, v{TA0+2*m+1}")
        def cvt_u(*ms):
            for m in ms: a(f"v_cvt_pk_bf16_f32 v{TA0+2*m}, v{TA2+2*m}, v{TA2+2*m+1}")
        ds.need("s3")
        big(TA0, TA2+8, 0)
        a(f"v_lshl_or_b32 v{TA2+2}, v{TA2+2}, 9, v14")
        dma_s(TA2+2, (2*c+5) % 6, f"v_lshl_or_b32 v{TA2+3}, v{TA2+3}, 9, v14")
        valid(a, 3)
        a(f"s_add_u32 m0, s{S_RING}, {2*c*1024}")
        big(TA0, TA2+8, 1)
        a(f"buffer_load_dwordx4 v{TA2+3}, {srd(SRD_X)}, s{S_VAL} offen lds\nv_and_or_b32 v{TA2+5}, v0, 16, v{TA2+5}")
        dma_e(a, TA2+5, RA_EA + 512*c)
        ds.need("id", vm=6)
        a(f"v_perm_b32 v{M2}, v{TA2+1}, v{TA2}, v{SELA}")
        for i in range(4): a(f"v_readlane_b32 s{si+i}, v{TA2+4}, {i}")
        big(TA2, WA, 0)
        ds.op(*sread(c, 4)); ds.op(*sread(c, 5))
        mul(TA0, 0, 1)
        big(TA2, WA, 1)
        ds.op(*sread(c, 6)); ds.op(*sread(c, 7))
        mul(TA0, 2, 3); cvt_t(0, 1, 2, 3)
        ds.need("s5")
        mul(TA0, 4, 5); mul(TA2, 0, 1, 2, 3)
        ds.need("s7")
        cvt_u(0, 1, 2, 3)
        mul(TA0, 6, 7); mul(TA2, 4, 5)
        if pra:
            for l in prio_addr(TA2+6, TA2+7): a(l)
        cvt_t(4, 5, 6, 7)
        mul(TA2, 6, 7)
        cvt_u(4, 5, 6, 7)
        fill = ([prio_add(TA2+6, TA2+7)] if pra else []) + next_reads((c + 1) % 3, c+1)
        for e in range(16):
            a(f"s_set_gpr_idx_on s{si + 2*(e >> 3) + (e & 1)}, 0xc")
            if (e & 1) and (e & 7) != 7:
                q = si + 2*(e >> 3)
                a(f"s_lshr_b64 s[{q}:{q+1}], s[{q}:{q+1}], 8")
                if e < 8 or (pra and e == 9): ds.op(*fill.pop(0))
            else: ds.op(*fill.pop(0))
            a(f"v_mfma_f32_4x4x4_16b_bf16 {vr(ACA,4)}, {vr(M2,2)}, {vr(TA0+(e&14),2)}, {vr(ACA,4)} cbsz:4 abid:{e}")
        assert not fill
        a("s_set_gpr_idx_off")
        if pra:
            ds.need("pr")
            for l in prio_read(TA2+7) + prio_set(): a(l)
        if c == 2:
            a("v_add_u32 v2, 384, v2\nv_add_u32 v3, 384, v3\nv_add_u32 v4, 192, v4\nv_add_u32 v15, 48, v15")
        a(f"s_sub_u32 s{S_REM}, s{S_REM}, 1\ns_cbranch_scc1 {name}_a_done")
        assert ds.q == entry, (ds.q, entry)
    a(f"s_branch {name}_a_loop\n{name}_a_done:")

def epilogue(a, name, opt):
    PA = ACA
    DT = ((224, 240), (192, 208), (74, 176), (192, 208))
    AOP, WOP, TMP, ROW = 8, 24, (56, 57, 58, 59), 60
    nt = opt.get('store_nt', ' sc1')
    a(f"""
s_waitcnt lgkmcnt(0)
v_mov_b32 v7, {L_FLAG}
v_lshrrev_b32 v16, 4, v0
v_mul_u32_u24 v1, 56, v16
v_add_u32 v1, s{S_RING}, v1
v_lshrrev_b32 v17, 5, v16
v_bfe_u32 v18, v16, 2, 2
v_lshl_add_u32 v18, v17, 3, v18
v_mul_u32_u24 v2, 56, v18
v_bfe_u32 v18, v16, 4, 1
v_lshl_add_u32 v2, v18, 5, v2
v_and_b32 v18, 3, v16
v_lshl_add_u32 v2, v18, 3, v2
v_add_u32 v2, s{S_RING}, v2
v_add_u32 v3, {L_RING + RA_WS}, v0
v_add_u32 v4, {L_RING + RA_WS + 5*RING}, v0
v_and_b32 v18, 31, v16
v_lshlrev_b32 v18, 2, v18
s_lshl_b32 s{S_T0}, s{S_SB}, 9
v_add_u32 v5, s{S_T0}, v18
s_lshl_b32 s{S_T0}, s{S_WAVE}, 5
v_lshl_add_u32 v6, v17, 2, s{S_T0}
s_add_u32 s{S_T2}, s{S_WBASE}, s{S_WCNT}
s_cmp_ge_u32 s{S_T2}, s{S_TOTAL}
s_cselect_b32 s{SRD_O+2}, {0 if opt.get('nostore') else XB}, 0
s_lshl_b32 s{S_T3}, s2, 3
s_add_u32 s{S_T3}, s{S_T3}, s{S_WAVE}
s_lshl_b32 s{S_T3}, s{S_T3}, 15
{name}_spin:
ds_read_b32 v17, v7
s_waitcnt lgkmcnt(0)
v_readfirstlane_b32 s{S_T0}, v17
s_cmp_lt_u32 s{S_T0}, 8
s_cbranch_scc1 {name}_spin
""")
    def ga(i): return (PA + 2 + 12*ORD_A.index(i), PA + (i >> 1), i & 1)
    def gb(i): return (PB + 12*ORD_B.index(i), PB + 84 + (i >> 1), i & 1)
    groups = [(gb(3), 1, 0), (ga(3), 0, 0)]
    for j in range(3): groups += [(ga(j), 2, j+1), (gb(4+j), 3, j+1), (gb(j), 4, j+1)]
    NG = len(groups)
    ds = DS(a)
    def writes(g):
        base, tail, hi = groups[g][0]
        off = (g & 1) * TILE
        return [(f"w{g}", f"ds_write_b64 v1, {vr(base+2*q,2)} offset:{off + 8*q}") for q in range(6)] + \
               [(f"w{g}", f"ds_write_b16{'_d16_hi' if hi else ''} v1, v{tail} offset:{off + 48}")]
    def aread(m):
        g, t = divmod(m, 4)
        return [(f"a{m}", f"ds_read_b64_tr_b16 {vr(AOP+4*t+2*j,2)}, v2 offset:{(g & 1)*TILE + (16*t+4*j)*56}") for j in range(2)]
    def wread(n):
        g, i = divmod(n, 8)
        w, k = divmod(groups[g][1]*8 + i, 5)
        v, o = (3, w*RING) if w < 5 else (4, (w-5)*RING)
        return (f"W{n}", f"ds_read_b128 {vr(WOP+4*(n&7),4)}, v{v} offset:{o + k*1024}")
    def fin(comp):
        D, G_ = DT[comp], DT[0]
        out = []
        for r in range(13):
            t = TMP[r & 3]
            if comp: out += [f"v_mul_f32 v{D[u]+r}, v{D[u]+r}, v{G_[u]+r}" for u in range(2)]
            out += [f"v_cvt_pk_bf16_f32 v{t}, v{D[0]+r}, v{D[1]+r}"]
            if not comp:
                out += [f"v_mul_f32 v{D[u]+r}, 0xbfb8aa3b, v{D[u]+r}" for u in range(2)]
                out += [f"v_exp_f32 v{D[u]+r}, v{D[u]+r}" for u in range(2)]
            out += [f"buffer_store_dword v{t}, v{ROW+r}, {srd(SRD_O)}, 0 offen offset:{128*comp}{nt}"]
            if not comp:
                out += [f"v_add_f32 v{D[u]+r}, 1.0, v{D[u]+r}" for u in range(2)]
                out += [f"v_rcp_f32 v{D[u]+r}, v{D[u]+r}" for u in range(2)]
        return out
    a("s_waitcnt vmcnt(0)")
    for op in writes(0) + aread(0) + [wread(0), wread(1)] + aread(1) + [wread(2), wread(3)]: ds.op(*op)
    pack(a, [(ga(i)[0] + p, ACA+8*p+i, ACA+8*p+4+i) for p in range(12) for i in range(4)]
            + [(PA+i, ACA+96+2*i, ACA+97+2*i) for i in range(2)], range(40, 68))
    side = []
    for m in range(4*NG):
        g, t = divmod(m, 4)
        comp = groups[g][2]
        first = (g == 0 or groups[g-1][2] != comp) and t == 0
        D = DT[comp]
        ops = []
        if g+1 < NG and t < 2: ops += writes(g+1)[4*t:4*t+4]
        if m+2 < 4*NG: ops += aread(m+2) + [wread(2*m+4), wread(2*m+5)]
        if m == 2: ops += [("row", f"ds_read_u8 v{ROW+r}, v6 offset:{L_INV + (r >> 2)*8 + (r & 3)}") for r in range(13)]
        if m == 6: side = [f"v_lshl_add_u32 v{ROW+r}, v{ROW+r}, 17, v5" for r in range(13)]
        ds.need(f"a{m}", f"W{2*m+1}")
        for u in range(2):
            a(f"v_mfma_f32_32x32x16_bf16 {vr(D[u],16)}, {vr(AOP+4*t,4)}, {vr(WOP+4*((2*m+u)&7),4)}, {0 if first else vr(D[u],16)}")
            k = (len(ops) + 1 - u) // (2 - u)
            for op in ops[:k]: ds.op(*op)
            ops = ops[k:]
            if not first:
                for l in side[:opt.get('side', 6)]: a(l)
                side = side[opt.get('side', 6):]
        if t == 3 and (g+1 == NG or groups[g+1][2] != comp):
            for l in side: a(l)
            a(f"s_cmp_lg_u32 s{S_TOTAL}, s{S_WCNT}\ns_cbranch_scc1 {name}_multi{comp}\n{name}_fin{comp}:")
            side = fin(comp)
    a("s_nop 9")
    for l in side: a(l)
    a(f"{name}_next3:")
    stamp(a, opt, 5)
    stamps_out(a, opt)
    a(f"""
s_cmp_ge_u32 s{S_T2}, s{S_TOTAL}
s_cbranch_scc1 {name}_end
s_mov_b32 s{S_WBASE}, s{S_T2}
s_setprio 0
s_waitcnt vmcnt(0) lgkmcnt(0)
s_barrier
s_branch {name}_window
""")
    for comp in range(4):
        D = DT[comp]
        a(f"""
{name}_multi{comp}:
s_nop 15
v_lshrrev_b32 v7, 2, v0
s_add_u32 s{S_T0}, s{S_T3}, {comp*8192}
s_add_u32 s{S_T1}, s{S_T0}, 4096
s_cmp_eq_u32 s{S_WBASE}, 0
s_cbranch_scc1 {name}_mst{comp}
""")
        for u in range(2):
            for r in range(13):
                a(f"buffer_load_dword v{TMP[0]}, v7, {srd(SRD_S)}, s{S_T0+u} offen offset:{256*r} sc1\ns_waitcnt vmcnt(0)\nv_add_f32 v{D[u]+r}, v{D[u]+r}, v{TMP[0]}")
        a(f"{name}_mst{comp}:")
        for u in range(2):
            for r in range(13):
                a(f"buffer_store_dword v{D[u]+r}, v7, {srd(SRD_S)}, s{S_T0+u} offen offset:{256*r}")
        a(f"s_waitcnt vmcnt(0)\ns_branch {name}_fin{comp}")
    a(f"{name}_end:\ns_endpgm")

def dump_regs(a):
    a("s_waitcnt vmcnt(0) lgkmcnt(0)\ns_nop 15")
    a.srd(96, 76, 128 << 20, 64 << 20)
    a(f"""
v_lshrrev_b32 v0, 2, v0
s_lshl_b32 s{S_T0}, s2, 3
s_add_u32 s{S_T0}, s{S_T0}, s{S_WAVE}
s_lshl_b32 s{S_T0}, s{S_T0}, 16
v_mov_b32 v1, s{S_START}
v_mov_b32 v2, s{S_NB}
""")
    for r in range(256):
        a(f"buffer_store_dword v{r}, v0, s[96:99], s{S_T0} offen\ns_add_u32 s{S_T0}, s{S_T0}, 256")
    a("s_endpgm")

def dump_lds(a):
    a("s_waitcnt vmcnt(0) lgkmcnt(0)\ns_barrier")
    a.srd(96, 76, 16 << 20, 200 << 20)
    a(f"""
s_lshl_b32 s{S_T0}, s2, 16
s_lshl_b32 s{S_T1}, s{S_WAVE}, 13
v_add_u32 v21, s{S_T1}, v0
""")
    for j in range(8):
        a(f"ds_read_b128 v[24:27], v21\ns_waitcnt lgkmcnt(0)\nbuffer_store_dwordx4 v[24:27], v21, s[96:99], s{S_T0} offen\ns_waitcnt vmcnt(0)\nv_add_u32 v21, 1024, v21")

def stamp(a, opt, i, grp=0):
    if opt.get('stamps') and (i in (0, 6) or grp == opt.get('grp', 0)):
        a(f"{'s_memtime' if opt['stamps'] == 2 else 's_memrealtime'} s[100:101]\ns_waitcnt lgkmcnt(0)\ns_mov_b32 s{93+i}, s100")

def stamps_out(a, opt):
    if opt.get('stamps'):
        a("s_waitcnt vmcnt(0)")
        stamp(a, opt, 6)
        a.srd(SRD_S, 76, 1 << 20, 240 << 20)
        a(f"s_lshl_b32 s{S_T0}, s2, 3\ns_add_u32 s{S_T0}, s{S_T0}, s{S_WAVE}\ns_lshl_b32 s{S_T0}, s{S_T0}, 5\nv_mov_b32 v0, 0")
        for i in range(7):
            a(f"v_mov_b32 v1, s{93+i}\nbuffer_store_dword v1, v0, {srd(SRD_S)}, s{S_T0} offen offset:{4*i}")
        a(f"v_mov_b32 v1, s{S_NB}\nbuffer_store_dword v1, v0, {srd(SRD_S)}, s{S_T0} offen offset:28\ns_endpgm")

def gen_k2(name, **opt):
    a = Asm()
    prologue(a, name, opt)
    if opt.get('dump'): dump_lds(a)
    pass_b(a, name, opt)
    if opt.get('dump') == 'b': dump_regs(a)
    stamp(a, opt, 2)
    pass_a(a, name, opt)
    if opt.get('dump') == 'a': dump_regs(a)
    stamp(a, opt, 4)
    epilogue(a, name, opt)
    if opt.get('drope'):
        import re
        lo = a.lines.index(f"{name}_spin:") + 6; hi = a.lines.index(f"{name}_next3:")
        a.lines[lo:hi] = [l for l in a.lines[lo:hi] if not re.search(opt['drope'], l)]
    for key, ps in (('drop', 'b'), ('dropa', 'a')):
        if opt.get(key):
            import re
            lo = a.lines.index(f"{name}_{ps}_loop:"); hi = a.lines.index(f"{name}_{ps}_done:")
            a.lines[lo:hi] = [l for l in a.lines[lo:hi] if not re.search(opt[key], l)]
    return a.text()
```

```python
from common import *

NSLOT = 3504
CAPW = NSLOT - 120
L_WR = 0
L_MT = 10240
L_FLAG = L_MT + 128
L_INV = L_MT + 256
L_YS = L_INV + 256
L_PT = L_YS + NSLOT * 8
L_ID = L_PT + NSLOT * 4
L_RING = 56320
RING = 13440
LINE = 4160
RB_EA = 12416
RA_EA = 6144
RA_WS = 7680
TILE = 3584
K2_LDS = L_RING + 8 * RING
assert L_ID + NSLOT <= L_RING and K2_LDS == 163840
L_HIST = L_RING
L_DEG = L_HIST + 1024
L_BASE = L_DEG + 1024
L_MAP = L_BASE + 1024
L_CNT = L_MAP + 1024
L_WTOT = L_CNT + 256
L_IDXL = L_WTOT + 64
OOB = 0x40000
XB, EB = N * 512, E * 32

S_WAVE, S_SB, S_RING, S_WBASE, S_TOTAL, S_WCNT, S_START, S_NB, S_REM = 3, 32, 33, 34, 35, 36, 37, 38, 39
SRD_X, SRD_E, SRD_T, SRD_O, SRD_W, SRD_M, SRD_S = 4, 8, 12, 16, 20, 24, 28
S_IDX = (40, 44)
S_T0, S_T1, S_T2, S_T3 = 48, 49, 50, 51
S_MASK = 52
S_VAL, S_ADV, S_HALF = 80, 81, 82
SRD_K = 84
S_VON, S_VOFF, S_PADDR, S_PINC, S_PSGN, S_PVAL, S_PF, S_PFO = 68, 69, 70, 71, 66, 67, 78, 79

def srd(d): return f"s[{d}:{d+3}]"
def vr(b, n): return f"v[{b}:{b+n-1}]"

class DS:
    def __init__(self, a, init=()):
        self.a, self.q = a, list(init)
    def op(self, tag, text):
        self.a(text); self.q.append(tag)
    def need(self, *tags, vm=None):
        idx = [i for i, t in enumerate(self.q) if t in tags]
        if not idx:
            if vm is not None: self.a(f"s_waitcnt vmcnt({vm})")
            return False
        n = len(self.q) - 1 - max(idx)
        self.a(f"s_waitcnt {'' if vm is None else 'vmcnt(%d) ' % vm}lgkmcnt({min(n, 15)})")
        self.q = self.q[len(self.q) - min(n, 15):] if n else []
        return True
    def drain(self):
        if self.q: self.a("s_waitcnt lgkmcnt(0)")
        self.q = []

def rho(v_dst, v_e, tmp):
    return f"""
v_bfe_u32 v{v_dst}, v{v_e}, 1, 2
v_and_b32 v{tmp}, 1, v{v_e}
v_lshl_or_b32 v{v_dst}, v{tmp}, 2, v{v_dst}
v_and_or_b32 v{v_dst}, v{v_e}, 8, v{v_dst}
"""

def prologue(a, name, opt):
    a(f"""
{name}:
s_cmp_ge_u32 s2, 256
s_cbranch_scc1 {name}_end
s_load_dwordx2 s[72:73], s[0:1], {KA_X}
s_load_dwordx2 s[74:75], s[0:1], {KA_OUT}
s_load_dwordx2 s[76:77], s[0:1], {KA_WS}
v_lshrrev_b32 v1, 6, v0
s_and_b32 s{S_SB}, s2, 7
v_readfirstlane_b32 s{S_WAVE}, v1
s_lshl_b32 s{S_SB}, s{S_SB}, 5
s_lshr_b32 s{S_T0}, s2, 3
s_add_u32 s{S_SB}, s{S_SB}, s{S_T0}
s_mul_i32 s{S_RING}, s{S_WAVE}, {RING}
s_add_u32 s{S_RING}, s{S_RING}, {L_RING}
s_mov_b32 s{S_VON}, {0x80000000 if opt.get('nomem') else 0}
s_mov_b32 s{S_VOFF}, 0x80000000
s_mov_b32 s{S_WBASE}, 0
s_waitcnt lgkmcnt(0)
""")
    stamp(a, opt, 0)
    a.srd(SRD_T, 76, NCH * 1024, WS_TAB)
    a(f"""
{name}_window:
v_mbcnt_lo_u32_b32 v16, -1, 0
v_mbcnt_hi_u32_b32 v16, -1, v16
v_lshlrev_b32 v0, 4, v16
s_lshl_b32 s{S_T0}, s{S_WAVE}, 6
v_add_u32 v17, s{S_T0}, v16
v_lshrrev_b32 v26, 1, v17
v_lshlrev_b32 v19, 10, v26
s_lshl_b32 s{S_T1}, s{S_SB}, 2
buffer_load_dword v27, v19, {srd(SRD_T)}, s{S_T1} offen
v_mov_b32 v21, 0
""")
    a.srd(SRD_X, 72, XB)
    a.srd(SRD_E, 76, EB, WS_EAS)
    a.srd(SRD_O, 74, XB)
    a.srd(SRD_W, 76, 51200, WS_WR)
    a.srd(SRD_M, 76, E * 8, WS_META)
    a.srd(SRD_K, 76, E * 4, WS_KEY)
    a.srd(SRD_S, 76, 256 * 8 * 128 * 256, WS_SCR)
    mt = [0x05040c0c, 0x03020c0c, 0x80000000, 0,
              0x0c0c0504, 0x01000c0c, 0, 0x80000000,
              0x01000302, 0x0c0c0c0c, 0x8000, 0,
              0x03020100, 0x05040c0c, 0, 0,
              0x0c0c0100, 0, 0x0c0c0302, 0, 0x0c0c0504, 0, 0x0c0c0c0c, 0x3f80,
              0x01000c0c, 0, 0x03020c0c, 0, 0x05040c0c, 0, 0x0c0c0c0c, 0x3f800000]
    a(f"""
v_lshlrev_b32 v22, 2, v17
ds_write_b32 v22, v21 offset:{L_HIST}
v_lshlrev_b32 v22, 2, v16
v_mov_b32 v23, -1
v_mov_b32 v63, v17
s_cmp_lg_u32 s{S_WAVE}, 7
s_cbranch_scc1 {name}_nomt
ds_write_b32 v22, v21 offset:{L_CNT}
ds_write_b32 v22, v23 offset:{L_INV}
""")
    for i, c in enumerate(mt):
        if c: a(f"s_mov_b32 s{S_T1}, {c:#x}\nv_writelane_b32 v21, s{S_T1}, {i}")
    a(f"""
ds_write_b32 v22, v21 offset:{L_MT}
{name}_nomt:
""")
    lane_consts_b(a)
    npf0, npf = opt.get('pf0', 1), opt.get('prefetch', 1)
    a(f"""
s_lshr_b32 s{S_PFO}, s2, 3
s_lshl_b32 s{S_PFO}, s{S_PFO}, 15
v_lshrrev_b32 v8, 3, v63
v_and_b32 v9, 3, v63
v_max_u32 v9, 1, v9
v_lshlrev_b32 v9, 7, v9
v_lshl_add_u32 v8, v8, 9, v9
s_waitcnt vmcnt(0)
""")
    stamp(a, opt, 1, 1)
    def warm(n):
        for _ in range(n): a(f"buffer_load_dword v9, v8, {srd(SRD_X)}, s{S_PFO} offen\ns_add_u32 s{S_PFO}, s{S_PFO}, {1 << 20}")
    warm(npf0)
    a(f"""
s_lshl_b32 s{S_T1}, s{S_WAVE}, 10
s_mov_b32 m0, s{S_T1}
s_and_b32 s{S_T2}, s{S_T1}, 1024
buffer_load_dwordx4 v0, {srd(SRD_W)}, s{S_T1} offen lds
s_add_u32 s{S_T2}, s{S_T2}, 8192
s_mov_b32 m0, s{S_T2}
s_nop 0
buffer_load_dwordx4 v0, {srd(SRD_W)}, s{S_T2} offen lds
v_lshrrev_b32 v21, 16, v27
v_and_b32 v20, 0xffff, v27
v_and_b32 v23, 1, v16
v_cmp_eq_u32 vcc, 0, v23
s_nop 1
v_cndmask_b32 v22, 0, v21, vcc
""")
    a.scan64(22)
    a(f"""
s_nop 0
v_readlane_b32 s{S_T0}, v22, 63
s_lshl_b32 s{S_T1}, s{S_WAVE}, 2
s_add_u32 s{S_T1}, s{S_T1}, {L_WTOT}
v_mov_b32 v24, s{S_T1}
v_mov_b32 v25, s{S_T0}
ds_write_b32 v24, v25
v_and_b32 v24, 7, v16
v_lshlrev_b32 v24, 2, v24
v_add_u32 v24, {L_WTOT}, v24
v_sub_u32 v22, v22, v21
v_mul_u32_u24 v18, {CH}, v26
v_add_u32 v20, v20, v18
s_waitcnt lgkmcnt(0)
s_barrier
ds_read_b32 v25, v24
s_waitcnt lgkmcnt(0)
""")
    for sh in (1, 2, 4):
        a(f"s_nop 1\nv_add_u32_dpp v25, v25, v25 row_shr:{sh} row_mask:0xf bank_mask:0xf bound_ctrl:0")
    a(f"""
s_nop 0
v_readlane_b32 s{S_TOTAL}, v25, 7
v_readlane_b32 s{S_T1}, v25, s{S_WAVE}
s_sub_u32 s{S_T1}, s{S_T1}, s{S_T0}
s_sub_u32 s{S_T1}, s{S_T1}, s{S_WBASE}
s_sub_u32 s{S_WCNT}, s{S_TOTAL}, s{S_WBASE}
s_min_u32 s{S_WCNT}, s{S_WCNT}, {CAPW}
v_add_u32 v22, s{S_T1}, v22
v_sub_u32 v24, 0, v22
v_max_i32 v24, 0, v24
v_sub_u32 v25, {CAPW}, v22
v_min_i32 v25, v25, v21
v_add_u32 v24, v24, v23
v_sub_u32 v20, v20, v22
v_sub_u32 v25, v25, v24
v_add_lshl_u32 v22, v22, v24, 2
{name}_expand:
""")
    for k in range(8):
        a(f"v_cmpx_lt_i32 vcc, {2*k}, v25")
        if k in (0, 4): a(f"s_cbranch_execz {name}_expanded")
        a(f"ds_write_b32 v22, v20 offset:{L_IDXL + 8*k}")
    a(f"""
v_add_u32 v22, 64, v22
v_subrev_u32 v25, 16, v25
s_branch {name}_expand
{name}_expanded:
s_mov_b64 exec, -1
v_lshlrev_b32 v22, 2, v63
v_add_u32 v22, {L_IDXL}, v22
""")
    REC, RK, BA, PAD = 24, 56, 64, 72
    for j in range(7):
        a(f"v_add_u32 v{BA+j}, {512*j}, v63\nv_cmp_gt_u32 s[{S_MASK+2*j}:{S_MASK+2*j+1}], s{S_WCNT}, v{BA+j}")
    a("v_bfrev_b32 v23, 2")
    a("s_waitcnt lgkmcnt(0)\ns_barrier")
    stamp(a, opt, 2, 1)
    def pay(js):
        for j in js: a(f"buffer_load_dwordx2 {vr(REC+4*j,2)}, v{PAD+j}, {srd(SRD_M)}, 0 offen")
    for j in range(7): a(f"ds_read_b32 v{RK+j}, v22 offset:{2048*j}")
    for j in range(7):
        a(f"""
s_waitcnt lgkmcnt({6-j})
v_add_lshl_u32 v{RK+j}, v{RK+j}, v{BA+j}, 2
v_cndmask_b32 v{RK+j}, v23, v{RK+j}, s[{S_MASK+2*j}:{S_MASK+2*j+1}]
buffer_load_dword v{REC+4*j+2}, v{RK+j}, {srd(SRD_K)}, 0 offen
""")
    stamp(a, opt, 1, 3)
    for j in range(7): a(f"v_lshlrev_b32 v{PAD+j}, 1, v{RK+j}")
    a(f"v_and_b32 v17, 48, v0\nds_read_b128 {vr(MT,4)}, v17 offset:{L_MT}")
    zero(a, ACC, opt.get('z0', 180))
    def mask(j): return f"s_mov_b64 exec, s[{S_MASK+2*j}:{S_MASK+2*j+1}]"
    a("v_mov_b32 v23, 1")
    for j in range(7):
        a(f"""
s_waitcnt vmcnt({6-j})
v_bfe_u32 v{BA+j}, v{REC+4*j+2}, 16, 8
{mask(j)}
v_lshlrev_b32 v{BA+j}, 2, v{BA+j}
v_bfe_u32 v{RK+j}, v{REC+4*j+2}, 11, 5
ds_add_u32 v{BA+j}, v23 offset:{L_DEG}
v_lshlrev_b32 v{RK+j}, 2, v{RK+j}
""")
        if j == 0: stamp(a, opt, 2, 3)
        if j == 6: stamp(a, opt, 3, 3)
    a("s_mov_b64 exec, -1")
    stamp(a, opt, 4, 3)
    a(f"""
v_lshlrev_b32 v22, 2, v63
v_cmp_gt_u32 vcc, 200, v63
s_waitcnt lgkmcnt(0)
s_barrier
""")
    stamp(a, opt, 1, 2)
    stamp(a, opt, 5, 3)
    a(f"s_cmp_lt_u32 s{S_WAVE}, 4\ns_cbranch_scc1 {name}_rank")
    pay(range(4))
    a("s_barrier")
    pay(range(4, 7))
    a(f"s_branch {name}_nomap\n{name}_rank:")
    a(f"""
s_and_b64 exec, exec, vcc
ds_read_b32 v21, v22 offset:{L_DEG}
s_waitcnt lgkmcnt(0)
v_min_u32 v21, 63, v21
v_sub_u32 v21, 63, v21
v_lshlrev_b32 v21, 2, v21
ds_add_rtn_u32 v20, v21, v23 offset:{L_CNT}
s_mov_b64 exec, -1
v_lshlrev_b32 v19, 2, v16
s_waitcnt lgkmcnt(0)
s_barrier
""")
    stamp(a, opt, 2, 2)
    a(f"""
ds_read_b32 v18, v19 offset:{L_CNT}
s_waitcnt lgkmcnt(0)
v_mov_b32 v19, v18
""")
    a.scan64(19)
    a(f"""
v_sub_u32 v19, v19, v18
ds_bpermute_b32 v19, v21, v19
s_cmp_lg_u32 s{S_TOTAL}, s{S_WCNT}
s_cselect_b64 s[{S_T2}:{S_T3}], -1, 0
s_and_b64 exec, exec, vcc
s_waitcnt lgkmcnt(0)
v_add_u32 v19, v19, v20
v_cndmask_b32 v19, v19, v63, s[{S_T2}:{S_T3}]
v_lshrrev_b32 v18, 3, v19
v_bfe_i32 v20, v19, 3, 1
v_xor_b32 v19, v19, v20
v_and_b32 v19, 7, v19
v_lshl_add_u32 v20, v19, 5, v18
ds_write_b8 v20, v63 offset:{L_INV}
v_lshlrev_b32 v18, 16, v18
v_lshl_or_b32 v18, v19, 7, v18
ds_write_b32 v22, v18 offset:{L_MAP}
s_mov_b64 exec, -1
{name}_nomap:
""")
    a("s_waitcnt lgkmcnt(0)\ns_barrier")
    stamp(a, opt, 3, 2)
    for j in range(7): a(f"ds_read_b32 v{REC+4*j+3}, v{BA+j} offset:{L_MAP}")
    a(f"s_cmp_ge_u32 s{S_WAVE}, 4\ns_cbranch_scc1 {name}_nopay1")
    pay(range(3))
    a(f"{name}_nopay1:\ns_waitcnt lgkmcnt(0)")
    for j in range(7):
        a(f"v_add_u32_sdwa v{BA+j}, v{RK+j}, v{REC+4*j+3} dst_sel:DWORD dst_unused:UNUSED_PAD src0_sel:DWORD src1_sel:WORD_0")
    for j in range(7): a(f"{mask(j)}\nds_add_rtn_u32 v{RK+j}, v{BA+j}, v23 offset:{L_HIST}")
    a(f"s_mov_b64 exec, -1\ns_cbranch_scc1 {name}_nopay2")
    pay(range(3, 7))
    a(f"{name}_nopay2:")
    stamp(a, opt, 3, 1)
    a(f"""
s_waitcnt lgkmcnt(0)
s_barrier
""")
    stamp(a, opt, 4, 2)
    a(f"""
ds_read_b128 v[72:75], v0 offset:{L_HIST}
""")
    warm(npf)
    a(f"""
s_waitcnt lgkmcnt(0)
v_add_u32 v77, v72, v73
v_add_u32 v78, v77, v74
v_add_u32 v79, v78, v75
v_mov_b32 v71, v79
""")
    for sh in (1, 2, 4):
        a(f"s_nop 1\nv_add_u32_dpp v71, v71, v71 row_shr:{sh} row_mask:0xf bank_mask:0xf bound_ctrl:0")
    a(f"""
v_and_b32 v23, 7, v16
v_cmp_eq_u32 vcc, 7, v23
v_sub_u32 v76, 0, v71
v_and_b32 v76, 15, v76
v_cndmask_b32 v76, 0, v76, vcc
v_add_u32 v79, v79, v76
v_mov_b32 v76, v79
""")
    a.scan64(76)
    a(f"""
v_sub_u32 v76, v76, v79
v_add_u32 v79, v76, v78
v_add_u32 v78, v76, v77
v_add_u32 v77, v76, v72
ds_write_b128 v0, v[76:79] offset:{L_BASE}
s_lshl_b32 s{S_T0}, s{S_WAVE}, 3
s_add_u32 s{S_T1}, s{S_T0}, 7
v_readlane_b32 s{S_START}, v76, s{S_T0}
v_readlane_b32 s{S_T2}, v71, s{S_T1}
""")
    for j in range(7): a(f"ds_read_b32 v{BA+j}, v{BA+j} offset:{L_BASE}")
    a(f"""
s_add_u32 s{S_NB}, s{S_T2}, 15
s_lshr_b32 s{S_NB}, s{S_NB}, 4
s_lshl_b32 s{S_T3}, s{S_NB}, 4
s_sub_u32 s{S_HALF}, s{S_T3}, s{S_T2}
s_cmp_ge_u32 s{S_HALF}, 8
s_cselect_b32 s{S_HALF}, 0, -2
s_mov_b32 s{S_ADV}, 0
v_add_u32 v23, s{S_T2}, v16
v_cmp_gt_u32 vcc, s{S_T3}, v23
v_add_u32 v23, s{S_START}, v23
v_mov_b32 v18, 0
v_mov_b32 v19, 0xffff0000
v_mov_b32 v20, 0x1fffffe0
v_lshlrev_b32 v21, 3, v23
v_lshlrev_b32 v22, 2, v23
s_and_b64 exec, exec, vcc
ds_write_b64 v21, v[18:19] offset:{L_YS}
ds_write_b32 v22, v20 offset:{L_PT}
ds_write_b8 v23, v18 offset:{L_ID}
s_mov_b64 exec, -1
s_waitcnt lgkmcnt(0)
""")
    stamp(a, opt, 5, 2)
    a(f"s_mov_b32 s{S_T0}, 0x0c070302\ns_mov_b32 s{S_T1}, 0x05040100\ns_waitcnt vmcnt({npf})")
    for j in range(7):
        a(f"""
{mask(j)}
v_perm_b32 v20, v{REC+4*j+2}, v{REC+4*j+1}, s{S_T0}
v_perm_b32 v{REC+4*j+1}, v{REC+4*j+2}, v{REC+4*j+1}, s{S_T1}
v_lshlrev_b32 v{REC+4*j+2}, 5, v20
v_add_u32 v23, v{BA+j}, v{RK+j}
v_add_lshl_u32 v21, v{BA+j}, v{RK+j}, 3
v_add_lshl_u32 v22, v{BA+j}, v{RK+j}, 2
ds_write_b8_d16_hi v23, v{REC+4*j+3} offset:{L_ID}
ds_write_b64 v21, {vr(REC+4*j,2)} offset:{L_YS}
ds_write_b32 v22, v{REC+4*j+2} offset:{L_PT}
""")
    a("s_mov_b64 exec, -1")

def list_lanes(a):
    a("v_lshrrev_b32 v17, 3, v16")
    a(rho(2, 17, 18))
    a("v_lshrrev_b32 v17, 2, v16")
    a(rho(3, 17, 18))
    a("v_bfe_u32 v17, v16, 1, 4")
    a(rho(4, 17, 18))
    a("v_and_b32 v14, 0x70, v0")

def list_addrs(a):
    a(f"""
v_add_lshl_u32 v2, v2, s{S_START}, 3
v_add_lshl_u32 v3, v3, s{S_START}, 3
v_add_lshl_u32 v4, v4, s{S_START}, 2
v_and_b32 v15, 3, v16
v_lshl_add_u32 v15, v15, 2, s{S_START}
""")

def ea_addrs(a, v_a0, v_a1, ring_off):
    a(f"""
v_bfe_u32 v17, v16, 3, 2
v_and_b32 v18, 3, v16
v_lshl_or_b32 v17, v17, 2, v18
v_lshlrev_b32 v17, 5, v17
v_lshrrev_b32 v18, 5, v16
v_lshl_or_b32 v17, v18, 4, v17
v_bfe_u32 v18, v16, 2, 1
v_mul_u32_u24 v18, {OOB + 16}, v18
v_xor_b32 v17, v18, v17
s_add_u32 s{S_T0}, s{S_RING}, {ring_off}
v_add_u32 v{v_a0}, s{S_T0}, v17
v_xor_b32 v17, {OOB + 16}, v17
v_add_u32 v{v_a1}, s{S_T0}, v17
""")

def valid(a, k):
    a(f"""
s_cmp_ge_i32 s{S_REM}, {k}
s_cselect_b32 s{S_VAL}, s{S_VON}, s{S_VOFF}
""")

def dma_e(a, v, off, restore=True):
    a(f"""
s_add_u32 m0, s{S_RING}, {off}
s_mov_b32 exec_hi, 0
buffer_load_dwordx4 v{v}, {srd(SRD_E)}, s{S_VAL} offen lds
""")
    if restore: a("s_mov_b32 exec_hi, -1")

def zero(a, lo, hi):
    if lo & 1 and lo < hi: a(f"v_mov_b32 v{lo}, 0"); lo += 1
    for r in range(lo, hi, 2): a(f"v_mov_b64 {vr(r,2)}, 0")

def align(a, k):
    if k is None: return
    a(".p2alignl 5, 0xbf800000")
    for _ in range(k): a("s_nop 0")

def prio_init(a):
    a(f"""
s_max_u32 s{S_T0}, s{S_NB}, 1
v_cvt_f32_u32 v17, s{S_T0}
v_rcp_f32 v17, v17
s_and_b32 s{S_PADDR}, s{S_WAVE}, 3
s_lshl_b32 s{S_PADDR}, s{S_PADDR}, 2
v_mul_f32 v17, 0x47800000, v17
s_add_u32 s{S_PADDR}, s{S_PADDR}, {L_FLAG + 16}
v_cvt_u32_f32 v17, v17
s_cmp_ge_u32 s{S_WAVE}, 4
s_cselect_b32 s{S_PSGN}, -1, 1
v_readfirstlane_b32 s{S_PINC}, v17
s_mul_i32 s{S_PINC}, s{S_PINC}, s{S_PSGN}
s_mov_b32 s{S_PVAL}, 0
""")
def young_prio(a, lvl): a(f"s_setprio 1\ns_cmp_lt_u32 s{S_WAVE}, 4\ns_cbranch_scc1 1\ns_setprio {lvl}")
def prio_addr(va, vd): return [f"v_lshl_add_u32 v{va}, v0, 14, s{S_PADDR}", f"v_mov_b32 v{vd}, s{S_PINC}"]
def prio_add(va, vd): return ("pr", f"ds_add_rtn_u32 v{vd}, v{va}, v{vd}")
def prio_read(vd): return [f"v_readfirstlane_b32 s{S_PVAL}, v{vd}", f"s_mul_i32 s{S_PVAL}, s{S_PVAL}, s{S_PSGN}"]
def prio_set(base=0):
    return [f"s_cmp_ge_i32 s{S_PVAL}, 0", f"s_setprio {base}", "s_cbranch_scc1 1", f"s_setprio {base+1}"]

M3, M1, XR, G, T1, T2, T3, ACC = 6, 8, (10, 12), (16, 24), 32, 48, 64, 81

def dma_x(a, v, slot, fill):
    for b in range(3):
        a(f"s_add_u32 m0, s{S_RING}, {b*LINE + slot*1024 - 128*(b+1)}")
        a(fill[b] if b < len(fill) else "s_nop 0")
        a(f"buffer_load_dwordx4 v{v}, {srd(SRD_X)}, s{S_VAL} offen offset:{128*(b+1)} lds")

GG, XX, MT, EC = 16, (20, 24, 28), 10, 7

def lane_consts_b(a):
    list_lanes(a)
    ea_addrs(a, 5, 80, RB_EA)
    a(f"""
v_lshrrev_b32 v18, 4, v16
v_lshlrev_b32 v17, 5, v18
v_and_b32 v18, 3, v16
v_lshl_add_u32 v17, v18, 3, v17
v_add_u32 v17, s{S_RING}, v17
v_bfe_u32 v18, v16, 2, 2
v_min_u32 v19, 2, v18
v_mul_u32_u24 v19, {LINE}, v19
v_cmp_eq_u32 vcc, 2, v18
v_mov_b32 v20, {OOB + 192}
v_bfe_u32 v21, v16, 3, 1
v_cndmask_b32 v19, v19, v20, vcc
v_add_u32 v1, v17, v19
v_and_b32 v18, 1, v18
v_cmp_eq_u32 vcc, 0, v18
v_mul_u32_u24 v21, {LINE}, v21
s_nop 0
v_cndmask_b32 v21, v21, v20, vcc
v_add_u32 v6, v17, v21
""")

def pass_b(a, name, opt):
    si = S_IDX[0]
    prio = opt.get('prio', 3)
    def xread(ds, p, e):
        o = ((2*p + (e >> 3)) & 3)*1024 + (e & 7)*128
        ds.op(f"x{e}", f"ds_read_b64_tr_b16 {vr(XX[e%3],2)}, v1 offset:{o}")
        ds.op(f"x{e}", f"ds_read_b64_tr_b16 {vr(XX[e%3]+2,2)}, v6 offset:{o}")
    def wr(tag, dst, path, h): return (f"{tag}{h}", f"ds_read_b128 {vr(dst,4)}, v0 offset:{L_WR + (path*2+h)*1024}")
    W1 = [wr("W1", T3+4*h, 3, h) for h in range(2)]
    W2 = [wr("W2", T3+8+4*h, 4, h) for h in range(2)]
    W3 = [wr("W3", (XX[0], GG)[h], 1, h) for h in range(2)]
    AR = (XX[1], XX[2])
    def ar(p, h): return (f"A{h}", f"ds_read_b128 {vr(AR[h],4)}, v{(5, 80)[h]} offset:{p*512}")
    def tail_reads(off):
        return [("ys", f"ds_read_b64 {vr(T2,2)}, v3 offset:{L_YS + 128*off}"),
                ("sr", f"ds_read_u16 v{T2+2}, v2 offset:{L_YS + 6 + 128*(off+1) + 64}"),
                ("pt", f"ds_read_b32 v{T2+3}, v4 offset:{L_PT + 64*(off+2)}"),
                ("id", f"ds_read_b32 v{T2+4}, v15 offset:{L_ID + 16*off}")]
    if opt.get('solo'): a(f"s_cmp_ge_u32 s{S_WAVE}, 4\ns_cselect_b32 s{S_NB}, 0, s{S_NB}")
    if prio in (1, 2):
        prio_init(a)
        a(prio_addr(7, 0)[0])
    list_addrs(a)
    if opt.get('ahead', 0):
        a(f"""
s_lshl_b32 s{S_T0}, s{S_WAVE}, 8
s_add_u32 s{S_T0}, s{S_T0}, s2
s_lshl_b32 s{S_PFO}, s{S_T0}, 14
s_sub_u32 s{S_T0}, {1563 + opt.get('lead', 190)}, s{S_T0}
s_mul_i32 s{S_T0}, s{S_T0}, s{S_NB}
s_mul_i32 s{S_T0}, s{S_T0}, 42
s_ashr_i32 s{S_PF}, s{S_T0}, 16
""")
    a(f"""
s_sub_u32 s{S_REM}, s{S_NB}, 1
s_waitcnt lgkmcnt(0)
s_barrier
""")
    stamp(a, opt, 1)
    stamp(a, opt, 4, 1)
    ds = DS(a)
    for t in range(2): ds.op(f"pt{t}", f"ds_read_b32 v{T1+8+t}, v4 offset:{L_PT + 64*t}")
    for h in range(3): ds.op(f"sr{h}", f"ds_read_u16 v{T1+10+h}, v2 offset:{L_YS + 6 + 64*h}")
    for op in tail_reads(0) + W1: ds.op(*op)
    ds.need("sr2")
    for t in range(2): a(f"v_and_or_b32 v{T1+8+t}, v0, 16, v{T1+8+t}")
    for h in range(3): a(f"v_lshl_or_b32 v{T1+10+h}, v{T1+10+h}, 9, v14")
    valid(a, 0)
    dma_e(a, T1+8, RB_EA)
    dma_x(a, T1+10, 0, [])
    if opt.get('startbar', 0): a("s_barrier")
    zero(a, opt.get('z0', 180), opt.get('z1', 256))
    dma_x(a, T1+11, 1, [])
    valid(a, 1)
    dma_e(a, T1+9, RB_EA + 512)
    dma_x(a, T1+12, 2, [])
    zero(a, opt.get('z1', 256), 256)
    a(f"s_cmp_eq_u32 s{S_NB}, 0\ns_cbranch_scc1 {name}_b_done")
    ds.drain()
    a("s_waitcnt vmcnt(10)")
    stamp(a, opt, 5, 1)
    for op in (ar(0, 0), W2[0], ar(0, 1)): ds.op(*op)
    entry = list(ds.q)
    align(a, opt.get('alb'))
    a(f"{name}_b_loop:")
    for p in range(2):
        ds = DS(a, entry)
        def big(tag, tile, w, h):
            ds.need(f"A{h}", f"{tag}{h}")
            a(f"v_mfma_f32_32x32x16_bf16 {vr(tile,16)}, {vr(AR[h],4)}, {vr(w,4)}, {vr(tile,16) if h else 0}")
        def m0x(b, slot): return f"s_add_u32 m0, s{S_RING}, {b*LINE + slot*1024 - 128*(b+1)}"
        def ldx(v, b): return f"buffer_load_dwordx4 v{v}, {srd(SRD_X)}, s{S_VAL} offen offset:{128*(b+1)} lds"
        if p == 0 and opt.get('ahead', 0):
            a(f"s_cmp_le_i32 s{S_REM}, s{S_PF}\ns_cbranch_scc1 {name}_b_ahead\n{name}_b_back:")
        if opt.get('rprio'): a("s_setprio 0")
        big("W1", T1, T3, 0)
        ds.op(*W2[1]); ds.op(*W3[0]); ds.op(*W3[1])
        a(f"""
v_perm_b32 v{M1}, v{T2+1}, v{T2}, v{MT}
v_perm_b32 v{M1+1}, v{T2+1}, v{T2}, v{MT+1}
v_xor_b32 v{M1}, v{M1}, v{MT+2}
v_xor_b32 v{M1+1}, v{M1+1}, v{MT+3}
""")
        big("W1", T1, T3+4, 1)
        a(f"v_lshl_or_b32 v{T3}, v{T2+2}, 9, v14\nv_and_or_b32 v{T3+1}, v0, 16, v{T2+3}")
        for i in range(4): a(f"v_readlane_b32 s{si+i}, v{T2+4}, {i}")
        sl = (2*p + 3) & 3
        a(m0x(0, sl))
        big("W2", T2, T3+8, 0)
        a(f"{ldx(T3, 0)}\n{m0x(1, sl)}")
        ds.drain()
        a(f"{ldx(T3, 1)}\n{m0x(2, sl)}")
        big("W2", T2, T3+12, 1)
        a(ldx(T3, 2))
        valid(a, 2)
        dma_e(a, T3+1, RB_EA + 512*p)
        big("W3", T3, XX[0], 0)
        a(f"s_mul_i32 s{si}, s{si}, 7\ns_mul_i32 s{si+1}, s{si+1}, 7\ns_waitcnt vmcnt(11)")
        xread(ds, p, 0); xread(ds, p, 1)
        big("W3", T3, GG, 1)
        a(f"s_mul_i32 s{si+2}, s{si+2}, 7\ns_mul_i32 s{si+3}, s{si+3}, 7")
        tr_ = tail_reads(p+1)
        pre = {5: [f"v_lshl_or_b32 v{T1+1}, v{T1+1}, 9, v14"]}
        if p == 1: pre[13] = ["v_add_u32 v2, 256, v2", "v_add_u32 v3, 256, v3", "v_add_u32 v4, 128, v4", "v_add_u32 v15, 32, v15", f"s_add_u32 s{S_ADV}, s{S_ADV}, 32"]
        aux = {2: [("sm", f"ds_read_u16 v{T1+1}, v2 offset:{L_YS + 6 + 128*(p+2)}")],
               4: tr_[:2], 8: tr_[2:3], 10: tr_[3:], 12: W1}
        if prio == 1 or (prio == 2 and p == 0):
            pre[1] = prio_addr(7, T3)[1:]; aux[1] = [prio_add(7, T3)]
            pre[4] = prio_read(T3) + ([] if opt.get('rprio') else prio_set())
        if opt.get('rprio'):
            for l in prio_set(1): a(l)
        for e in range(16):
            x = XX[e % 3]
            if prio == 3 and 16*p + e in opt.get('phb', {0: 2, 21: 0}): young_prio(a, opt.get('phb', {0: 2, 21: 0})[16*p + e])
            if e == 8 and opt.get('half', 1): a(f"s_cmp_eq_u32 s{S_REM}, s{S_HALF}\ns_cbranch_scc1 {name}_b_done")
            if e in (8, 9, 10): a(m0x(e-8, 2*p))
            ds.need(f"x{e}", vm=7 if e == 6 else None)
            if e in (8, 9, 10): a(f"{ldx(T1+1, e-8)}\ns_set_gpr_idx_mode 0")
            a(f"v_mfma_f32_4x4x4_16b_bf16 {vr(GG,4)}, {vr(M1,2)}, {vr(x,2)}, 0 cbsz:4 abid:{e}")
            for l in pre.get(e, []): a(l)
            a(f"s_set_gpr_idx_on s{si + 2*(e >> 3) + (e & 1)}, 0x8")
            if (e & 1) and (e & 7) != 7:
                r = si + 2*(e >> 3)
                a(f"s_lshr_b64 s[{r}:{r+1}], s[{r}:{r+1}], 8")
            for op in aux.get(e, []): ds.op(*op)
            if e < 14: xread(ds, p, e+2)
            elif e == 14: ds.op(*ar(p ^ 1, 0)); ds.op(*W2[0])
            else: ds.op(*ar(p ^ 1, 1))
            for i, src in enumerate((x+2, x+3, x+1)): a(f"v_fmac_f32 v{ACC+4+i}, v{src}, v{T1+e}")
            for i in range(4): a(f"v_fmac_f32 v{ACC+i}, v{GG+i}, v{(T2, T2, T2, T3)[i]+e}")
            if e == 15: a("s_set_gpr_idx_off")
            elif e + 1 not in (8, 9, 10): a("s_set_gpr_idx_mode 0")
        a(f"s_sub_u32 s{S_REM}, s{S_REM}, 1\ns_cbranch_scc1 {name}_b_done")
        assert ds.q == entry, (ds.q, entry)
    a(f"s_branch {name}_b_loop")
    if opt.get('ahead', 0):
        a(f"""
{name}_b_ahead:
v_lshlrev_b32 v{T1}, 3, v0
s_mov_b32 m0, {L_MT}
s_mov_b32 s{S_PF}, -100
s_mov_b32 exec_hi, 0
""")
        for i in range(4): a(f"buffer_load_dword v{T1}, {srd(SRD_X)}, s{S_PFO} offen lds\ns_add_u32 s{S_PFO}, s{S_PFO}, 4096")
        a(f"s_mov_b32 exec_hi, -1\ns_branch {name}_b_back")
    a(f"{name}_b_done:\ns_set_gpr_idx_off")

def pack(a, ops, spare):
    ops, spare, moves = list(ops), list(spare), []
    while ops:
        for k, (d, x, y) in enumerate(ops):
            if not any(d in o[1:] for j, o in enumerate(ops) if j != k): break
        else:
            k = 0; d, x, y = ops[0]; t = spare.pop(); moves.append((d, t)); d = t
        a(f"v_cvt_pk_bf16_f32 v{d}, v{x}, v{y}"); ops.pop(k)
    for d, t in moves: a(f"v_mov_b32 v{d}, v{t}")

ORD_B = (3, 4, 0, 5, 1, 6, 2)
ORD_A = (2, 1, 0, 3)
PB, ACA = 68, 156
TA0, TA2 = 32, 48
SB_ = (10, 12, 64, 66)
M2, SELA, AA, WA = 8, 6, 16, 24

def pass_a(a, name, opt):
    def dma_s(v, slot, fill="s_nop 0"):
        a(f"s_add_u32 m0, s{S_RING}, {slot*1024}\n{fill}\nbuffer_load_dwordx4 v{v}, {srd(SRD_X)}, s{S_VAL} offen lds")
    SR = SB_ + (AA, AA+2, AA+4, AA+6)
    def sread(c, m):
        slot = 2*c + (m >> 2)
        return (f"s{m}", f"ds_read_b64_tr_b16 {vr(SR[m],2)}, v1 offset:{slot*1024 + (m & 3)*256}")
    def next_reads(c, off):
        r = [("sr1", f"ds_read_u16 v{TA2+2}, v2 offset:{L_YS + 6 + 128*(off+2) + 64}"),
             ("sr0", f"ds_read_u16 v{TA2+3}, v2 offset:{L_YS + 6 + 128*(off+3)}"),
             ("pt", f"ds_read_b32 v{TA2+5}, v4 offset:{L_PT + 64*(off+3)}")]
        r += [(f"W0{h}", f"ds_read_b128 {vr(TA2+8+4*h,4)}, v0 offset:{L_WR + h*1024}") for h in range(2)]
        r += [("A0", f"ds_read_b128 {vr(AA,4)}, v5 offset:{c*512}"),
              ("A1", f"ds_read_b128 {vr(AA+4,4)}, v7 offset:{c*512}")]
        r += [sread(c, m) for m in range(4)]
        r += [("ys", f"ds_read_b64 {vr(TA2,2)}, v3 offset:{L_YS + 128*off}"),
              ("id", f"ds_read_b32 v{TA2+4}, v15 offset:{L_ID + 16*off}")]
        return r
    a(f"""
s_waitcnt vmcnt(0) lgkmcnt(0)
s_mul_i32 s{S_T1}, s{S_WAVE}, 5120
s_add_u32 s{S_T1}, s{S_T1}, 10240
""")
    for j in range(5):
        a(f"s_add_u32 m0, s{S_RING}, {RA_WS}\ns_nop 0\nbuffer_load_dwordx4 v0, {srd(SRD_W)}, s{S_T1} offen offset:{1024*j if j < 4 else 0} lds"
          if j < 4 else
          f"s_add_u32 m0, s{S_RING}, {RA_WS+4096}\ns_add_u32 s{S_T1}, s{S_T1}, 4096\nbuffer_load_dwordx4 v0, {srd(SRD_W)}, s{S_T1} offen lds")
    a(f"""
s_lshl_b32 s{S_T0}, s{S_ADV}, 3
s_lshl_b32 s{S_T1}, s{S_ADV}, 2
v_subrev_u32 v2, s{S_T0}, v2
v_subrev_u32 v4, s{S_T1}, v4
v_lshrrev_b32 v17, 1, v14
""")
    ds = DS(a)
    for h in range(5): ds.op(f"sr{h}", f"ds_read_u16 v{TA0+h}, v2 offset:{L_YS + 6 + 64*h}")
    for t in range(3): ds.op(f"pt{t}", f"ds_read_b32 v{TA0+8+t}, v4 offset:{L_PT + 64*t}")
    ds.op("mt", f"ds_read_b64 {vr(M2,2)}, v17 offset:{L_MT + 64}")
    a(f"""
v_subrev_u32 v3, s{S_T0}, v3
v_subrev_u32 v15, s{S_ADV}, v15
v_bfe_u32 v17, v0, 7, 1
v_mul_u32_u24 v17, {LINE - 128}, v17
v_sub_u32 v1, v6, v17
v_subrev_u32 v5, {RB_EA - RA_EA}, v5
v_subrev_u32 v7, {RB_EA - RA_EA}, v80
s_sub_u32 s{S_REM}, s{S_NB}, 1
""")
    ds.drain()
    for h in range(5): a(f"v_lshl_or_b32 v{TA0+h}, v{TA0+h}, 9, v14")
    for t in range(3): a(f"v_and_or_b32 v{TA0+8+t}, v0, 16, v{TA0+8+t}")
    a(f"v_mov_b32 v{SELA}, v{M2}")
    for t in range(3):
        valid(a, t)
        dma_s(TA0+2*t, 2*t)
        dma_e(a, TA0+8+t, RA_EA + 512*t)
        if t < 2: dma_s(TA0+2*t+1, 2*t+1)
    for h in range(2): ds.op(f"W2{h}", f"ds_read_b128 {vr(WA+4*h,4)}, v0 offset:{L_WR + (4+h)*1024}")
    pack(a, [(PB + 12*ORD_B.index(i) + p, ACC+14*p+i, ACC+14*p+7+i) for p in range(12) for i in range(7)]
            + [(PB+84+i, ACC+168+2*i, ACC+168+min(2*i+1, 6)) for i in range(4)], range(48, 64))
    zero(a, ACA, 256)
    a(f"""
s_waitcnt vmcnt(6)
v_mov_b32 v17, {L_FLAG}
v_mov_b32 v18, 1
s_mov_b64 exec, 1
ds_add_u32 v17, v18
s_mov_b64 exec, -1
s_cmp_eq_u32 s{S_NB}, 0
s_cbranch_scc1 {name}_a_done
s_waitcnt lgkmcnt(0)
""")
    ds.q = []
    stamp(a, opt, 3)
    for tag, text in next_reads(0, 0): ds.op(tag, text)
    entry = list(ds.q)
    si = S_IDX[0]
    align(a, opt.get('ala'))
    a(f"{name}_a_loop:")
    for c in range(3):
        ds = DS(a, entry)
        pra = opt.get('prio', 3) == 1 or (opt.get('prio', 3) == 2 and c == 0)
        def big(tile, w, h): a(f"v_mfma_f32_32x32x16_bf16 {vr(tile,16)}, {vr(AA+4*h,4)}, {vr(w+4*h,4)}, {vr(tile,16) if h else 0}")
        def mul(tile, *ms):
            for m in ms:
                for i in range(2): a(f"v_mul_f32 v{tile+2*m+i}, v{tile+2*m+i}, v{SR[m]+i}")
        def cvt_t(*ms):
            for m in ms: a(f"v_cvt_pk_bf16_f32 v{TA0+2*m+1}, v{TA0+2*m}, v{TA0+2*m+1}")
        def cvt_u(*ms):
            for m in ms: a(f"v_cvt_pk_bf16_f32 v{TA0+2*m}, v{TA2+2*m}, v{TA2+2*m+1}")
        if opt.get('prio', 3) == 3 and 2*c in opt.get('pha', {0: 2, 4: 0}): young_prio(a, opt.get('pha', {0: 2, 4: 0})[2*c])
        ds.need("s3")
        big(TA0, TA2+8, 0)
        a(f"v_lshl_or_b32 v{TA2+2}, v{TA2+2}, 9, v14")
        dma_s(TA2+2, (2*c+5) % 6, f"v_lshl_or_b32 v{TA2+3}, v{TA2+3}, 9, v14")
        valid(a, 3)
        a(f"s_add_u32 m0, s{S_RING}, {2*c*1024}")
        big(TA0, TA2+8, 1)
        a(f"buffer_load_dwordx4 v{TA2+3}, {srd(SRD_X)}, s{S_VAL} offen lds\nv_and_or_b32 v{TA2+5}, v0, 16, v{TA2+5}")
        dma_e(a, TA2+5, RA_EA + 512*c)
        ds.need("id", vm=6)
        a(f"v_perm_b32 v{M2}, v{TA2+1}, v{TA2}, v{SELA}")
        for i in range(4): a(f"v_readlane_b32 s{si+i}, v{TA2+4}, {i}")
        big(TA2, WA, 0)
        a(f"s_lshl_b64 s[{si}:{si+1}], s[{si}:{si+1}], 2")
        ds.op(*sread(c, 4)); ds.op(*sread(c, 5))
        mul(TA0, 0, 1)
        big(TA2, WA, 1)
        a(f"s_lshl_b64 s[{si+2}:{si+3}], s[{si+2}:{si+3}], 2")
        ds.op(*sread(c, 6)); ds.op(*sread(c, 7))
        mul(TA0, 2, 3); cvt_t(0, 1, 2, 3)
        ds.need("s5")
        mul(TA0, 4, 5); mul(TA2, 0, 1, 2, 3)
        ds.need("s7")
        cvt_u(0, 1, 2, 3)
        mul(TA0, 6, 7); mul(TA2, 4, 5)
        if pra:
            for l in prio_addr(TA2+6, TA2+7): a(l)
        cvt_t(4, 5, 6, 7)
        mul(TA2, 6, 7)
        cvt_u(4, 5, 6, 7)
        if opt.get('prio', 3) == 3 and 2*c+1 in opt.get('pha', {}): young_prio(a, opt['pha'][2*c+1])
        fill = ([prio_add(TA2+6, TA2+7)] if pra else []) + next_reads((c + 1) % 3, c+1)
        for e in range(16):
            a(f"s_set_gpr_idx_on s{si + 2*(e >> 3) + (e & 1)}, 0xc")
            if (e & 1) and (e & 7) != 7:
                q = si + 2*(e >> 3)
                a(f"s_lshr_b64 s[{q}:{q+1}], s[{q}:{q+1}], 8")
                if e < 8 or (pra and e == 9): ds.op(*fill.pop(0))
            else: ds.op(*fill.pop(0))
            a(f"v_mfma_f32_4x4x4_16b_bf16 {vr(ACA,4)}, {vr(M2,2)}, {vr(TA0+(e&14),2)}, {vr(ACA,4)} cbsz:4 abid:{e}")
        assert not fill
        a("s_set_gpr_idx_off")
        if pra:
            ds.need("pr")
            for l in prio_read(TA2+7) + prio_set(): a(l)
        if c == 2:
            a("v_add_u32 v2, 384, v2\nv_add_u32 v3, 384, v3\nv_add_u32 v4, 192, v4\nv_add_u32 v15, 48, v15")
        a(f"s_sub_u32 s{S_REM}, s{S_REM}, 1\ns_cbranch_scc1 {name}_a_done")
        assert ds.q == entry, (ds.q, entry)
    a(f"s_branch {name}_a_loop\n{name}_a_done:")

def epilogue(a, name, opt):
    PA = ACA
    DT = ((224, 240), (192, 208), (74, 176), (192, 208))
    AOP, WOP, TMP, ROW = 8, 24, (56, 57, 58, 59), 60
    nt = opt.get('store_nt', ' sc1')
    young_prio(a, opt.get('phe', 2))
    a(f"""
s_waitcnt lgkmcnt(0)
v_mov_b32 v7, {L_FLAG}
v_lshrrev_b32 v16, 4, v0
v_mul_u32_u24 v1, 56, v16
v_add_u32 v1, s{S_RING}, v1
v_lshrrev_b32 v17, 5, v16
v_bfe_u32 v18, v16, 2, 2
v_lshl_add_u32 v18, v17, 3, v18
v_mul_u32_u24 v2, 56, v18
v_bfe_u32 v18, v16, 4, 1
v_lshl_add_u32 v2, v18, 5, v2
v_and_b32 v18, 3, v16
v_lshl_add_u32 v2, v18, 3, v2
v_add_u32 v2, s{S_RING}, v2
v_add_u32 v3, {L_RING + RA_WS}, v0
v_add_u32 v4, {L_RING + RA_WS + 5*RING}, v0
v_and_b32 v18, 31, v16
v_lshlrev_b32 v18, 2, v18
s_lshl_b32 s{S_T0}, s{S_SB}, 9
v_add_u32 v5, s{S_T0}, v18
s_lshl_b32 s{S_T0}, s{S_WAVE}, 5
v_lshl_add_u32 v6, v17, 2, s{S_T0}
s_add_u32 s{S_T2}, s{S_WBASE}, s{S_WCNT}
s_cmp_ge_u32 s{S_T2}, s{S_TOTAL}
s_cselect_b32 s{SRD_O+2}, {0 if opt.get('nostore') else XB}, 0
s_lshl_b32 s{S_T3}, s2, 3
s_add_u32 s{S_T3}, s{S_T3}, s{S_WAVE}
s_lshl_b32 s{S_T3}, s{S_T3}, 15
{name}_spin:
ds_read_b32 v17, v7
s_waitcnt lgkmcnt(0)
v_readfirstlane_b32 s{S_T0}, v17
s_cmp_lt_u32 s{S_T0}, 8
s_cbranch_scc1 {name}_spin
""")
    def ga(i): return (PA + 2 + 12*ORD_A.index(i), PA + (i >> 1), i & 1)
    def gb(i): return (PB + 12*ORD_B.index(i), PB + 84 + (i >> 1), i & 1)
    groups = [(gb(3), 1, 0), (ga(3), 0, 0)]
    for j in range(3): groups += [(ga(j), 2, j+1), (gb(4+j), 3, j+1), (gb(j), 4, j+1)]
    NG = len(groups)
    ds = DS(a)
    def writes(g):
        base, tail, hi = groups[g][0]
        off = (g & 1) * TILE
        return [(f"w{g}", f"ds_write_b64 v1, {vr(base+2*q,2)} offset:{off + 8*q}") for q in range(6)] + \
               [(f"w{g}", f"ds_write_b16{'_d16_hi' if hi else ''} v1, v{tail} offset:{off + 48}")]
    def aread(m):
        g, t = divmod(m, 4)
        return [(f"a{m}", f"ds_read_b64_tr_b16 {vr(AOP+4*t+2*j,2)}, v2 offset:{(g & 1)*TILE + (16*t+4*j)*56}") for j in range(2)]
    def wread(n):
        g, i = divmod(n, 8)
        w, k = divmod(groups[g][1]*8 + i, 5)
        v, o = (3, w*RING) if w < 5 else (4, (w-5)*RING)
        return (f"W{n}", f"ds_read_b128 {vr(WOP+4*(n&7),4)}, v{v} offset:{o + k*1024}")
    def fin(comp):
        D, G_ = DT[comp], DT[0]
        out = []
        for r in range(13):
            t = TMP[r & 3]
            if comp: out += [f"v_mul_f32 v{D[u]+r}, v{D[u]+r}, v{G_[u]+r}" for u in range(2)]
            out += [f"v_cvt_pk_bf16_f32 v{t}, v{D[0]+r}, v{D[1]+r}"]
            if not comp:
                out += [f"v_mul_f32 v{D[u]+r}, 0xbfb8aa3b, v{D[u]+r}" for u in range(2)]
                out += [f"v_exp_f32 v{D[u]+r}, v{D[u]+r}" for u in range(2)]
            out += [f"buffer_store_dword v{t}, v{ROW+r}, {srd(SRD_O)}, 0 offen offset:{128*comp}{nt}"]
            if not comp:
                out += [f"v_add_f32 v{D[u]+r}, 1.0, v{D[u]+r}" for u in range(2)]
                out += [f"v_rcp_f32 v{D[u]+r}, v{D[u]+r}" for u in range(2)]
        return out
    a("s_waitcnt vmcnt(0)")
    for op in writes(0) + aread(0) + [wread(0), wread(1)] + aread(1) + [wread(2), wread(3)]: ds.op(*op)
    pack(a, [(ga(i)[0] + p, ACA+8*p+i, ACA+8*p+4+i) for p in range(12) for i in range(4)]
            + [(PA+i, ACA+96+2*i, ACA+97+2*i) for i in range(2)], range(40, 68))
    side = []
    for m in range(4*NG):
        g, t = divmod(m, 4)
        comp = groups[g][2]
        first = (g == 0 or groups[g-1][2] != comp) and t == 0
        D = DT[comp]
        ops = []
        if g+1 < NG and t < 2: ops += writes(g+1)[4*t:4*t+4]
        if m+2 < 4*NG: ops += aread(m+2) + [wread(2*m+4), wread(2*m+5)]
        if m == 2: ops += [("row", f"ds_read_u8 v{ROW+r}, v6 offset:{L_INV + (r >> 2)*8 + (r & 3)}") for r in range(13)]
        if m == 6: side = [f"v_lshl_add_u32 v{ROW+r}, v{ROW+r}, 17, v5" for r in range(13)]
        ds.need(f"a{m}", f"W{2*m+1}")
        for u in range(2):
            a(f"v_mfma_f32_32x32x16_bf16 {vr(D[u],16)}, {vr(AOP+4*t,4)}, {vr(WOP+4*((2*m+u)&7),4)}, {0 if first else vr(D[u],16)}")
            k = (len(ops) + 1 - u) // (2 - u)
            for op in ops[:k]: ds.op(*op)
            ops = ops[k:]
            if not first:
                for l in side[:opt.get('side', 6)]: a(l)
                side = side[opt.get('side', 6):]
        if t == 3 and (g+1 == NG or groups[g+1][2] != comp):
            for l in side: a(l)
            a(f"s_cmp_lg_u32 s{S_TOTAL}, s{S_WCNT}\ns_cbranch_scc1 {name}_multi{comp}\n{name}_fin{comp}:")
            side = fin(comp)
    a("s_nop 9")
    for l in side: a(l)
    a(f"{name}_next3:")
    stamp(a, opt, 5)
    stamps_out(a, opt)
    a(f"""
s_cmp_ge_u32 s{S_T2}, s{S_TOTAL}
s_cbranch_scc1 {name}_end
s_mov_b32 s{S_WBASE}, s{S_T2}
s_setprio 0
s_waitcnt vmcnt(0) lgkmcnt(0)
s_barrier
s_branch {name}_window
""")
    for comp in range(4):
        D = DT[comp]
        a(f"""
{name}_multi{comp}:
s_nop 15
v_lshrrev_b32 v7, 2, v0
s_add_u32 s{S_T0}, s{S_T3}, {comp*8192}
s_add_u32 s{S_T1}, s{S_T0}, 4096
s_cmp_eq_u32 s{S_WBASE}, 0
s_cbranch_scc1 {name}_mst{comp}
""")
        for u in range(2):
            for r in range(13):
                a(f"buffer_load_dword v{TMP[0]}, v7, {srd(SRD_S)}, s{S_T0+u} offen offset:{256*r} sc1\ns_waitcnt vmcnt(0)\nv_add_f32 v{D[u]+r}, v{D[u]+r}, v{TMP[0]}")
        a(f"{name}_mst{comp}:")
        for u in range(2):
            for r in range(13):
                a(f"buffer_store_dword v{D[u]+r}, v7, {srd(SRD_S)}, s{S_T0+u} offen offset:{256*r}")
        a(f"s_waitcnt vmcnt(0)\ns_branch {name}_fin{comp}")
    a(f"{name}_end:\ns_endpgm")

def dump_regs(a):
    a("s_waitcnt vmcnt(0) lgkmcnt(0)\ns_nop 15")
    a.srd(96, 76, 128 << 20, 64 << 20)
    a(f"""
v_lshrrev_b32 v0, 2, v0
s_lshl_b32 s{S_T0}, s2, 3
s_add_u32 s{S_T0}, s{S_T0}, s{S_WAVE}
s_lshl_b32 s{S_T0}, s{S_T0}, 16
v_mov_b32 v1, s{S_START}
v_mov_b32 v2, s{S_NB}
""")
    for r in range(256):
        a(f"buffer_store_dword v{r}, v0, s[96:99], s{S_T0} offen\ns_add_u32 s{S_T0}, s{S_T0}, 256")
    a("s_endpgm")

def dump_lds(a):
    a("s_waitcnt vmcnt(0) lgkmcnt(0)\ns_barrier")
    a.srd(96, 76, 16 << 20, 200 << 20)
    a(f"""
s_lshl_b32 s{S_T0}, s2, 16
s_lshl_b32 s{S_T1}, s{S_WAVE}, 13
v_add_u32 v21, s{S_T1}, v0
""")
    for j in range(8):
        a(f"ds_read_b128 v[24:27], v21\ns_waitcnt lgkmcnt(0)\nbuffer_store_dwordx4 v[24:27], v21, s[96:99], s{S_T0} offen\ns_waitcnt vmcnt(0)\nv_add_u32 v21, 1024, v21")

def stamp(a, opt, i, grp=0):
    if opt.get('stamps') and (i in (0, 6) or grp == opt.get('grp', 0)):
        a(f"{'s_memtime' if opt['stamps'] == 2 else 's_memrealtime'} s[100:101]\ns_waitcnt lgkmcnt(0)\ns_mov_b32 s{93+i}, s100")

def stamps_out(a, opt):
    if opt.get('stamps'):
        a("s_waitcnt vmcnt(0)")
        stamp(a, opt, 6)
        a.srd(SRD_S, 76, 1 << 20, 240 << 20)
        a(f"s_lshl_b32 s{S_T0}, s2, 3\ns_add_u32 s{S_T0}, s{S_T0}, s{S_WAVE}\ns_lshl_b32 s{S_T0}, s{S_T0}, 5\nv_mov_b32 v0, 0")
        for i in range(7):
            a(f"v_mov_b32 v1, s{93+i}\nbuffer_store_dword v1, v0, {srd(SRD_S)}, s{S_T0} offen offset:{4*i}")
        a(f"v_mov_b32 v1, s{S_NB}\nbuffer_store_dword v1, v0, {srd(SRD_S)}, s{S_T0} offen offset:28\ns_endpgm")

def gen_k2(name, **opt):
    a = Asm()
    prologue(a, name, opt)
    if opt.get('dump'): dump_lds(a)
    pass_b(a, name, opt)
    if opt.get('dump') == 'b': dump_regs(a)
    stamp(a, opt, 2)
    pass_a(a, name, opt)
    if opt.get('dump') == 'a': dump_regs(a)
    stamp(a, opt, 4)
    epilogue(a, name, opt)
    if opt.get('drope'):
        import re
        lo = a.lines.index(f"{name}_spin:") + 6; hi = a.lines.index(f"{name}_next3:")
        a.lines[lo:hi] = [l for l in a.lines[lo:hi] if not re.search(opt['drope'], l)]
    for key, ps in (('drop', 'b'), ('dropa', 'a')):
        if opt.get(key):
            import re
            lo = a.lines.index(f"{name}_{ps}_loop:"); hi = a.lines.index(f"{name}_{ps}_done:")
            a.lines[lo:hi] = [l for l in a.lines[lo:hi] if not re.search(opt[key], l)]
    return a.text()
```

```python
from common import *

K1_LDS_EA = 0
K1_LDS_META = CH * 32
K1_LDS_INV = K1_LDS_META + CH * 12
K1_LDS_HIST = K1_LDS_INV + CH * 2
K1_LDS = K1_LDS_HIST + 2048
K1_GRID = NCH + 4
K1_VGPR = 64
QSHIFT = 12

def gen_k1(name, nt=' nt', st=' sc1', stm=' sc1', stamps=0, sched=(3, 2, 1, 0)):
    a = Asm()
    def stamp(i):
        if stamps: a(f"{'s_memtime' if stamps == 2 else 's_memrealtime'} s[100:101]\ns_waitcnt lgkmcnt(0)\ns_mov_b32 s{90+i}, s100")
    a(f"""
{name}:
s_cmp_ge_u32 s2, {K1_GRID}
s_cbranch_scc1 {name}_end
s_load_dwordx8 s[4:11], s[0:1], {KA_RHAT}
s_load_dwordx2 s[12:13], s[0:1], {KA_WS}
s_cmp_ge_u32 s2, {NCH}
s_cbranch_scc1 {name}_weights
v_lshrrev_b32 v1, 6, v0
v_lshlrev_b32 v2, 4, v0
v_readfirstlane_b32 s3, v1
v_mul_u32_u24 v3, 24, v0
v_and_b32 v4, 63, v0
v_lshlrev_b32 v4, 4, v4
v_mov_b32 v5, 0
v_lshlrev_b32 v6, 2, v0
s_mul_i32 s40, s2, {CH*4}
s_mul_i32 s41, s2, {CH*6}
s_mul_i32 s42, s2, {CH*32}
s_mul_i32 s43, s2, {CH*8}
s_mul_i32 s44, s2, {CH}
s_waitcnt lgkmcnt(0)
""")
    stamp(0)
    a.srd(16, 10, E * 4)
    a.srd(20, 8, E * 4)
    a.srd(24, 4, E * 6)
    a.srd(28, 6, E * 32)
    a.srd(32, 12, E * 32, WS_EAS)
    a.srd(36, 12, E * 8, WS_META)
    a.srd(56, 12, E * 4, WS_KEY)
    a.srd(48, 12, NCH * 1024, WS_TAB)
    a(f"""
v_cmp_gt_u32 vcc, 512, v0
s_and_saveexec_b64 s[46:47], vcc
v_add_u32 v7, {K1_LDS_HIST}, v6
ds_write_b32 v7, v5
s_mov_b64 exec, s[46:47]
v_cmp_gt_u32 vcc, {CH//4}, v0
s_and_saveexec_b64 s[46:47], vcc
s_mov_b64 s[52:53], exec
s_cbranch_execz {name}_noload
buffer_load_dwordx4 v[8:11], v2, s[16:19], s40 offen{nt}
buffer_load_dwordx4 v[12:15], v2, s[20:23], s40 offen{nt}
buffer_load_dwordx4 v[16:19], v3, s[24:27], s41 offen{nt}
buffer_load_dwordx2 v[20:21], v3, s[24:27], s41 offen offset:16{nt}
{name}_noload:
s_mov_b64 exec, s[46:47]
s_lshl_b32 s62, s3, 10
s_add_u32 s63, s62, s42
s_waitcnt lgkmcnt(0)
s_barrier
""")
    def dma(n):
        for _ in range(n):
            a(f"s_mov_b32 m0, s62\ns_add_u32 s62, s62, 0x4000\nbuffer_load_dwordx4 v4, s[28:31], s63 offen{nt} lds\ns_add_u32 s63, s63, 0x4000")
    assert sum(sched) == 6
    a(f"""
s_cmp_lt_u32 s3, 12
s_cbranch_scc1 {name}_noextra
s_add_u32 m0, s62, {84*1024}
s_add_u32 s14, s63, {84*1024}
buffer_load_dwordx4 v4, s[28:31], s14 offen{nt} lds
{name}_noextra:
""")
    dma(sched[0])
    a(f"s_waitcnt vmcnt({2 + sched[0]})")
    stamp(1)
    a(f"""
s_mov_b64 exec, s[52:53]
s_cbranch_execz {name}_nohist
v_mov_b32 v5, 1
s_mov_b32 s14, {K1_LDS_HIST}
s_mov_b32 s15, {K1_LDS_HIST + 1024}
""")
    for k in range(4):
        a(f"""
v_and_b32 v{24+k}, 0xff, v{8+k}
v_lshrrev_b32 v{28+k}, {QSHIFT}, v{12+k}
v_bfe_u32 v1, v{8+k}, 5, 3
v_lshl_add_u32 v{24+k}, v{24+k}, 2, s14
v_lshl_add_u32 v{28+k}, v1, 5, v{28+k}
ds_add_rtn_u32 v{32+k}, v{24+k}, v5
v_lshl_add_u32 v{28+k}, v{28+k}, 2, s15
ds_add_rtn_u32 v{36+k}, v{28+k}, v5
""")
    a(f"""
{name}_nohist:
s_mov_b64 exec, -1
""")
    dma(sched[1])
    a(f"""
s_waitcnt lgkmcnt(0)
s_barrier
s_cmp_ge_u32 s3, 2
s_cbranch_scc1 {name}_noscan
v_add_u32 v7, {K1_LDS_HIST}, v2
ds_read_b128 v[40:43], v7
s_waitcnt lgkmcnt(0)
v_add_u32 v45, v40, v41
v_add_u32 v46, v45, v42
v_add_u32 v47, v46, v43
v_mov_b32 v44, v47
""")
    a.scan64(44)
    a(f"""
v_sub_u32 v44, v44, v47
v_add_u32 v47, v44, v46
v_add_u32 v46, v44, v45
v_add_u32 v45, v44, v40
ds_write_b128 v7, v[44:47]
s_cmp_eq_u32 s3, 0
s_cbranch_scc0 {name}_noscan
v_lshl_or_b32 v40, v40, 16, v44
v_lshl_or_b32 v41, v41, 16, v45
v_lshl_or_b32 v42, v42, 16, v46
v_lshl_or_b32 v43, v43, 16, v47
s_lshl_b32 s14, s2, 10
buffer_store_dwordx4 v[40:43], v2, s[48:51], s14 offen
{name}_noscan:
""")
    dma(sched[2])
    a(f"""
s_waitcnt lgkmcnt(0)
s_barrier
s_mov_b64 exec, s[52:53]
s_cbranch_execz {name}_noplace
""")
    for k in range(4):
        a(f"ds_read_b32 v{24+k}, v{24+k}\nds_read_b32 v{28+k}, v{28+k}")
    a(f"""
s_waitcnt vmcnt({sum(sched[:3])})
s_mov_b32 s14, 0x05040100
s_mov_b32 s15, 0x05040302
s_mov_b32 s45, 0x0c050100
s_mov_b32 s46, 0x06020100
v_mov_b32 v48, v16
v_alignbit_b32 v50, v18, v17, 16
v_mov_b32 v52, v19
v_alignbit_b32 v54, v21, v20, 16
""")
    for k in range(4): a(f"v_perm_b32 v{12+k}, v{8+k}, v{12+k}, s45")
    a(f"""
s_mov_b32 s47, {K1_LDS_META}
s_mov_b32 s60, {K1_LDS_META + CH*8}
s_mov_b32 s61, {K1_LDS_INV}
s_waitcnt lgkmcnt(0)
""")
    for k in range(4):
        a(f"""
v_add_u32 v{24+k}, v{24+k}, v{32+k}
v_add_u32 v{28+k}, v{28+k}, v{36+k}
v_add_u32 v23, s44, v{28+k}
v_lshl_add_u32 v22, v{24+k}, 3, s47
v_perm_b32 v{49+2*k}, v23, v{(17, 18, 20, 21)[k]}, s{14 + (k & 1)}
v_perm_b32 v23, v23, v{12+k}, s46
v_lshl_add_u32 v{24+k}, v{24+k}, 2, s60
v_lshl_add_u32 v{28+k}, v{28+k}, 1, s61
v_add_u32 v1, {k}, v6
ds_write_b64 v22, v[{48+2*k}:{49+2*k}]
ds_write_b32 v{24+k}, v23
ds_write_b16 v{28+k}, v1
""")
    a(f"""
{name}_noplace:
s_mov_b64 exec, -1
""")
    dma(sched[3])
    a(f"""
s_waitcnt lgkmcnt(0)
s_barrier
""")
    stamp(2)
    a(f"""
v_add_u32 v7, {K1_LDS_META}, v2
ds_read_b128 v[8:11], v7
ds_read_b128 v[12:15], v7 offset:16384
ds_read_b128 v[16:19], v7 offset:{CH*8}
v_and_b32 v1, 0x3fe, v0
v_add_u32 v1, {K1_LDS_INV}, v1
""")
    for j in range(7):
        a(f"ds_read_u16 v{24+j}, v1 offset:{1024*j}")
    a(f"""
s_add_u32 s14, s43, 16384
v_and_b32 v1, 1, v0
v_lshlrev_b32 v1, 4, v1
v_cmp_gt_u32 vcc, {CH*8//16 - 1024}, v0
v_bfrev_b32 v3, 1
s_nop 0
v_cndmask_b32 v4, v3, v2, vcc
v_cndmask_b32 v3, v3, v2, s[52:53]
s_waitcnt lgkmcnt(7)
buffer_store_dwordx4 v[16:19], v3, s[56:59], s40 offen{stm}
buffer_store_dwordx4 v[8:11], v2, s[36:39], s43 offen{stm}
buffer_store_dwordx4 v[12:15], v4, s[36:39], s14 offen{stm}
s_waitcnt lgkmcnt(0)
""")
    for j in range(7):
        a(f"v_lshl_add_u32 v{24+j}, v{24+j}, 5, v1")
    stamp(3)
    a("s_waitcnt vmcnt(3)\ns_barrier")
    stamp(4)
    for j in range(6):
        a(f"ds_read_b128 v[{32+4*j}:{35+4*j}], v{24+j}")
    a(f"""
s_cmp_ge_u32 s3, 4
s_cbranch_scc1 {name}_no7
ds_read_b128 v[56:59], v30
s_add_u32 s14, s42, {6*16384}
s_waitcnt lgkmcnt(0)
buffer_store_dwordx4 v[56:59], v2, s[32:35], s14 offen{st}
{name}_no7:
""")
    for j in range(6):
        a(f"""
s_waitcnt lgkmcnt({5-j})
buffer_store_dwordx4 v[{32+4*j}:{35+4*j}], v2, s[32:35], s42 offen{st}
s_add_u32 s42, s42, 16384
""")
    if stamps:
        stamp(5); a("s_waitcnt vmcnt(0)"); stamp(6)
        a.srd(16, 12, 1 << 20, 240 << 20)
        a("s_and_b32 s3, s3, 7\ns_lshl_b32 s14, s2, 3\ns_add_u32 s14, s14, s3\ns_lshl_b32 s14, s14, 5\nv_mov_b32 v0, 0")
        for i in range(7): a(f"v_mov_b32 v1, s{90+i}\nbuffer_store_dword v1, v0, s[16:19], s14 offen offset:{4*i}")
    a(f"""
s_endpgm
{name}_weights:
s_load_dwordx4 s[56:59], s[0:1], {KA_WRAD}
s_load_dwordx2 s[60:61], s[0:1], {KA_WSI1}
s_sub_u32 s3, s2, {NCH}
s_lshl_b32 s3, s3, 4
v_lshrrev_b32 v1, 6, v0
v_and_b32 v2, 31, v0
v_readfirstlane_b32 s14, v1
v_bfe_u32 v3, v0, 5, 1
s_add_u32 s3, s3, s14
s_waitcnt lgkmcnt(0)
""")
    a.srd(16, 56, 16 * 640)
    a.srd(20, 58, 128 * 128)
    a.srd(24, 60, 192 * 128)
    a.srd(28, 12, 51200, WS_WR)
    a(f"""
s_cmp_ge_u32 s3, 50
s_cbranch_scc1 {name}_end
v_and_b32 v5, 63, v0
v_lshlrev_b32 v5, 4, v5
s_lshl_b32 s40, s3, 10
s_cmp_ge_u32 s3, 10
s_cbranch_scc1 {name}_wsi
v_mul_u32_u24 v4, {8*640}, v3
v_lshl_add_u32 v4, v2, 1, v4
s_lshl_b32 s15, s3, 6
""")
    for k in range(8):
        a(f"buffer_load_ushort v{8+k}, v4, s[16:19], s15 offen\ns_add_u32 s15, s15, 640")
    a(f"""
s_branch {name}_wpack
{name}_wsi:
s_sub_u32 s14, s3, 10
v_lshlrev_b32 v4, 10, v3
v_lshl_add_u32 v4, v2, 2, v4
s_and_b32 s15, s14, 1
s_lshl_b32 s15, s15, 1
s_lshr_b32 s14, s14, 1
s_lshl_b32 s41, s14, 11
s_add_u32 s15, s15, s41
s_cmp_ge_u32 s14, 8
s_cbranch_scc1 {name}_wsi1
""")
    for k in range(8):
        a(f"buffer_load_ushort v{8+k}, v4, s[20:23], s15 offen offset:{128*k}")
    a(f"""
s_branch {name}_wpack
{name}_wsi1:
s_sub_u32 s15, s15, {128*128}
""")
    for k in range(8):
        a(f"buffer_load_ushort v{8+k}, v4, s[24:27], s15 offen offset:{128*k}")
    a(f"""
{name}_wpack:
s_waitcnt vmcnt(0)
v_lshl_or_b32 v16, v9, 16, v8
v_lshl_or_b32 v17, v11, 16, v10
v_lshl_or_b32 v18, v13, 16, v12
v_lshl_or_b32 v19, v15, 16, v14
buffer_store_dwordx4 v[16:19], v5, s[28:31], s40 offen
{name}_end:
s_endpgm
""")
    return a.text()
```

```python
from common import *

NSLOT = 3504
CAPW = NSLOT - 120
L_WR = 0
L_MT = 10240
L_FLAG = L_MT + 128
L_INV = L_MT + 256
L_YS = L_INV + 256
L_PT = L_YS + NSLOT * 8
L_ID = L_PT + NSLOT * 4
L_RING = 56320
RING = 13440
LINE = 4160
RB_EA = 12416
RA_EA = 6144
RA_WS = 7680
TILE = 3584
K2_LDS = L_RING + 8 * RING
assert L_ID + NSLOT <= L_RING and K2_LDS == 163840
L_HIST = L_RING
L_DEG = L_HIST + 1024
L_BASE = L_DEG + 1024
L_MAP = L_BASE + 1024
L_CNT = L_MAP + 1024
L_WTOT = L_CNT + 256
L_IDXL = L_WTOT + 64
OOB = 0x40000
XB, EB = N * 512, E * 32

S_WAVE, S_SB, S_RING, S_WBASE, S_TOTAL, S_WCNT, S_START, S_NB, S_REM = 3, 32, 33, 34, 35, 36, 37, 38, 39
SRD_X, SRD_E, SRD_T, SRD_O, SRD_W, SRD_M, SRD_S = 4, 8, 12, 16, 20, 24, 28
S_IDX = (40, 44)
S_T0, S_T1, S_T2, S_T3 = 48, 49, 50, 51
S_MASK = 52
S_VAL, S_ADV, S_HALF, S_ROT = 80, 81, 82, 83
SRD_K = 84
S_VON, S_VOFF, S_PADDR, S_PINC, S_PSGN, S_PVAL, S_PF, S_PFO = 68, 69, 70, 71, 66, 67, 78, 79

def srd(d): return f"s[{d}:{d+3}]"
def vr(b, n): return f"v[{b}:{b+n-1}]"

class DS:
    def __init__(self, a, init=()):
        self.a, self.q = a, list(init)
    def op(self, tag, text):
        self.a(text); self.q.append(tag)
    def need(self, *tags, vm=None):
        idx = [i for i, t in enumerate(self.q) if t in tags]
        if not idx:
            if vm is not None: self.a(f"s_waitcnt vmcnt({vm})")
            return False
        n = len(self.q) - 1 - max(idx)
        self.a(f"s_waitcnt {'' if vm is None else 'vmcnt(%d) ' % vm}lgkmcnt({min(n, 15)})")
        self.q = self.q[len(self.q) - min(n, 15):] if n else []
        return True
    def drain(self):
        if self.q: self.a("s_waitcnt lgkmcnt(0)")
        self.q = []

def rho(v_dst, v_e, tmp):
    return f"""
v_bfe_u32 v{v_dst}, v{v_e}, 1, 2
v_and_b32 v{tmp}, 1, v{v_e}
v_lshl_or_b32 v{v_dst}, v{tmp}, 2, v{v_dst}
v_and_or_b32 v{v_dst}, v{v_e}, 8, v{v_dst}
"""

def prologue(a, name, opt):
    a(f"""
{name}:
s_cmp_ge_u32 s2, 256
s_cbranch_scc1 {name}_end
s_load_dwordx2 s[72:73], s[0:1], {KA_X}
s_load_dwordx2 s[74:75], s[0:1], {KA_OUT}
s_load_dwordx2 s[76:77], s[0:1], {KA_WS}
v_lshrrev_b32 v1, 6, v0
s_and_b32 s{S_SB}, s2, 7
v_readfirstlane_b32 s{S_WAVE}, v1
s_lshl_b32 s{S_SB}, s{S_SB}, 5
s_lshr_b32 s{S_T0}, s2, 3
s_add_u32 s{S_SB}, s{S_SB}, s{S_T0}
s_mul_i32 s{S_RING}, s{S_WAVE}, {RING}
s_add_u32 s{S_RING}, s{S_RING}, {L_RING}
s_mov_b32 s{S_VON}, {0x80000000 if opt.get('nomem') else 0}
s_mov_b32 s{S_VOFF}, 0x80000000
s_mov_b32 s{S_WBASE}, 0
s_waitcnt lgkmcnt(0)
""")
    stamp(a, opt, 0)
    a.srd(SRD_T, 76, NCH * 1024, WS_TAB)
    a(f"""
{name}_window:
v_mbcnt_lo_u32_b32 v16, -1, 0
v_mbcnt_hi_u32_b32 v16, -1, v16
v_lshlrev_b32 v0, 4, v16
s_lshl_b32 s{S_T0}, s{S_WAVE}, 6
v_add_u32 v17, s{S_T0}, v16
v_lshrrev_b32 v26, 1, v17
v_lshlrev_b32 v19, 10, v26
s_lshl_b32 s{S_T1}, s{S_SB}, 2
buffer_load_dword v27, v19, {srd(SRD_T)}, s{S_T1} offen
v_mov_b32 v21, 0
""")
    a.srd(SRD_X, 72, XB)
    a.srd(SRD_E, 76, EB, WS_EAS)
    a.srd(SRD_O, 74, XB)
    a.srd(SRD_W, 76, 51200, WS_WR)
    a.srd(SRD_M, 76, E * 8, WS_META)
    a.srd(SRD_K, 76, E * 4, WS_KEY)
    a.srd(SRD_S, 76, 256 * 8 * 128 * 256, WS_SCR)
    mt = [0x05040c0c, 0x03020c0c, 0x80000000, 0,
              0x0c0c0504, 0x01000c0c, 0, 0x80000000,
              0x01000302, 0x0c0c0c0c, 0x8000, 0,
              0x03020100, 0x05040c0c, 0, 0,
              0x0c0c0100, 0, 0x0c0c0302, 0, 0x0c0c0504, 0, 0x0c0c0c0c, 0x3f80,
              0x01000c0c, 0, 0x03020c0c, 0, 0x05040c0c, 0, 0x0c0c0c0c, 0x3f800000]
    a(f"""
v_lshlrev_b32 v22, 2, v17
ds_write_b32 v22, v21 offset:{L_HIST}
v_lshlrev_b32 v22, 2, v16
v_mov_b32 v23, -1
v_mov_b32 v63, v17
s_cmp_lg_u32 s{S_WAVE}, 7
s_cbranch_scc1 {name}_nomt
ds_write_b32 v22, v21 offset:{L_CNT}
ds_write_b32 v22, v23 offset:{L_INV}
""")
    for i, c in enumerate(mt):
        if c: a(f"s_mov_b32 s{S_T1}, {c:#x}\nv_writelane_b32 v21, s{S_T1}, {i}")
    a(f"""
ds_write_b32 v22, v21 offset:{L_MT}
{name}_nomt:
""")
    lane_consts_b(a)
    npf0, npf = opt.get('pf0', 1), opt.get('prefetch', 1)
    a(f"""
s_and_b32 s{S_ROT}, s2, 7
s_mul_i32 s{S_ROT}, s{S_ROT}, {opt.get('rot', 25)}
s_add_u32 s{S_ROT}, s{S_ROT}, 8
s_lshr_b32 s{S_ROT}, s{S_ROT}, 4
s_lshr_b32 s{S_PFO}, s2, 3
s_lshl_b32 s{S_PFO}, s{S_PFO}, 15
s_lshl_b32 s{S_T0}, s{S_ROT}, 21
s_add_u32 s{S_PFO}, s{S_PFO}, s{S_T0}
s_sub_u32 s{S_ROT}, 16, s{S_ROT}
s_lshl_b32 s{S_ROT}, s{S_ROT}, 12
v_lshrrev_b32 v8, 3, v63
v_and_b32 v9, 3, v63
v_max_u32 v9, 1, v9
v_lshlrev_b32 v9, 7, v9
v_lshl_add_u32 v8, v8, 9, v9
s_waitcnt vmcnt(0)
""")
    stamp(a, opt, 1, 1)
    def warm(n):
        for _ in range(n): a(f"buffer_load_dword v9, v8, {srd(SRD_X)}, s{S_PFO} offen\ns_add_u32 s{S_PFO}, s{S_PFO}, {1 << 20}")
    warm(npf0)
    a(f"""
s_lshl_b32 s{S_T1}, s{S_WAVE}, 10
s_mov_b32 m0, s{S_T1}
s_and_b32 s{S_T2}, s{S_T1}, 1024
buffer_load_dwordx4 v0, {srd(SRD_W)}, s{S_T1} offen lds
s_add_u32 s{S_T2}, s{S_T2}, 8192
s_mov_b32 m0, s{S_T2}
s_nop 0
buffer_load_dwordx4 v0, {srd(SRD_W)}, s{S_T2} offen lds
v_lshrrev_b32 v21, 16, v27
v_and_b32 v20, 0xffff, v27
v_and_b32 v23, 1, v16
v_cmp_eq_u32 vcc, 0, v23
s_nop 1
v_cndmask_b32 v22, 0, v21, vcc
""")
    a.scan64(22)
    a(f"""
s_nop 0
v_readlane_b32 s{S_T0}, v22, 63
s_lshl_b32 s{S_T1}, s{S_WAVE}, 2
s_add_u32 s{S_T1}, s{S_T1}, {L_WTOT}
v_mov_b32 v24, s{S_T1}
v_mov_b32 v25, s{S_T0}
ds_write_b32 v24, v25
v_and_b32 v24, 7, v16
v_lshlrev_b32 v24, 2, v24
v_add_u32 v24, {L_WTOT}, v24
v_sub_u32 v22, v22, v21
v_mul_u32_u24 v18, {CH}, v26
v_add_u32 v20, v20, v18
s_waitcnt lgkmcnt(0)
s_barrier
ds_read_b32 v25, v24
s_waitcnt lgkmcnt(0)
""")
    for sh in (1, 2, 4):
        a(f"s_nop 1\nv_add_u32_dpp v25, v25, v25 row_shr:{sh} row_mask:0xf bank_mask:0xf bound_ctrl:0")
    a(f"""
s_nop 0
v_readlane_b32 s{S_TOTAL}, v25, 7
v_readlane_b32 s{S_T1}, v25, s{S_WAVE}
s_sub_u32 s{S_T1}, s{S_T1}, s{S_T0}
s_sub_u32 s{S_T1}, s{S_T1}, s{S_WBASE}
s_sub_u32 s{S_WCNT}, s{S_TOTAL}, s{S_WBASE}
s_min_u32 s{S_WCNT}, s{S_WCNT}, {CAPW}
v_add_u32 v22, s{S_T1}, v22
v_sub_u32 v24, 0, v22
v_max_i32 v24, 0, v24
v_sub_u32 v25, {CAPW}, v22
v_min_i32 v25, v25, v21
v_add_u32 v24, v24, v23
v_sub_u32 v20, v20, v22
v_sub_u32 v25, v25, v24
v_add_lshl_u32 v22, v22, v24, 2
{name}_expand:
""")
    for k in range(8):
        a(f"v_cmpx_lt_i32 vcc, {2*k}, v25")
        if k in (0, 4): a(f"s_cbranch_execz {name}_expanded")
        a(f"ds_write_b32 v22, v20 offset:{L_IDXL + 8*k}")
    a(f"""
v_add_u32 v22, 64, v22
v_subrev_u32 v25, 16, v25
s_branch {name}_expand
{name}_expanded:
s_mov_b64 exec, -1
v_lshlrev_b32 v22, 2, v63
v_add_u32 v22, {L_IDXL}, v22
""")
    REC, RK, BA, PAD = 24, 56, 64, 72
    for j in range(7):
        a(f"v_add_u32 v{BA+j}, {512*j}, v63\nv_cmp_gt_u32 s[{S_MASK+2*j}:{S_MASK+2*j+1}], s{S_WCNT}, v{BA+j}")
    a("v_bfrev_b32 v23, 2")
    a("s_waitcnt lgkmcnt(0)\ns_barrier")
    stamp(a, opt, 2, 1)
    def pay(js):
        for j in js: a(f"buffer_load_dwordx2 {vr(REC+4*j,2)}, v{PAD+j}, {srd(SRD_M)}, 0 offen")
    for j in range(7): a(f"ds_read_b32 v{RK+j}, v22 offset:{2048*j}")
    for j in range(7):
        a(f"""
s_waitcnt lgkmcnt({6-j})
v_add_lshl_u32 v{RK+j}, v{RK+j}, v{BA+j}, 2
v_cndmask_b32 v{RK+j}, v23, v{RK+j}, s[{S_MASK+2*j}:{S_MASK+2*j+1}]
buffer_load_dword v{REC+4*j+2}, v{RK+j}, {srd(SRD_K)}, 0 offen
""")
    stamp(a, opt, 1, 3)
    for j in range(7): a(f"v_lshlrev_b32 v{PAD+j}, 1, v{RK+j}")
    a(f"v_and_b32 v17, 48, v0\nds_read_b128 {vr(MT,4)}, v17 offset:{L_MT}")
    zero(a, ACC, opt.get('z0', 180))
    def mask(j): return f"s_mov_b64 exec, s[{S_MASK+2*j}:{S_MASK+2*j+1}]"
    a("v_mov_b32 v23, 1")
    for j in range(7):
        a(f"""
s_waitcnt vmcnt({6-j})
v_bfe_u32 v{BA+j}, v{REC+4*j+2}, 16, 8
{mask(j)}
v_lshlrev_b32 v{BA+j}, 2, v{BA+j}
v_add_u32 v{RK+j}, s{S_ROT}, v{REC+4*j+2}
ds_add_u32 v{BA+j}, v23 offset:{L_DEG}
v_bfe_u32 v{RK+j}, v{RK+j}, 11, 5
v_lshlrev_b32 v{RK+j}, 2, v{RK+j}
""")
        if j == 0: stamp(a, opt, 2, 3)
        if j == 6: stamp(a, opt, 3, 3)
    a("s_mov_b64 exec, -1")
    stamp(a, opt, 4, 3)
    a(f"""
v_lshlrev_b32 v22, 2, v63
v_cmp_gt_u32 vcc, 200, v63
s_waitcnt lgkmcnt(0)
s_barrier
""")
    stamp(a, opt, 1, 2)
    stamp(a, opt, 5, 3)
    a(f"s_cmp_lt_u32 s{S_WAVE}, 4\ns_cbranch_scc1 {name}_rank")
    pay(range(4))
    a("s_barrier")
    pay(range(4, 7))
    a(f"s_branch {name}_nomap\n{name}_rank:")
    a(f"""
s_and_b64 exec, exec, vcc
ds_read_b32 v21, v22 offset:{L_DEG}
s_waitcnt lgkmcnt(0)
v_min_u32 v21, 63, v21
v_sub_u32 v21, 63, v21
v_lshlrev_b32 v21, 2, v21
ds_add_rtn_u32 v20, v21, v23 offset:{L_CNT}
s_mov_b64 exec, -1
v_lshlrev_b32 v19, 2, v16
s_waitcnt lgkmcnt(0)
s_barrier
""")
    stamp(a, opt, 2, 2)
    a(f"""
ds_read_b32 v18, v19 offset:{L_CNT}
s_waitcnt lgkmcnt(0)
v_mov_b32 v19, v18
""")
    a.scan64(19)
    a(f"""
v_sub_u32 v19, v19, v18
ds_bpermute_b32 v19, v21, v19
s_cmp_lg_u32 s{S_TOTAL}, s{S_WCNT}
s_cselect_b64 s[{S_T2}:{S_T3}], -1, 0
s_and_b64 exec, exec, vcc
s_waitcnt lgkmcnt(0)
v_add_u32 v19, v19, v20
v_cndmask_b32 v19, v19, v63, s[{S_T2}:{S_T3}]
v_lshrrev_b32 v18, 3, v19
v_bfe_i32 v20, v19, 3, 1
v_xor_b32 v19, v19, v20
v_and_b32 v19, 7, v19
v_lshl_add_u32 v20, v19, 5, v18
ds_write_b8 v20, v63 offset:{L_INV}
v_lshlrev_b32 v18, 16, v18
v_lshl_or_b32 v18, v19, 7, v18
ds_write_b32 v22, v18 offset:{L_MAP}
s_mov_b64 exec, -1
{name}_nomap:
""")
    a("s_waitcnt lgkmcnt(0)\ns_barrier")
    stamp(a, opt, 3, 2)
    for j in range(7): a(f"ds_read_b32 v{REC+4*j+3}, v{BA+j} offset:{L_MAP}")
    a(f"s_cmp_ge_u32 s{S_WAVE}, 4\ns_cbranch_scc1 {name}_nopay1")
    pay(range(3))
    a(f"{name}_nopay1:\ns_waitcnt lgkmcnt(0)")
    for j in range(7):
        a(f"v_add_u32_sdwa v{BA+j}, v{RK+j}, v{REC+4*j+3} dst_sel:DWORD dst_unused:UNUSED_PAD src0_sel:DWORD src1_sel:WORD_0")
    for j in range(7): a(f"{mask(j)}\nds_add_rtn_u32 v{RK+j}, v{BA+j}, v23 offset:{L_HIST}")
    a(f"s_mov_b64 exec, -1\ns_cbranch_scc1 {name}_nopay2")
    pay(range(3, 7))
    a(f"{name}_nopay2:")
    stamp(a, opt, 3, 1)
    a(f"""
s_waitcnt lgkmcnt(0)
s_barrier
""")
    stamp(a, opt, 4, 2)
    a(f"""
ds_read_b128 v[72:75], v0 offset:{L_HIST}
""")
    warm(npf)
    a(f"""
s_waitcnt lgkmcnt(0)
v_add_u32 v77, v72, v73
v_add_u32 v78, v77, v74
v_add_u32 v79, v78, v75
v_mov_b32 v71, v79
""")
    for sh in (1, 2, 4):
        a(f"s_nop 1\nv_add_u32_dpp v71, v71, v71 row_shr:{sh} row_mask:0xf bank_mask:0xf bound_ctrl:0")
    a(f"""
v_and_b32 v23, 7, v16
v_cmp_eq_u32 vcc, 7, v23
v_sub_u32 v76, 0, v71
v_and_b32 v76, 15, v76
v_cndmask_b32 v76, 0, v76, vcc
v_add_u32 v79, v79, v76
v_mov_b32 v76, v79
""")
    a.scan64(76)
    a(f"""
v_sub_u32 v76, v76, v79
v_add_u32 v79, v76, v78
v_add_u32 v78, v76, v77
v_add_u32 v77, v76, v72
ds_write_b128 v0, v[76:79] offset:{L_BASE}
s_lshl_b32 s{S_T0}, s{S_WAVE}, 3
s_add_u32 s{S_T1}, s{S_T0}, 7
v_readlane_b32 s{S_START}, v76, s{S_T0}
v_readlane_b32 s{S_T2}, v71, s{S_T1}
""")
    for j in range(7): a(f"ds_read_b32 v{BA+j}, v{BA+j} offset:{L_BASE}")
    a(f"""
s_add_u32 s{S_NB}, s{S_T2}, 15
s_lshr_b32 s{S_NB}, s{S_NB}, 4
s_lshl_b32 s{S_T3}, s{S_NB}, 4
s_sub_u32 s{S_HALF}, s{S_T3}, s{S_T2}
s_cmp_ge_u32 s{S_HALF}, 8
s_cselect_b32 s{S_HALF}, 0, -2
s_mov_b32 s{S_ADV}, 0
v_add_u32 v23, s{S_T2}, v16
v_cmp_gt_u32 vcc, s{S_T3}, v23
v_add_u32 v23, s{S_START}, v23
v_mov_b32 v18, 0
v_mov_b32 v19, 0xffff0000
v_mov_b32 v20, 0x1fffffe0
v_lshlrev_b32 v21, 3, v23
v_lshlrev_b32 v22, 2, v23
s_and_b64 exec, exec, vcc
ds_write_b64 v21, v[18:19] offset:{L_YS}
ds_write_b32 v22, v20 offset:{L_PT}
ds_write_b8 v23, v18 offset:{L_ID}
s_mov_b64 exec, -1
s_waitcnt lgkmcnt(0)
""")
    stamp(a, opt, 5, 2)
    a(f"s_mov_b32 s{S_T0}, 0x0c070302\ns_mov_b32 s{S_T1}, 0x05040100\ns_waitcnt vmcnt({npf})")
    for j in range(7):
        a(f"""
{mask(j)}
v_perm_b32 v20, v{REC+4*j+2}, v{REC+4*j+1}, s{S_T0}
v_perm_b32 v{REC+4*j+1}, v{REC+4*j+2}, v{REC+4*j+1}, s{S_T1}
v_lshlrev_b32 v{REC+4*j+2}, 5, v20
v_add_u32 v23, v{BA+j}, v{RK+j}
v_add_lshl_u32 v21, v{BA+j}, v{RK+j}, 3
v_add_lshl_u32 v22, v{BA+j}, v{RK+j}, 2
ds_write_b8_d16_hi v23, v{REC+4*j+3} offset:{L_ID}
ds_write_b64 v21, {vr(REC+4*j,2)} offset:{L_YS}
ds_write_b32 v22, v{REC+4*j+2} offset:{L_PT}
""")
    a("s_mov_b64 exec, -1")

def list_lanes(a):
    a("v_lshrrev_b32 v17, 3, v16")
    a(rho(2, 17, 18))
    a("v_lshrrev_b32 v17, 2, v16")
    a(rho(3, 17, 18))
    a("v_bfe_u32 v17, v16, 1, 4")
    a(rho(4, 17, 18))
    a("v_and_b32 v14, 0x70, v0")

def list_addrs(a):
    a(f"""
v_add_lshl_u32 v2, v2, s{S_START}, 3
v_add_lshl_u32 v3, v3, s{S_START}, 3
v_add_lshl_u32 v4, v4, s{S_START}, 2
v_and_b32 v15, 3, v16
v_lshl_add_u32 v15, v15, 2, s{S_START}
""")

def ea_addrs(a, v_a0, v_a1, ring_off):
    a(f"""
v_bfe_u32 v17, v16, 3, 2
v_and_b32 v18, 3, v16
v_lshl_or_b32 v17, v17, 2, v18
v_lshlrev_b32 v17, 5, v17
v_lshrrev_b32 v18, 5, v16
v_lshl_or_b32 v17, v18, 4, v17
v_bfe_u32 v18, v16, 2, 1
v_mul_u32_u24 v18, {OOB + 16}, v18
v_xor_b32 v17, v18, v17
s_add_u32 s{S_T0}, s{S_RING}, {ring_off}
v_add_u32 v{v_a0}, s{S_T0}, v17
v_xor_b32 v17, {OOB + 16}, v17
v_add_u32 v{v_a1}, s{S_T0}, v17
""")

def valid(a, k):
    a(f"""
s_cmp_ge_i32 s{S_REM}, {k}
s_cselect_b32 s{S_VAL}, s{S_VON}, s{S_VOFF}
""")

def dma_e(a, v, off, restore=True):
    a(f"""
s_add_u32 m0, s{S_RING}, {off}
s_mov_b32 exec_hi, 0
buffer_load_dwordx4 v{v}, {srd(SRD_E)}, s{S_VAL} offen lds
""")
    if restore: a("s_mov_b32 exec_hi, -1")

def zero(a, lo, hi):
    if lo & 1 and lo < hi: a(f"v_mov_b32 v{lo}, 0"); lo += 1
    for r in range(lo, hi, 2): a(f"v_mov_b64 {vr(r,2)}, 0")

def align(a, k):
    if k is None: return
    a(".p2alignl 5, 0xbf800000")
    for _ in range(k): a("s_nop 0")

def prio_init(a):
    a(f"""
s_max_u32 s{S_T0}, s{S_NB}, 1
v_cvt_f32_u32 v17, s{S_T0}
v_rcp_f32 v17, v17
s_and_b32 s{S_PADDR}, s{S_WAVE}, 3
s_lshl_b32 s{S_PADDR}, s{S_PADDR}, 2
v_mul_f32 v17, 0x47800000, v17
s_add_u32 s{S_PADDR}, s{S_PADDR}, {L_FLAG + 16}
v_cvt_u32_f32 v17, v17
s_cmp_ge_u32 s{S_WAVE}, 4
s_cselect_b32 s{S_PSGN}, -1, 1
v_readfirstlane_b32 s{S_PINC}, v17
s_mul_i32 s{S_PINC}, s{S_PINC}, s{S_PSGN}
s_mov_b32 s{S_PVAL}, 0
""")
def young_prio(a, lvl): a(f"s_setprio 1\ns_cmp_lt_u32 s{S_WAVE}, 4\ns_cbranch_scc1 1\ns_setprio {lvl}")
def prio_addr(va, vd): return [f"v_lshl_add_u32 v{va}, v0, 14, s{S_PADDR}", f"v_mov_b32 v{vd}, s{S_PINC}"]
def prio_add(va, vd): return ("pr", f"ds_add_rtn_u32 v{vd}, v{va}, v{vd}")
def prio_read(vd): return [f"v_readfirstlane_b32 s{S_PVAL}, v{vd}", f"s_mul_i32 s{S_PVAL}, s{S_PVAL}, s{S_PSGN}"]
def prio_set(base=0):
    return [f"s_cmp_ge_i32 s{S_PVAL}, 0", f"s_setprio {base}", "s_cbranch_scc1 1", f"s_setprio {base+1}"]

M3, M1, XR, G, T1, T2, T3, ACC = 6, 8, (10, 12), (16, 24), 32, 48, 64, 81

def dma_x(a, v, slot, fill):
    for b in range(3):
        a(f"s_add_u32 m0, s{S_RING}, {b*LINE + slot*1024 - 128*(b+1)}")
        a(fill[b] if b < len(fill) else "s_nop 0")
        a(f"buffer_load_dwordx4 v{v}, {srd(SRD_X)}, s{S_VAL} offen offset:{128*(b+1)} lds")

GG, XX, MT, EC = 16, (20, 24, 28), 10, 7

def lane_consts_b(a):
    list_lanes(a)
    ea_addrs(a, 5, 80, RB_EA)
    a(f"""
v_lshrrev_b32 v18, 4, v16
v_lshlrev_b32 v17, 5, v18
v_and_b32 v18, 3, v16
v_lshl_add_u32 v17, v18, 3, v17
v_add_u32 v17, s{S_RING}, v17
v_bfe_u32 v18, v16, 2, 2
v_min_u32 v19, 2, v18
v_mul_u32_u24 v19, {LINE}, v19
v_cmp_eq_u32 vcc, 2, v18
v_mov_b32 v20, {OOB + 192}
v_bfe_u32 v21, v16, 3, 1
v_cndmask_b32 v19, v19, v20, vcc
v_add_u32 v1, v17, v19
v_and_b32 v18, 1, v18
v_cmp_eq_u32 vcc, 0, v18
v_mul_u32_u24 v21, {LINE}, v21
s_nop 0
v_cndmask_b32 v21, v21, v20, vcc
v_add_u32 v6, v17, v21
""")

def pass_b(a, name, opt):
    si = S_IDX[0]
    prio = opt.get('prio', 3)
    def xread(ds, p, e):
        o = ((2*p + (e >> 3)) & 3)*1024 + (e & 7)*128
        ds.op(f"x{e}", f"ds_read_b64_tr_b16 {vr(XX[e%3],2)}, v1 offset:{o}")
        ds.op(f"x{e}", f"ds_read_b64_tr_b16 {vr(XX[e%3]+2,2)}, v6 offset:{o}")
    def wr(tag, dst, path, h): return (f"{tag}{h}", f"ds_read_b128 {vr(dst,4)}, v0 offset:{L_WR + (path*2+h)*1024}")
    W1 = [wr("W1", T3+4*h, 3, h) for h in range(2)]
    W2 = [wr("W2", T3+8+4*h, 4, h) for h in range(2)]
    W3 = [wr("W3", (XX[0], GG)[h], 1, h) for h in range(2)]
    AR = (XX[1], XX[2])
    def ar(p, h): return (f"A{h}", f"ds_read_b128 {vr(AR[h],4)}, v{(5, 80)[h]} offset:{p*512}")
    def tail_reads(off):
        return [("ys", f"ds_read_b64 {vr(T2,2)}, v3 offset:{L_YS + 128*off}"),
                ("sr", f"ds_read_u16 v{T2+2}, v2 offset:{L_YS + 6 + 128*(off+1) + 64}"),
                ("pt", f"ds_read_b32 v{T2+3}, v4 offset:{L_PT + 64*(off+2)}"),
                ("id", f"ds_read_b32 v{T2+4}, v15 offset:{L_ID + 16*off}")]
    if opt.get('solo'): a(f"s_cmp_ge_u32 s{S_WAVE}, 4\ns_cselect_b32 s{S_NB}, 0, s{S_NB}")
    if prio in (1, 2):
        prio_init(a)
        a(prio_addr(7, 0)[0])
    list_addrs(a)
    if opt.get('ahead', 0):
        a(f"""
s_lshl_b32 s{S_T0}, s{S_WAVE}, 8
s_add_u32 s{S_T0}, s{S_T0}, s2
s_lshl_b32 s{S_PFO}, s{S_T0}, 14
s_sub_u32 s{S_T0}, {1563 + opt.get('lead', 190)}, s{S_T0}
s_mul_i32 s{S_T0}, s{S_T0}, s{S_NB}
s_mul_i32 s{S_T0}, s{S_T0}, 42
s_ashr_i32 s{S_PF}, s{S_T0}, 16
""")
    a(f"""
s_sub_u32 s{S_REM}, s{S_NB}, 1
s_waitcnt lgkmcnt(0)
s_barrier
""")
    stamp(a, opt, 1)
    stamp(a, opt, 4, 1)
    ds = DS(a)
    for t in range(2): ds.op(f"pt{t}", f"ds_read_b32 v{T1+8+t}, v4 offset:{L_PT + 64*t}")
    for h in range(3): ds.op(f"sr{h}", f"ds_read_u16 v{T1+10+h}, v2 offset:{L_YS + 6 + 64*h}")
    for op in tail_reads(0) + W1: ds.op(*op)
    ds.need("sr2")
    for t in range(2): a(f"v_and_or_b32 v{T1+8+t}, v0, 16, v{T1+8+t}")
    for h in range(3): a(f"v_lshl_or_b32 v{T1+10+h}, v{T1+10+h}, 9, v14")
    valid(a, 0)
    dma_e(a, T1+8, RB_EA)
    dma_x(a, T1+10, 0, [])
    if opt.get('startbar', 0): a("s_barrier")
    zero(a, opt.get('z0', 180), opt.get('z1', 256))
    dma_x(a, T1+11, 1, [])
    valid(a, 1)
    dma_e(a, T1+9, RB_EA + 512)
    dma_x(a, T1+12, 2, [])
    zero(a, opt.get('z1', 256), 256)
    a(f"s_cmp_eq_u32 s{S_NB}, 0\ns_cbranch_scc1 {name}_b_done")
    ds.drain()
    a("s_waitcnt vmcnt(10)")
    stamp(a, opt, 5, 1)
    for op in (ar(0, 0), W2[0], ar(0, 1)): ds.op(*op)
    entry = list(ds.q)
    align(a, opt.get('alb'))
    a(f"{name}_b_loop:")
    for p in range(2):
        ds = DS(a, entry)
        def big(tag, tile, w, h):
            ds.need(f"A{h}", f"{tag}{h}")
            a(f"v_mfma_f32_32x32x16_bf16 {vr(tile,16)}, {vr(AR[h],4)}, {vr(w,4)}, {vr(tile,16) if h else 0}")
        def m0x(b, slot): return f"s_add_u32 m0, s{S_RING}, {b*LINE + slot*1024 - 128*(b+1)}"
        def ldx(v, b): return f"buffer_load_dwordx4 v{v}, {srd(SRD_X)}, s{S_VAL} offen offset:{128*(b+1)} lds"
        if p == 0 and opt.get('grp') == 4:
            for i, it in enumerate((1, 2, 4, 7, 10)):
                a(f"s_cmp_lg_u32 s{S_ADV}, {32*it}\ns_cbranch_scc1 4")
                stamp(a, opt, 1 + i, 4)
        if p == 0 and opt.get('ahead', 0):
            a(f"s_cmp_le_i32 s{S_REM}, s{S_PF}\ns_cbranch_scc1 {name}_b_ahead\n{name}_b_back:")
        if opt.get('rprio'): a("s_setprio 0")
        big("W1", T1, T3, 0)
        ds.op(*W2[1]); ds.op(*W3[0]); ds.op(*W3[1])
        a(f"""
v_perm_b32 v{M1}, v{T2+1}, v{T2}, v{MT}
v_perm_b32 v{M1+1}, v{T2+1}, v{T2}, v{MT+1}
v_xor_b32 v{M1}, v{M1}, v{MT+2}
v_xor_b32 v{M1+1}, v{M1+1}, v{MT+3}
""")
        big("W1", T1, T3+4, 1)
        a(f"v_lshl_or_b32 v{T3}, v{T2+2}, 9, v14\nv_and_or_b32 v{T3+1}, v0, 16, v{T2+3}")
        for i in range(4): a(f"v_readlane_b32 s{si+i}, v{T2+4}, {i}")
        sl = (2*p + 3) & 3
        a(m0x(0, sl))
        big("W2", T2, T3+8, 0)
        a(f"{ldx(T3, 0)}\n{m0x(1, sl)}")
        ds.drain()
        a(f"{ldx(T3, 1)}\n{m0x(2, sl)}")
        big("W2", T2, T3+12, 1)
        a(ldx(T3, 2))
        valid(a, 2)
        dma_e(a, T3+1, RB_EA + 512*p)
        big("W3", T3, XX[0], 0)
        a(f"s_mul_i32 s{si}, s{si}, 7\ns_mul_i32 s{si+1}, s{si+1}, 7\ns_waitcnt vmcnt(11)")
        xread(ds, p, 0); xread(ds, p, 1)
        big("W3", T3, GG, 1)
        a(f"s_mul_i32 s{si+2}, s{si+2}, 7\ns_mul_i32 s{si+3}, s{si+3}, 7")
        tr_ = tail_reads(p+1)
        pre = {5: [f"v_lshl_or_b32 v{T1+1}, v{T1+1}, 9, v14"]}
        if p == 1: pre[13] = ["v_add_u32 v2, 256, v2", "v_add_u32 v3, 256, v3", "v_add_u32 v4, 128, v4", "v_add_u32 v15, 32, v15", f"s_add_u32 s{S_ADV}, s{S_ADV}, 32"]
        aux = {2: [("sm", f"ds_read_u16 v{T1+1}, v2 offset:{L_YS + 6 + 128*(p+2)}")],
               4: tr_[:2], 8: tr_[2:3], 10: tr_[3:], 12: W1}
        if prio == 1 or (prio == 2 and p == 0):
            pre[1] = prio_addr(7, T3)[1:]; aux[1] = [prio_add(7, T3)]
            pre[4] = prio_read(T3) + ([] if opt.get('rprio') else prio_set())
        if opt.get('rprio'):
            for l in prio_set(1): a(l)
        for e in range(16):
            x = XX[e % 3]
            if prio == 3 and 16*p + e in opt.get('phb', {0: 2, 21: 0}): young_prio(a, opt.get('phb', {0: 2, 21: 0})[16*p + e])
            if e == 8 and opt.get('half', 1): a(f"s_cmp_eq_u32 s{S_REM}, s{S_HALF}\ns_cbranch_scc1 {name}_b_done")
            if e in (8, 9, 10): a(m0x(e-8, 2*p))
            ds.need(f"x{e}", vm=7 if e == 6 else None)
            if e in (8, 9, 10): a(f"{ldx(T1+1, e-8)}\ns_set_gpr_idx_mode 0")
            a(f"v_mfma_f32_4x4x4_16b_bf16 {vr(GG,4)}, {vr(M1,2)}, {vr(x,2)}, 0 cbsz:4 abid:{e}")
            for l in pre.get(e, []): a(l)
            a(f"s_set_gpr_idx_on s{si + 2*(e >> 3) + (e & 1)}, 0x8")
            if (e & 1) and (e & 7) != 7:
                r = si + 2*(e >> 3)
                a(f"s_lshr_b64 s[{r}:{r+1}], s[{r}:{r+1}], 8")
            for op in aux.get(e, []): ds.op(*op)
            if e < 14: xread(ds, p, e+2)
            elif e == 14: ds.op(*ar(p ^ 1, 0)); ds.op(*W2[0])
            else: ds.op(*ar(p ^ 1, 1))
            for i, src in enumerate((x+2, x+3, x+1)): a(f"v_fmac_f32 v{ACC+4+i}, v{src}, v{T1+e}")
            for i in range(4): a(f"v_fmac_f32 v{ACC+i}, v{GG+i}, v{(T2, T2, T2, T3)[i]+e}")
            if e == 15: a("s_set_gpr_idx_off")
            elif e + 1 not in (8, 9, 10): a("s_set_gpr_idx_mode 0")
        a(f"s_sub_u32 s{S_REM}, s{S_REM}, 1\ns_cbranch_scc1 {name}_b_done")
        assert ds.q == entry, (ds.q, entry)
    a(f"s_branch {name}_b_loop")
    if opt.get('ahead', 0):
        a(f"""
{name}_b_ahead:
v_lshlrev_b32 v{T1}, 3, v0
s_mov_b32 m0, {L_MT}
s_mov_b32 s{S_PF}, -100
s_mov_b32 exec_hi, 0
""")
        for i in range(4): a(f"buffer_load_dword v{T1}, {srd(SRD_X)}, s{S_PFO} offen lds\ns_add_u32 s{S_PFO}, s{S_PFO}, 4096")
        a(f"s_mov_b32 exec_hi, -1\ns_branch {name}_b_back")
    a(f"{name}_b_done:\ns_set_gpr_idx_off")

def pack(a, ops, spare):
    ops, spare, moves = list(ops), list(spare), []
    while ops:
        for k, (d, x, y) in enumerate(ops):
            if not any(d in o[1:] for j, o in enumerate(ops) if j != k): break
        else:
            k = 0; d, x, y = ops[0]; t = spare.pop(); moves.append((d, t)); d = t
        a(f"v_cvt_pk_bf16_f32 v{d}, v{x}, v{y}"); ops.pop(k)
    for d, t in moves: a(f"v_mov_b32 v{d}, v{t}")

ORD_B = (3, 4, 0, 5, 1, 6, 2)
ORD_A = (2, 1, 0, 3)
PB, ACA = 68, 156
TA0, TA2 = 32, 48
SB_ = (10, 12, 64, 66)
M2, SELA, AA, WA = 8, 6, 16, 24

def pass_a(a, name, opt):
    def dma_s(v, slot, fill="s_nop 0"):
        a(f"s_add_u32 m0, s{S_RING}, {slot*1024}\n{fill}\nbuffer_load_dwordx4 v{v}, {srd(SRD_X)}, s{S_VAL} offen lds")
    SR = SB_ + (AA, AA+2, AA+4, AA+6)
    def sread(c, m):
        slot = 2*c + (m >> 2)
        return (f"s{m}", f"ds_read_b64_tr_b16 {vr(SR[m],2)}, v1 offset:{slot*1024 + (m & 3)*256}")
    def next_reads(c, off):
        r = [("sr1", f"ds_read_u16 v{TA2+2}, v2 offset:{L_YS + 6 + 128*(off+2) + 64}"),
             ("sr0", f"ds_read_u16 v{TA2+3}, v2 offset:{L_YS + 6 + 128*(off+3)}"),
             ("pt", f"ds_read_b32 v{TA2+5}, v4 offset:{L_PT + 64*(off+3)}")]
        r += [(f"W0{h}", f"ds_read_b128 {vr(TA2+8+4*h,4)}, v0 offset:{L_WR + h*1024}") for h in range(2)]
        r += [("A0", f"ds_read_b128 {vr(AA,4)}, v5 offset:{c*512}"),
              ("A1", f"ds_read_b128 {vr(AA+4,4)}, v7 offset:{c*512}")]
        r += [sread(c, m) for m in range(4)]
        r += [("ys", f"ds_read_b64 {vr(TA2,2)}, v3 offset:{L_YS + 128*off}"),
              ("id", f"ds_read_b32 v{TA2+4}, v15 offset:{L_ID + 16*off}")]
        return r
    a(f"""
s_waitcnt vmcnt(0) lgkmcnt(0)
s_mul_i32 s{S_T1}, s{S_WAVE}, 5120
s_add_u32 s{S_T1}, s{S_T1}, 10240
""")
    for j in range(5):
        a(f"s_add_u32 m0, s{S_RING}, {RA_WS}\ns_nop 0\nbuffer_load_dwordx4 v0, {srd(SRD_W)}, s{S_T1} offen offset:{1024*j if j < 4 else 0} lds"
          if j < 4 else
          f"s_add_u32 m0, s{S_RING}, {RA_WS+4096}\ns_add_u32 s{S_T1}, s{S_T1}, 4096\nbuffer_load_dwordx4 v0, {srd(SRD_W)}, s{S_T1} offen lds")
    a(f"""
s_lshl_b32 s{S_T0}, s{S_ADV}, 3
s_lshl_b32 s{S_T1}, s{S_ADV}, 2
v_subrev_u32 v2, s{S_T0}, v2
v_subrev_u32 v4, s{S_T1}, v4
v_lshrrev_b32 v17, 1, v14
""")
    ds = DS(a)
    for h in range(5): ds.op(f"sr{h}", f"ds_read_u16 v{TA0+h}, v2 offset:{L_YS + 6 + 64*h}")
    for t in range(3): ds.op(f"pt{t}", f"ds_read_b32 v{TA0+8+t}, v4 offset:{L_PT + 64*t}")
    ds.op("mt", f"ds_read_b64 {vr(M2,2)}, v17 offset:{L_MT + 64}")
    a(f"""
v_subrev_u32 v3, s{S_T0}, v3
v_subrev_u32 v15, s{S_ADV}, v15
v_bfe_u32 v17, v0, 7, 1
v_mul_u32_u24 v17, {LINE - 128}, v17
v_sub_u32 v1, v6, v17
v_subrev_u32 v5, {RB_EA - RA_EA}, v5
v_subrev_u32 v7, {RB_EA - RA_EA}, v80
s_sub_u32 s{S_REM}, s{S_NB}, 1
""")
    ds.drain()
    for h in range(5): a(f"v_lshl_or_b32 v{TA0+h}, v{TA0+h}, 9, v14")
    for t in range(3): a(f"v_and_or_b32 v{TA0+8+t}, v0, 16, v{TA0+8+t}")
    a(f"v_mov_b32 v{SELA}, v{M2}")
    for t in range(3):
        valid(a, t)
        dma_s(TA0+2*t, 2*t)
        dma_e(a, TA0+8+t, RA_EA + 512*t)
        if t < 2: dma_s(TA0+2*t+1, 2*t+1)
    for h in range(2): ds.op(f"W2{h}", f"ds_read_b128 {vr(WA+4*h,4)}, v0 offset:{L_WR + (4+h)*1024}")
    pack(a, [(PB + 12*ORD_B.index(i) + p, ACC+14*p+i, ACC+14*p+7+i) for p in range(12) for i in range(7)]
            + [(PB+84+i, ACC+168+2*i, ACC+168+min(2*i+1, 6)) for i in range(4)], range(48, 64))
    zero(a, ACA, 256)
    a(f"""
s_waitcnt vmcnt(6)
v_mov_b32 v17, {L_FLAG}
v_mov_b32 v18, 1
s_mov_b64 exec, 1
ds_add_u32 v17, v18
s_mov_b64 exec, -1
s_cmp_eq_u32 s{S_NB}, 0
s_cbranch_scc1 {name}_a_done
s_waitcnt lgkmcnt(0)
""")
    ds.q = []
    stamp(a, opt, 3)
    for tag, text in next_reads(0, 0): ds.op(tag, text)
    entry = list(ds.q)
    si = S_IDX[0]
    align(a, opt.get('ala'))
    a(f"{name}_a_loop:")
    for c in range(3):
        ds = DS(a, entry)
        pra = opt.get('prio', 3) == 1 or (opt.get('prio', 3) == 2 and c == 0)
        def big(tile, w, h): a(f"v_mfma_f32_32x32x16_bf16 {vr(tile,16)}, {vr(AA+4*h,4)}, {vr(w+4*h,4)}, {vr(tile,16) if h else 0}")
        def mul(tile, *ms):
            for m in ms:
                for i in range(2): a(f"v_mul_f32 v{tile+2*m+i}, v{tile+2*m+i}, v{SR[m]+i}")
        def cvt_t(*ms):
            for m in ms: a(f"v_cvt_pk_bf16_f32 v{TA0+2*m+1}, v{TA0+2*m}, v{TA0+2*m+1}")
        def cvt_u(*ms):
            for m in ms: a(f"v_cvt_pk_bf16_f32 v{TA0+2*m}, v{TA2+2*m}, v{TA2+2*m+1}")
        if opt.get('prio', 3) == 3 and 2*c in opt.get('pha', {0: 2, 4: 0}): young_prio(a, opt.get('pha', {0: 2, 4: 0})[2*c])
        ds.need("s3")
        big(TA0, TA2+8, 0)
        a(f"v_lshl_or_b32 v{TA2+2}, v{TA2+2}, 9, v14")
        dma_s(TA2+2, (2*c+5) % 6, f"v_lshl_or_b32 v{TA2+3}, v{TA2+3}, 9, v14")
        valid(a, 3)
        a(f"s_add_u32 m0, s{S_RING}, {2*c*1024}")
        big(TA0, TA2+8, 1)
        a(f"buffer_load_dwordx4 v{TA2+3}, {srd(SRD_X)}, s{S_VAL} offen lds\nv_and_or_b32 v{TA2+5}, v0, 16, v{TA2+5}")
        dma_e(a, TA2+5, RA_EA + 512*c)
        ds.need("id", vm=6)
        a(f"v_perm_b32 v{M2}, v{TA2+1}, v{TA2}, v{SELA}")
        for i in range(4): a(f"v_readlane_b32 s{si+i}, v{TA2+4}, {i}")
        big(TA2, WA, 0)
        a(f"s_lshl_b64 s[{si}:{si+1}], s[{si}:{si+1}], 2")
        ds.op(*sread(c, 4)); ds.op(*sread(c, 5))
        mul(TA0, 0, 1)
        big(TA2, WA, 1)
        a(f"s_lshl_b64 s[{si+2}:{si+3}], s[{si+2}:{si+3}], 2")
        ds.op(*sread(c, 6)); ds.op(*sread(c, 7))
        mul(TA0, 2, 3); cvt_t(0, 1, 2, 3)
        ds.need("s5")
        mul(TA0, 4, 5); mul(TA2, 0, 1, 2, 3)
        ds.need("s7")
        cvt_u(0, 1, 2, 3)
        mul(TA0, 6, 7); mul(TA2, 4, 5)
        if pra:
            for l in prio_addr(TA2+6, TA2+7): a(l)
        cvt_t(4, 5, 6, 7)
        mul(TA2, 6, 7)
        cvt_u(4, 5, 6, 7)
        if opt.get('prio', 3) == 3 and 2*c+1 in opt.get('pha', {}): young_prio(a, opt['pha'][2*c+1])
        fill = ([prio_add(TA2+6, TA2+7)] if pra else []) + next_reads((c + 1) % 3, c+1)
        for e in range(16):
            a(f"s_set_gpr_idx_on s{si + 2*(e >> 3) + (e & 1)}, 0xc")
            if (e & 1) and (e & 7) != 7:
                q = si + 2*(e >> 3)
                a(f"s_lshr_b64 s[{q}:{q+1}], s[{q}:{q+1}], 8")
                if e < 8 or (pra and e == 9): ds.op(*fill.pop(0))
            else: ds.op(*fill.pop(0))
            a(f"v_mfma_f32_4x4x4_16b_bf16 {vr(ACA,4)}, {vr(M2,2)}, {vr(TA0+(e&14),2)}, {vr(ACA,4)} cbsz:4 abid:{e}")
        assert not fill
        a("s_set_gpr_idx_off")
        if pra:
            ds.need("pr")
            for l in prio_read(TA2+7) + prio_set(): a(l)
        if c == 2:
            a("v_add_u32 v2, 384, v2\nv_add_u32 v3, 384, v3\nv_add_u32 v4, 192, v4\nv_add_u32 v15, 48, v15")
        a(f"s_sub_u32 s{S_REM}, s{S_REM}, 1\ns_cbranch_scc1 {name}_a_done")
        assert ds.q == entry, (ds.q, entry)
    a(f"s_branch {name}_a_loop\n{name}_a_done:")

def epilogue(a, name, opt):
    PA = ACA
    DT = ((224, 240), (192, 208), (74, 176), (192, 208))
    AOP, WOP, TMP, ROW = 8, 24, (56, 57, 58, 59), 60
    nt = opt.get('store_nt', ' sc1')
    young_prio(a, opt.get('phe', 2))
    a(f"""
s_waitcnt lgkmcnt(0)
v_mov_b32 v7, {L_FLAG}
v_lshrrev_b32 v16, 4, v0
v_mul_u32_u24 v1, 56, v16
v_add_u32 v1, s{S_RING}, v1
v_lshrrev_b32 v17, 5, v16
v_bfe_u32 v18, v16, 2, 2
v_lshl_add_u32 v18, v17, 3, v18
v_mul_u32_u24 v2, 56, v18
v_bfe_u32 v18, v16, 4, 1
v_lshl_add_u32 v2, v18, 5, v2
v_and_b32 v18, 3, v16
v_lshl_add_u32 v2, v18, 3, v2
v_add_u32 v2, s{S_RING}, v2
v_add_u32 v3, {L_RING + RA_WS}, v0
v_add_u32 v4, {L_RING + RA_WS + 5*RING}, v0
v_and_b32 v18, 31, v16
v_lshlrev_b32 v18, 2, v18
s_lshl_b32 s{S_T0}, s{S_SB}, 9
v_add_u32 v5, s{S_T0}, v18
s_lshl_b32 s{S_T0}, s{S_WAVE}, 5
v_lshl_add_u32 v6, v17, 2, s{S_T0}
s_add_u32 s{S_T2}, s{S_WBASE}, s{S_WCNT}
s_cmp_ge_u32 s{S_T2}, s{S_TOTAL}
s_cselect_b32 s{SRD_O+2}, {0 if opt.get('nostore') else XB}, 0
s_lshl_b32 s{S_T3}, s2, 3
s_add_u32 s{S_T3}, s{S_T3}, s{S_WAVE}
s_lshl_b32 s{S_T3}, s{S_T3}, 15
{name}_spin:
ds_read_b32 v17, v7
s_waitcnt lgkmcnt(0)
v_readfirstlane_b32 s{S_T0}, v17
s_cmp_lt_u32 s{S_T0}, 8
s_cbranch_scc1 {name}_spin
""")
    def ga(i): return (PA + 2 + 12*ORD_A.index(i), PA + (i >> 1), i & 1)
    def gb(i): return (PB + 12*ORD_B.index(i), PB + 84 + (i >> 1), i & 1)
    groups = [(gb(3), 1, 0), (ga(3), 0, 0)]
    for j in range(3): groups += [(ga(j), 2, j+1), (gb(4+j), 3, j+1), (gb(j), 4, j+1)]
    NG = len(groups)
    ds = DS(a)
    def writes(g):
        base, tail, hi = groups[g][0]
        off = (g & 1) * TILE
        return [(f"w{g}", f"ds_write_b64 v1, {vr(base+2*q,2)} offset:{off + 8*q}") for q in range(6)] + \
               [(f"w{g}", f"ds_write_b16{'_d16_hi' if hi else ''} v1, v{tail} offset:{off + 48}")]
    def aread(m):
        g, t = divmod(m, 4)
        return [(f"a{m}", f"ds_read_b64_tr_b16 {vr(AOP+4*t+2*j,2)}, v2 offset:{(g & 1)*TILE + (16*t+4*j)*56}") for j in range(2)]
    def wread(n):
        g, i = divmod(n, 8)
        w, k = divmod(groups[g][1]*8 + i, 5)
        v, o = (3, w*RING) if w < 5 else (4, (w-5)*RING)
        return (f"W{n}", f"ds_read_b128 {vr(WOP+4*(n&7),4)}, v{v} offset:{o + k*1024}")
    def fin(comp):
        D, G_ = DT[comp], DT[0]
        out = []
        for r in range(13):
            t = TMP[r & 3]
            if comp: out += [f"v_mul_f32 v{D[u]+r}, v{D[u]+r}, v{G_[u]+r}" for u in range(2)]
            out += [f"v_cvt_pk_bf16_f32 v{t}, v{D[0]+r}, v{D[1]+r}"]
            if not comp:
                out += [f"v_mul_f32 v{D[u]+r}, 0xbfb8aa3b, v{D[u]+r}" for u in range(2)]
                out += [f"v_exp_f32 v{D[u]+r}, v{D[u]+r}" for u in range(2)]
            out += [f"buffer_store_dword v{t}, v{ROW+r}, {srd(SRD_O)}, 0 offen offset:{128*comp}{nt}"]
            if not comp:
                out += [f"v_add_f32 v{D[u]+r}, 1.0, v{D[u]+r}" for u in range(2)]
                out += [f"v_rcp_f32 v{D[u]+r}, v{D[u]+r}" for u in range(2)]
        return out
    a("s_waitcnt vmcnt(0)")
    for op in writes(0) + aread(0) + [wread(0), wread(1)] + aread(1) + [wread(2), wread(3)]: ds.op(*op)
    pack(a, [(ga(i)[0] + p, ACA+8*p+i, ACA+8*p+4+i) for p in range(12) for i in range(4)]
            + [(PA+i, ACA+96+2*i, ACA+97+2*i) for i in range(2)], range(40, 68))
    side = []
    for m in range(4*NG):
        g, t = divmod(m, 4)
        comp = groups[g][2]
        first = (g == 0 or groups[g-1][2] != comp) and t == 0
        D = DT[comp]
        ops = []
        if g+1 < NG and t < 2: ops += writes(g+1)[4*t:4*t+4]
        if m+2 < 4*NG: ops += aread(m+2) + [wread(2*m+4), wread(2*m+5)]
        if m == 2: ops += [("row", f"ds_read_u8 v{ROW+r}, v6 offset:{L_INV + (r >> 2)*8 + (r & 3)}") for r in range(13)]
        if m == 6: side = [f"v_lshl_add_u32 v{ROW+r}, v{ROW+r}, 17, v5" for r in range(13)]
        ds.need(f"a{m}", f"W{2*m+1}")
        for u in range(2):
            a(f"v_mfma_f32_32x32x16_bf16 {vr(D[u],16)}, {vr(AOP+4*t,4)}, {vr(WOP+4*((2*m+u)&7),4)}, {0 if first else vr(D[u],16)}")
            k = (len(ops) + 1 - u) // (2 - u)
            for op in ops[:k]: ds.op(*op)
            ops = ops[k:]
            if not first:
                for l in side[:opt.get('side', 6)]: a(l)
                side = side[opt.get('side', 6):]
        if t == 3 and (g+1 == NG or groups[g+1][2] != comp):
            for l in side: a(l)
            a(f"s_cmp_lg_u32 s{S_TOTAL}, s{S_WCNT}\ns_cbranch_scc1 {name}_multi{comp}\n{name}_fin{comp}:")
            side = fin(comp)
    a("s_nop 9")
    for l in side: a(l)
    a(f"{name}_next3:")
    stamp(a, opt, 5)
    stamps_out(a, opt)
    a(f"""
s_cmp_ge_u32 s{S_T2}, s{S_TOTAL}
s_cbranch_scc1 {name}_end
s_mov_b32 s{S_WBASE}, s{S_T2}
s_setprio 0
s_waitcnt vmcnt(0) lgkmcnt(0)
s_barrier
s_branch {name}_window
""")
    for comp in range(4):
        D = DT[comp]
        a(f"""
{name}_multi{comp}:
s_nop 15
v_lshrrev_b32 v7, 2, v0
s_add_u32 s{S_T0}, s{S_T3}, {comp*8192}
s_add_u32 s{S_T1}, s{S_T0}, 4096
s_cmp_eq_u32 s{S_WBASE}, 0
s_cbranch_scc1 {name}_mst{comp}
""")
        for u in range(2):
            for r in range(13):
                a(f"buffer_load_dword v{TMP[0]}, v7, {srd(SRD_S)}, s{S_T0+u} offen offset:{256*r} sc1\ns_waitcnt vmcnt(0)\nv_add_f32 v{D[u]+r}, v{D[u]+r}, v{TMP[0]}")
        a(f"{name}_mst{comp}:")
        for u in range(2):
            for r in range(13):
                a(f"buffer_store_dword v{D[u]+r}, v7, {srd(SRD_S)}, s{S_T0+u} offen offset:{256*r}")
        a(f"s_waitcnt vmcnt(0)\ns_branch {name}_fin{comp}")
    a(f"{name}_end:\ns_endpgm")

def dump_regs(a):
    a("s_waitcnt vmcnt(0) lgkmcnt(0)\ns_nop 15")
    a.srd(96, 76, 128 << 20, 64 << 20)
    a(f"""
v_lshrrev_b32 v0, 2, v0
s_lshl_b32 s{S_T0}, s2, 3
s_add_u32 s{S_T0}, s{S_T0}, s{S_WAVE}
s_lshl_b32 s{S_T0}, s{S_T0}, 16
v_mov_b32 v1, s{S_START}
v_mov_b32 v2, s{S_NB}
""")
    for r in range(256):
        a(f"buffer_store_dword v{r}, v0, s[96:99], s{S_T0} offen\ns_add_u32 s{S_T0}, s{S_T0}, 256")
    a("s_endpgm")

def dump_lds(a):
    a("s_waitcnt vmcnt(0) lgkmcnt(0)\ns_barrier")
    a.srd(96, 76, 16 << 20, 200 << 20)
    a(f"""
s_lshl_b32 s{S_T0}, s2, 16
s_lshl_b32 s{S_T1}, s{S_WAVE}, 13
v_add_u32 v21, s{S_T1}, v0
""")
    for j in range(8):
        a(f"ds_read_b128 v[24:27], v21\ns_waitcnt lgkmcnt(0)\nbuffer_store_dwordx4 v[24:27], v21, s[96:99], s{S_T0} offen\ns_waitcnt vmcnt(0)\nv_add_u32 v21, 1024, v21")

def stamp(a, opt, i, grp=0):
    if opt.get('stamps') and (i in (0, 6) or grp == opt.get('grp', 0)):
        a(f"{'s_memtime' if opt['stamps'] == 2 else 's_memrealtime'} s[100:101]\ns_waitcnt lgkmcnt(0)\ns_mov_b32 s{93+i}, s100")

def stamps_out(a, opt):
    if opt.get('stamps'):
        a("s_waitcnt vmcnt(0)")
        stamp(a, opt, 6)
        a.srd(SRD_S, 76, 1 << 20, 240 << 20)
        a(f"s_lshl_b32 s{S_T0}, s2, 3\ns_add_u32 s{S_T0}, s{S_T0}, s{S_WAVE}\ns_lshl_b32 s{S_T0}, s{S_T0}, 5\nv_mov_b32 v0, 0")
        for i in range(7):
            a(f"v_mov_b32 v1, s{93+i}\nbuffer_store_dword v1, v0, {srd(SRD_S)}, s{S_T0} offen offset:{4*i}")
        if opt.get('xcc'): a(f"s_getreg_b32 s{S_NB}, hwreg(HW_REG_XCC_ID)")
        a(f"v_mov_b32 v1, s{S_NB}\nbuffer_store_dword v1, v0, {srd(SRD_S)}, s{S_T0} offen offset:28\ns_endpgm")

def gen_k2(name, **opt):
    a = Asm()
    prologue(a, name, opt)
    if opt.get('dump'): dump_lds(a)
    pass_b(a, name, opt)
    if opt.get('dump') == 'b': dump_regs(a)
    stamp(a, opt, 2)
    pass_a(a, name, opt)
    if opt.get('dump') == 'a': dump_regs(a)
    stamp(a, opt, 4)
    epilogue(a, name, opt)
    if opt.get('drope'):
        import re
        lo = a.lines.index(f"{name}_spin:") + 6; hi = a.lines.index(f"{name}_next3:")
        a.lines[lo:hi] = [l for l in a.lines[lo:hi] if not re.search(opt['drope'], l)]
    for key, ps in (('drop', 'b'), ('dropa', 'a')):
        if opt.get(key):
            import re
            lo = a.lines.index(f"{name}_{ps}_loop:"); hi = a.lines.index(f"{name}_{ps}_done:")
            a.lines[lo:hi] = [l for l in a.lines[lo:hi] if not re.search(opt[key], l)]
    return a.text()
```

```python
from common import *

NSLOT = 3504
CAPW = NSLOT - 120
L_WR = 0
L_MT = 10240
L_FLAG = L_MT + 128
L_INV = L_MT + 256
L_YS = L_INV + 256
L_PT = L_YS + NSLOT * 8
L_ID = L_PT + NSLOT * 4
L_RING = 56320
RING = 13440
LINE = 4160
RB_EA = 12416
RA_EA = 6144
RA_WS = 7680
TILE = 3584
K2_LDS = L_RING + 8 * RING
assert L_ID + NSLOT <= L_RING and K2_LDS == 163840
L_HIST = L_RING
L_DEG = L_HIST + 1024
L_BASE = L_DEG + 1024
L_MAP = L_BASE + 1024
L_CNT = L_MAP + 1024
L_WTOT = L_CNT + 256
L_IDXL = L_WTOT + 64
OOB = 0x40000
XB, EB = N * 512, E * 32

S_WAVE, S_SB, S_RING, S_WBASE, S_TOTAL, S_WCNT, S_START, S_NB, S_REM = 3, 32, 33, 34, 35, 36, 37, 38, 39
SRD_X, SRD_E, SRD_T, SRD_O, SRD_W, SRD_M, SRD_S = 4, 8, 12, 16, 20, 24, 28
S_IDX = (40, 44)
S_T0, S_T1, S_T2, S_T3 = 48, 49, 50, 51
S_MASK = 52
S_VAL, S_ADV, S_HALF, S_ROT = 80, 81, 82, 83
SRD_K = 84
S_VON, S_VOFF, S_PADDR, S_PINC, S_PSGN, S_PVAL, S_PF, S_PFO = 68, 69, 70, 71, 66, 67, 78, 79

def srd(d): return f"s[{d}:{d+3}]"
def vr(b, n): return f"v[{b}:{b+n-1}]"

class DS:
    def __init__(self, a, init=()):
        self.a, self.q = a, list(init)
    def op(self, tag, text):
        self.a(text); self.q.append(tag)
    def need(self, *tags, vm=None):
        idx = [i for i, t in enumerate(self.q) if t in tags]
        if not idx:
            if vm is not None: self.a(f"s_waitcnt vmcnt({vm})")
            return False
        n = len(self.q) - 1 - max(idx)
        self.a(f"s_waitcnt {'' if vm is None else 'vmcnt(%d) ' % vm}lgkmcnt({min(n, 15)})")
        self.q = self.q[len(self.q) - min(n, 15):] if n else []
        return True
    def drain(self):
        if self.q: self.a("s_waitcnt lgkmcnt(0)")
        self.q = []

def rho(v_dst, v_e, tmp):
    return f"""
v_bfe_u32 v{v_dst}, v{v_e}, 1, 2
v_and_b32 v{tmp}, 1, v{v_e}
v_lshl_or_b32 v{v_dst}, v{tmp}, 2, v{v_dst}
v_and_or_b32 v{v_dst}, v{v_e}, 8, v{v_dst}
"""

def prologue(a, name, opt):
    a(f"""
{name}:
s_cmp_ge_u32 s2, 256
s_cbranch_scc1 {name}_end
""")
    stamp(a, opt, 1, 5)
    a(f"""
s_load_dwordx2 s[72:73], s[0:1], {KA_X}
s_load_dwordx2 s[74:75], s[0:1], {KA_OUT}
s_load_dwordx2 s[76:77], s[0:1], {KA_WS}
v_lshrrev_b32 v1, 6, v0
s_and_b32 s{S_SB}, s2, 7
v_readfirstlane_b32 s{S_WAVE}, v1
s_lshl_b32 s{S_SB}, s{S_SB}, 5
s_lshr_b32 s{S_T0}, s2, 3
s_add_u32 s{S_SB}, s{S_SB}, s{S_T0}
s_mul_i32 s{S_RING}, s{S_WAVE}, {RING}
s_add_u32 s{S_RING}, s{S_RING}, {L_RING}
s_mov_b32 s{S_VON}, {0x80000000 if opt.get('nomem') else 0}
s_mov_b32 s{S_VOFF}, 0x80000000
s_mov_b32 s{S_WBASE}, 0
s_waitcnt lgkmcnt(0)
""")
    stamp(a, opt, 0)
    a.srd(SRD_T, 76, NCH * 1024, WS_TAB)
    a(f"""
{name}_window:
v_mbcnt_lo_u32_b32 v16, -1, 0
v_mbcnt_hi_u32_b32 v16, -1, v16
v_lshlrev_b32 v0, 4, v16
s_lshl_b32 s{S_T0}, s{S_WAVE}, 6
v_add_u32 v17, s{S_T0}, v16
v_lshrrev_b32 v26, 1, v17
v_lshlrev_b32 v19, 10, v26
s_lshl_b32 s{S_T1}, s{S_SB}, 2
buffer_load_dword v27, v19, {srd(SRD_T)}, s{S_T1} offen
v_mov_b32 v21, 0
""")
    a.srd(SRD_X, 72, XB)
    a.srd(SRD_E, 76, EB, WS_EAS)
    a.srd(SRD_O, 74, XB)
    a.srd(SRD_W, 76, 51200, WS_WR)
    a.srd(SRD_M, 76, E * 8, WS_META)
    a.srd(SRD_K, 76, E * 4, WS_KEY)
    a.srd(SRD_S, 76, 256 * 8 * 128 * 256, WS_SCR)
    mt = [0x05040c0c, 0x03020c0c, 0x80000000, 0,
              0x0c0c0504, 0x01000c0c, 0, 0x80000000,
              0x01000302, 0x0c0c0c0c, 0x8000, 0,
              0x03020100, 0x05040c0c, 0, 0,
              0x0c0c0100, 0, 0x0c0c0302, 0, 0x0c0c0504, 0, 0x0c0c0c0c, 0x3f80,
              0x01000c0c, 0, 0x03020c0c, 0, 0x05040c0c, 0, 0x0c0c0c0c, 0x3f800000]
    a(f"""
v_lshlrev_b32 v22, 2, v17
ds_write_b32 v22, v21 offset:{L_HIST}
v_lshlrev_b32 v22, 2, v16
v_mov_b32 v23, -1
v_mov_b32 v63, v17
s_cmp_lg_u32 s{S_WAVE}, 7
s_cbranch_scc1 {name}_nomt
ds_write_b32 v22, v21 offset:{L_CNT}
ds_write_b32 v22, v23 offset:{L_INV}
""")
    for i, c in enumerate(mt):
        if c: a(f"s_mov_b32 s{S_T1}, {c:#x}\nv_writelane_b32 v21, s{S_T1}, {i}")
    a(f"""
ds_write_b32 v22, v21 offset:{L_MT}
{name}_nomt:
""")
    lane_consts_b(a)
    npf0, npf = opt.get('pf0', 1), opt.get('prefetch', 1)
    a(f"""
s_getreg_b32 s{S_ROT}, hwreg(HW_REG_XCC_ID, 0, 3)
s_mul_i32 s{S_ROT}, s{S_ROT}, {opt.get('rot', 25)}
s_add_u32 s{S_ROT}, s{S_ROT}, 8
s_lshr_b32 s{S_ROT}, s{S_ROT}, 4
s_lshr_b32 s{S_PFO}, s2, 3
s_lshl_b32 s{S_PFO}, s{S_PFO}, 15
s_lshl_b32 s{S_T0}, s{S_ROT}, 21
s_add_u32 s{S_PFO}, s{S_PFO}, s{S_T0}
s_sub_u32 s{S_ROT}, 16, s{S_ROT}
s_lshl_b32 s{S_ROT}, s{S_ROT}, 12
v_lshrrev_b32 v8, 3, v63
v_and_b32 v9, 3, v63
v_max_u32 v9, 1, v9
v_lshlrev_b32 v9, 7, v9
v_lshl_add_u32 v8, v8, 9, v9
s_waitcnt vmcnt(0)
""")
    stamp(a, opt, 1, 1)
    def warm(n):
        for _ in range(n): a(f"buffer_load_dword v9, v8, {srd(SRD_X)}, s{S_PFO} offen\ns_add_u32 s{S_PFO}, s{S_PFO}, {1 << 20}")
    warm(npf0)
    a(f"""
s_lshl_b32 s{S_T1}, s{S_WAVE}, 10
s_mov_b32 m0, s{S_T1}
s_and_b32 s{S_T2}, s{S_T1}, 1024
buffer_load_dwordx4 v0, {srd(SRD_W)}, s{S_T1} offen lds
s_add_u32 s{S_T2}, s{S_T2}, 8192
s_mov_b32 m0, s{S_T2}
s_nop 0
buffer_load_dwordx4 v0, {srd(SRD_W)}, s{S_T2} offen lds
v_lshrrev_b32 v21, 16, v27
v_and_b32 v20, 0xffff, v27
v_and_b32 v23, 1, v16
v_cmp_eq_u32 vcc, 0, v23
s_nop 1
v_cndmask_b32 v22, 0, v21, vcc
""")
    a.scan64(22)
    a(f"""
s_nop 0
v_readlane_b32 s{S_T0}, v22, 63
s_lshl_b32 s{S_T1}, s{S_WAVE}, 2
s_add_u32 s{S_T1}, s{S_T1}, {L_WTOT}
v_mov_b32 v24, s{S_T1}
v_mov_b32 v25, s{S_T0}
ds_write_b32 v24, v25
v_and_b32 v24, 7, v16
v_lshlrev_b32 v24, 2, v24
v_add_u32 v24, {L_WTOT}, v24
v_sub_u32 v22, v22, v21
v_mul_u32_u24 v18, {CH}, v26
v_add_u32 v20, v20, v18
s_waitcnt lgkmcnt(0)
s_barrier
ds_read_b32 v25, v24
s_waitcnt lgkmcnt(0)
""")
    for sh in (1, 2, 4):
        a(f"s_nop 1\nv_add_u32_dpp v25, v25, v25 row_shr:{sh} row_mask:0xf bank_mask:0xf bound_ctrl:0")
    a(f"""
s_nop 0
v_readlane_b32 s{S_TOTAL}, v25, 7
v_readlane_b32 s{S_T1}, v25, s{S_WAVE}
s_sub_u32 s{S_T1}, s{S_T1}, s{S_T0}
s_sub_u32 s{S_T1}, s{S_T1}, s{S_WBASE}
s_sub_u32 s{S_WCNT}, s{S_TOTAL}, s{S_WBASE}
s_min_u32 s{S_WCNT}, s{S_WCNT}, {CAPW}
v_add_u32 v22, s{S_T1}, v22
v_sub_u32 v24, 0, v22
v_max_i32 v24, 0, v24
v_sub_u32 v25, {CAPW}, v22
v_min_i32 v25, v25, v21
v_add_u32 v24, v24, v23
v_sub_u32 v20, v20, v22
v_sub_u32 v25, v25, v24
v_add_lshl_u32 v22, v22, v24, 2
{name}_expand:
""")
    for k in range(8):
        a(f"v_cmpx_lt_i32 vcc, {2*k}, v25")
        if k in (0, 4): a(f"s_cbranch_execz {name}_expanded")
        a(f"ds_write_b32 v22, v20 offset:{L_IDXL + 8*k}")
    a(f"""
v_add_u32 v22, 64, v22
v_subrev_u32 v25, 16, v25
s_branch {name}_expand
{name}_expanded:
s_mov_b64 exec, -1
v_lshlrev_b32 v22, 2, v63
v_add_u32 v22, {L_IDXL}, v22
""")
    REC, RK, BA, PAD = 24, 56, 64, 72
    for j in range(7):
        a(f"v_add_u32 v{BA+j}, {512*j}, v63\nv_cmp_gt_u32 s[{S_MASK+2*j}:{S_MASK+2*j+1}], s{S_WCNT}, v{BA+j}")
    a("v_bfrev_b32 v23, 2")
    a("s_waitcnt lgkmcnt(0)\ns_barrier")
    stamp(a, opt, 2, 1)
    def pay(js):
        for j in js: a(f"buffer_load_dwordx2 {vr(REC+4*j,2)}, v{PAD+j}, {srd(SRD_M)}, 0 offen")
    for j in range(7): a(f"ds_read_b32 v{RK+j}, v22 offset:{2048*j}")
    for j in range(7):
        a(f"""
s_waitcnt lgkmcnt({6-j})
v_add_lshl_u32 v{RK+j}, v{RK+j}, v{BA+j}, 2
v_cndmask_b32 v{RK+j}, v23, v{RK+j}, s[{S_MASK+2*j}:{S_MASK+2*j+1}]
buffer_load_dword v{REC+4*j+2}, v{RK+j}, {srd(SRD_K)}, 0 offen
""")
    stamp(a, opt, 1, 3)
    for j in range(7): a(f"v_lshlrev_b32 v{PAD+j}, 1, v{RK+j}")
    a(f"v_and_b32 v17, 48, v0\nds_read_b128 {vr(MT,4)}, v17 offset:{L_MT}")
    zero(a, ACC, opt.get('z0', 180))
    def mask(j): return f"s_mov_b64 exec, s[{S_MASK+2*j}:{S_MASK+2*j+1}]"
    a("v_mov_b32 v23, 1")
    for j in range(7):
        a(f"""
s_waitcnt vmcnt({6-j})
v_bfe_u32 v{BA+j}, v{REC+4*j+2}, 16, 8
{mask(j)}
v_lshlrev_b32 v{BA+j}, 2, v{BA+j}
v_add_u32 v{RK+j}, s{S_ROT}, v{REC+4*j+2}
ds_add_u32 v{BA+j}, v23 offset:{L_DEG}
v_bfe_u32 v{RK+j}, v{RK+j}, 11, 5
v_lshlrev_b32 v{RK+j}, 2, v{RK+j}
""")
        if j == 0: stamp(a, opt, 2, 3)
        if j == 6: stamp(a, opt, 3, 3)
    a("s_mov_b64 exec, -1")
    stamp(a, opt, 4, 3)
    a(f"""
v_lshlrev_b32 v22, 2, v63
v_cmp_gt_u32 vcc, 200, v63
s_waitcnt lgkmcnt(0)
s_barrier
""")
    stamp(a, opt, 1, 2)
    stamp(a, opt, 5, 3)
    a(f"s_cmp_lt_u32 s{S_WAVE}, 4\ns_cbranch_scc1 {name}_rank")
    pay(range(4))
    a("s_barrier")
    pay(range(4, 7))
    a(f"s_branch {name}_nomap\n{name}_rank:")
    a(f"""
s_and_b64 exec, exec, vcc
ds_read_b32 v21, v22 offset:{L_DEG}
s_waitcnt lgkmcnt(0)
v_min_u32 v21, 63, v21
v_sub_u32 v21, 63, v21
v_lshlrev_b32 v21, 2, v21
ds_add_rtn_u32 v20, v21, v23 offset:{L_CNT}
s_mov_b64 exec, -1
v_lshlrev_b32 v19, 2, v16
s_waitcnt lgkmcnt(0)
s_barrier
""")
    stamp(a, opt, 2, 2)
    a(f"""
ds_read_b32 v18, v19 offset:{L_CNT}
s_waitcnt lgkmcnt(0)
v_mov_b32 v19, v18
""")
    a.scan64(19)
    a(f"""
v_sub_u32 v19, v19, v18
ds_bpermute_b32 v19, v21, v19
s_cmp_lg_u32 s{S_TOTAL}, s{S_WCNT}
s_cselect_b64 s[{S_T2}:{S_T3}], -1, 0
s_and_b64 exec, exec, vcc
s_waitcnt lgkmcnt(0)
v_add_u32 v19, v19, v20
v_cndmask_b32 v19, v19, v63, s[{S_T2}:{S_T3}]
v_lshrrev_b32 v18, 3, v19
v_bfe_i32 v20, v19, 3, 1
v_xor_b32 v19, v19, v20
v_and_b32 v19, 7, v19
v_lshl_add_u32 v20, v19, 5, v18
ds_write_b8 v20, v63 offset:{L_INV}
v_lshlrev_b32 v18, 16, v18
v_lshl_or_b32 v18, v19, 7, v18
ds_write_b32 v22, v18 offset:{L_MAP}
s_mov_b64 exec, -1
{name}_nomap:
""")
    a("s_waitcnt lgkmcnt(0)\ns_barrier")
    stamp(a, opt, 3, 2)
    for j in range(7): a(f"ds_read_b32 v{REC+4*j+3}, v{BA+j} offset:{L_MAP}")
    a(f"s_cmp_ge_u32 s{S_WAVE}, 4\ns_cbranch_scc1 {name}_nopay1")
    pay(range(3))
    a(f"{name}_nopay1:\ns_waitcnt lgkmcnt(0)")
    for j in range(7):
        a(f"v_add_u32_sdwa v{BA+j}, v{RK+j}, v{REC+4*j+3} dst_sel:DWORD dst_unused:UNUSED_PAD src0_sel:DWORD src1_sel:WORD_0")
    for j in range(7): a(f"{mask(j)}\nds_add_rtn_u32 v{RK+j}, v{BA+j}, v23 offset:{L_HIST}")
    a(f"s_mov_b64 exec, -1\ns_cbranch_scc1 {name}_nopay2")
    pay(range(3, 7))
    a(f"{name}_nopay2:")
    stamp(a, opt, 3, 1)
    a(f"""
s_waitcnt lgkmcnt(0)
s_barrier
""")
    stamp(a, opt, 4, 2)
    a(f"""
ds_read_b128 v[72:75], v0 offset:{L_HIST}
""")
    warm(npf)
    a(f"""
s_waitcnt lgkmcnt(0)
v_add_u32 v77, v72, v73
v_add_u32 v78, v77, v74
v_add_u32 v79, v78, v75
v_mov_b32 v71, v79
""")
    for sh in (1, 2, 4):
        a(f"s_nop 1\nv_add_u32_dpp v71, v71, v71 row_shr:{sh} row_mask:0xf bank_mask:0xf bound_ctrl:0")
    a(f"""
v_and_b32 v23, 7, v16
v_cmp_eq_u32 vcc, 7, v23
v_sub_u32 v76, 0, v71
v_and_b32 v76, 15, v76
v_cndmask_b32 v76, 0, v76, vcc
v_add_u32 v79, v79, v76
v_mov_b32 v76, v79
""")
    a.scan64(76)
    a(f"""
v_sub_u32 v76, v76, v79
v_add_u32 v79, v76, v78
v_add_u32 v78, v76, v77
v_add_u32 v77, v76, v72
ds_write_b128 v0, v[76:79] offset:{L_BASE}
s_lshl_b32 s{S_T0}, s{S_WAVE}, 3
s_add_u32 s{S_T1}, s{S_T0}, 7
v_readlane_b32 s{S_START}, v76, s{S_T0}
v_readlane_b32 s{S_T2}, v71, s{S_T1}
""")
    for j in range(7): a(f"ds_read_b32 v{BA+j}, v{BA+j} offset:{L_BASE}")
    a(f"""
s_add_u32 s{S_NB}, s{S_T2}, 15
s_lshr_b32 s{S_NB}, s{S_NB}, 4
s_lshl_b32 s{S_T3}, s{S_NB}, 4
s_sub_u32 s{S_HALF}, s{S_T3}, s{S_T2}
s_cmp_ge_u32 s{S_HALF}, 8
s_cselect_b32 s{S_HALF}, 0, -2
s_mov_b32 s{S_ADV}, 0
{'s_mov_b32 s89, 0' if opt.get('vmstat') else ''}
v_add_u32 v23, s{S_T2}, v16
v_cmp_gt_u32 vcc, s{S_T3}, v23
v_add_u32 v23, s{S_START}, v23
v_mov_b32 v18, 0
v_mov_b32 v19, 0xffff0000
v_mov_b32 v20, 0x1fffffe0
v_lshlrev_b32 v21, 3, v23
v_lshlrev_b32 v22, 2, v23
s_and_b64 exec, exec, vcc
ds_write_b64 v21, v[18:19] offset:{L_YS}
ds_write_b32 v22, v20 offset:{L_PT}
ds_write_b8 v23, v18 offset:{L_ID}
s_mov_b64 exec, -1
s_waitcnt lgkmcnt(0)
""")
    stamp(a, opt, 5, 2)
    a(f"s_mov_b32 s{S_T0}, 0x0c070302\ns_mov_b32 s{S_T1}, 0x05040100\ns_waitcnt vmcnt({npf})")
    for j in range(7):
        a(f"""
{mask(j)}
v_perm_b32 v20, v{REC+4*j+2}, v{REC+4*j+1}, s{S_T0}
v_perm_b32 v{REC+4*j+1}, v{REC+4*j+2}, v{REC+4*j+1}, s{S_T1}
v_lshlrev_b32 v{REC+4*j+2}, 5, v20
v_add_u32 v23, v{BA+j}, v{RK+j}
v_add_lshl_u32 v21, v{BA+j}, v{RK+j}, 3
v_add_lshl_u32 v22, v{BA+j}, v{RK+j}, 2
ds_write_b8_d16_hi v23, v{REC+4*j+3} offset:{L_ID}
ds_write_b64 v21, {vr(REC+4*j,2)} offset:{L_YS}
ds_write_b32 v22, v{REC+4*j+2} offset:{L_PT}
""")
    a("s_mov_b64 exec, -1")

def list_lanes(a):
    a("v_lshrrev_b32 v17, 3, v16")
    a(rho(2, 17, 18))
    a("v_lshrrev_b32 v17, 2, v16")
    a(rho(3, 17, 18))
    a("v_bfe_u32 v17, v16, 1, 4")
    a(rho(4, 17, 18))
    a("v_and_b32 v14, 0x70, v0")

def list_addrs(a):
    a(f"""
v_add_lshl_u32 v2, v2, s{S_START}, 3
v_add_lshl_u32 v3, v3, s{S_START}, 3
v_add_lshl_u32 v4, v4, s{S_START}, 2
v_and_b32 v15, 3, v16
v_lshl_add_u32 v15, v15, 2, s{S_START}
""")

def ea_addrs(a, v_a0, v_a1, ring_off):
    a(f"""
v_bfe_u32 v17, v16, 3, 2
v_and_b32 v18, 3, v16
v_lshl_or_b32 v17, v17, 2, v18
v_lshlrev_b32 v17, 5, v17
v_lshrrev_b32 v18, 5, v16
v_lshl_or_b32 v17, v18, 4, v17
v_bfe_u32 v18, v16, 2, 1
v_mul_u32_u24 v18, {OOB + 16}, v18
v_xor_b32 v17, v18, v17
s_add_u32 s{S_T0}, s{S_RING}, {ring_off}
v_add_u32 v{v_a0}, s{S_T0}, v17
v_xor_b32 v17, {OOB + 16}, v17
v_add_u32 v{v_a1}, s{S_T0}, v17
""")

def valid(a, k):
    a(f"""
s_cmp_ge_i32 s{S_REM}, {k}
s_cselect_b32 s{S_VAL}, s{S_VON}, s{S_VOFF}
""")

def dma_e(a, v, off, restore=True):
    a(f"""
s_add_u32 m0, s{S_RING}, {off}
s_mov_b32 exec_hi, 0
buffer_load_dwordx4 v{v}, {srd(SRD_E)}, s{S_VAL} offen lds
""")
    if restore: a("s_mov_b32 exec_hi, -1")

def zero(a, lo, hi):
    if lo & 1 and lo < hi: a(f"v_mov_b32 v{lo}, 0"); lo += 1
    for r in range(lo, hi, 2): a(f"v_mov_b64 {vr(r,2)}, 0")

def align(a, k):
    if k is None: return
    a(".p2alignl 5, 0xbf800000")
    for _ in range(k): a("s_nop 0")

def prio_init(a):
    a(f"""
s_max_u32 s{S_T0}, s{S_NB}, 1
v_cvt_f32_u32 v17, s{S_T0}
v_rcp_f32 v17, v17
s_and_b32 s{S_PADDR}, s{S_WAVE}, 3
s_lshl_b32 s{S_PADDR}, s{S_PADDR}, 2
v_mul_f32 v17, 0x47800000, v17
s_add_u32 s{S_PADDR}, s{S_PADDR}, {L_FLAG + 16}
v_cvt_u32_f32 v17, v17
s_cmp_ge_u32 s{S_WAVE}, 4
s_cselect_b32 s{S_PSGN}, -1, 1
v_readfirstlane_b32 s{S_PINC}, v17
s_mul_i32 s{S_PINC}, s{S_PINC}, s{S_PSGN}
s_mov_b32 s{S_PVAL}, 0
""")
def young_prio(a, lvl): a(f"s_setprio 1\ns_cmp_lt_u32 s{S_WAVE}, 4\ns_cbranch_scc1 1\ns_setprio {lvl}")
def prio_addr(va, vd): return [f"v_lshl_add_u32 v{va}, v0, 14, s{S_PADDR}", f"v_mov_b32 v{vd}, s{S_PINC}"]
def prio_add(va, vd): return ("pr", f"ds_add_rtn_u32 v{vd}, v{va}, v{vd}")
def prio_read(vd): return [f"v_readfirstlane_b32 s{S_PVAL}, v{vd}", f"s_mul_i32 s{S_PVAL}, s{S_PVAL}, s{S_PSGN}"]
def prio_set(base=0):
    return [f"s_cmp_ge_i32 s{S_PVAL}, 0", f"s_setprio {base}", "s_cbranch_scc1 1", f"s_setprio {base+1}"]

M3, M1, XR, G, T1, T2, T3, ACC = 6, 8, (10, 12), (16, 24), 32, 48, 64, 81

def dma_x(a, v, slot, fill):
    for b in range(3):
        a(f"s_add_u32 m0, s{S_RING}, {b*LINE + slot*1024 - 128*(b+1)}")
        a(fill[b] if b < len(fill) else "s_nop 0")
        a(f"buffer_load_dwordx4 v{v}, {srd(SRD_X)}, s{S_VAL} offen offset:{128*(b+1)} lds")

GG, XX, MT, EC = 16, (20, 24, 28), 10, 7

def lane_consts_b(a):
    list_lanes(a)
    ea_addrs(a, 5, 80, RB_EA)
    a(f"""
v_lshrrev_b32 v18, 4, v16
v_lshlrev_b32 v17, 5, v18
v_and_b32 v18, 3, v16
v_lshl_add_u32 v17, v18, 3, v17
v_add_u32 v17, s{S_RING}, v17
v_bfe_u32 v18, v16, 2, 2
v_min_u32 v19, 2, v18
v_mul_u32_u24 v19, {LINE}, v19
v_cmp_eq_u32 vcc, 2, v18
v_mov_b32 v20, {OOB + 192}
v_bfe_u32 v21, v16, 3, 1
v_cndmask_b32 v19, v19, v20, vcc
v_add_u32 v1, v17, v19
v_and_b32 v18, 1, v18
v_cmp_eq_u32 vcc, 0, v18
v_mul_u32_u24 v21, {LINE}, v21
s_nop 0
v_cndmask_b32 v21, v21, v20, vcc
v_add_u32 v6, v17, v21
""")

def pass_b(a, name, opt):
    si = S_IDX[0]
    prio = opt.get('prio', 3)
    def xread(ds, p, e):
        o = ((2*p + (e >> 3)) & 3)*1024 + (e & 7)*128
        ds.op(f"x{e}", f"ds_read_b64_tr_b16 {vr(XX[e%3],2)}, v1 offset:{o}")
        ds.op(f"x{e}", f"ds_read_b64_tr_b16 {vr(XX[e%3]+2,2)}, v6 offset:{o}")
    def wr(tag, dst, path, h): return (f"{tag}{h}", f"ds_read_b128 {vr(dst,4)}, v0 offset:{L_WR + (path*2+h)*1024}")
    W1 = [wr("W1", T3+4*h, 3, h) for h in range(2)]
    W2 = [wr("W2", T3+8+4*h, 4, h) for h in range(2)]
    W3 = [wr("W3", (XX[0], GG)[h], 1, h) for h in range(2)]
    AR = (XX[1], XX[2])
    def ar(p, h): return (f"A{h}", f"ds_read_b128 {vr(AR[h],4)}, v{(5, 80)[h]} offset:{p*512}")
    def tail_reads(off):
        return [("ys", f"ds_read_b64 {vr(T2,2)}, v3 offset:{L_YS + 128*off}"),
                ("sr", f"ds_read_u16 v{T2+2}, v2 offset:{L_YS + 6 + 128*(off+1) + 64}"),
                ("pt", f"ds_read_b32 v{T2+3}, v4 offset:{L_PT + 64*(off+2)}"),
                ("id", f"ds_read_b32 v{T2+4}, v15 offset:{L_ID + 16*off}")]
    if opt.get('solo'): a(f"s_cmp_ge_u32 s{S_WAVE}, 4\ns_cselect_b32 s{S_NB}, 0, s{S_NB}")
    if prio in (1, 2):
        prio_init(a)
        a(prio_addr(7, 0)[0])
    list_addrs(a)
    if opt.get('ahead', 0):
        a(f"""
s_lshl_b32 s{S_T0}, s{S_WAVE}, 8
s_add_u32 s{S_T0}, s{S_T0}, s2
s_lshl_b32 s{S_PFO}, s{S_T0}, 14
s_sub_u32 s{S_T0}, {1563 + opt.get('lead', 190)}, s{S_T0}
s_mul_i32 s{S_T0}, s{S_T0}, s{S_NB}
s_mul_i32 s{S_T0}, s{S_T0}, 42
s_ashr_i32 s{S_PF}, s{S_T0}, 16
""")
    a(f"""
s_sub_u32 s{S_REM}, s{S_NB}, 1
s_waitcnt lgkmcnt(0)
s_barrier
""")
    stamp(a, opt, 1)
    stamp(a, opt, 4, 1)
    ds = DS(a)
    for t in range(2): ds.op(f"pt{t}", f"ds_read_b32 v{T1+8+t}, v4 offset:{L_PT + 64*t}")
    for h in range(3): ds.op(f"sr{h}", f"ds_read_u16 v{T1+10+h}, v2 offset:{L_YS + 6 + 64*h}")
    for op in tail_reads(0) + W1: ds.op(*op)
    ds.need("sr2")
    for t in range(2): a(f"v_and_or_b32 v{T1+8+t}, v0, 16, v{T1+8+t}")
    for h in range(3): a(f"v_lshl_or_b32 v{T1+10+h}, v{T1+10+h}, 9, v14")
    valid(a, 0)
    dma_e(a, T1+8, RB_EA)
    dma_x(a, T1+10, 0, [])
    if opt.get('startbar', 0): a("s_barrier")
    zero(a, opt.get('z0', 180), opt.get('z1', 256))
    dma_x(a, T1+11, 1, [])
    valid(a, 1)
    dma_e(a, T1+9, RB_EA + 512)
    dma_x(a, T1+12, 2, [])
    zero(a, opt.get('z1', 256), 256)
    a(f"s_cmp_eq_u32 s{S_NB}, 0\ns_cbranch_scc1 {name}_b_done")
    ds.drain()
    a("s_waitcnt vmcnt(10)")
    stamp(a, opt, 5, 1)
    for op in (ar(0, 0), W2[0], ar(0, 1)): ds.op(*op)
    entry = list(ds.q)
    align(a, opt.get('alb'))
    a(f"{name}_b_loop:")
    for p in range(2):
        ds = DS(a, entry)
        def big(tag, tile, w, h):
            ds.need(f"A{h}", f"{tag}{h}")
            a(f"v_mfma_f32_32x32x16_bf16 {vr(tile,16)}, {vr(AR[h],4)}, {vr(w,4)}, {vr(tile,16) if h else 0}")
        def m0x(b, slot): return f"s_add_u32 m0, s{S_RING}, {b*LINE + slot*1024 - 128*(b+1)}"
        def ldx(v, b): return f"buffer_load_dwordx4 v{v}, {srd(SRD_X)}, s{S_VAL} offen offset:{128*(b+1)} lds"
        if p == 0 and opt.get('grp') == 4:
            for i, it in enumerate((1, 2, 4, 7, 10)):
                a(f"s_cmp_lg_u32 s{S_ADV}, {32*it}\ns_cbranch_scc1 4")
                stamp(a, opt, 1 + i, 4)
        if p == 0 and opt.get('ahead', 0):
            a(f"s_cmp_le_i32 s{S_REM}, s{S_PF}\ns_cbranch_scc1 {name}_b_ahead\n{name}_b_back:")
        if opt.get('rprio'): a("s_setprio 0")
        big("W1", T1, T3, 0)
        ds.op(*W2[1]); ds.op(*W3[0]); ds.op(*W3[1])
        a(f"""
v_perm_b32 v{M1}, v{T2+1}, v{T2}, v{MT}
v_perm_b32 v{M1+1}, v{T2+1}, v{T2}, v{MT+1}
v_xor_b32 v{M1}, v{M1}, v{MT+2}
v_xor_b32 v{M1+1}, v{M1+1}, v{MT+3}
""")
        big("W1", T1, T3+4, 1)
        a(f"v_lshl_or_b32 v{T3}, v{T2+2}, 9, v14\nv_and_or_b32 v{T3+1}, v0, 16, v{T2+3}")
        for i in range(4): a(f"v_readlane_b32 s{si+i}, v{T2+4}, {i}")
        sl = (2*p + 3) & 3
        a(m0x(0, sl))
        big("W2", T2, T3+8, 0)
        a(f"{ldx(T3, 0)}\n{m0x(1, sl)}")
        ds.drain()
        a(f"{ldx(T3, 1)}\n{m0x(2, sl)}")
        big("W2", T2, T3+12, 1)
        a(ldx(T3, 2))
        valid(a, 2)
        dma_e(a, T3+1, RB_EA + 512*p)
        big("W3", T3, XX[0], 0)
        if opt.get('vmstat'): a("s_getreg_b32 s88, hwreg(HW_REG_IB_STS, 0, 4)\ns_add_u32 s89, s89, s88\ns_cmp_gt_u32 s88, 11\ns_cselect_b32 s88, 0x10000, 0\ns_add_u32 s89, s89, s88")
        a(f"s_mul_i32 s{si}, s{si}, 7\ns_mul_i32 s{si+1}, s{si+1}, 7\ns_waitcnt vmcnt(11)")
        xread(ds, p, 0); xread(ds, p, 1)
        big("W3", T3, GG, 1)
        a(f"s_mul_i32 s{si+2}, s{si+2}, 7\ns_mul_i32 s{si+3}, s{si+3}, 7")
        tr_ = tail_reads(p+1)
        pre = {5: [f"v_lshl_or_b32 v{T1+1}, v{T1+1}, 9, v14"]}
        if p == 1: pre[13] = ["v_add_u32 v2, 256, v2", "v_add_u32 v3, 256, v3", "v_add_u32 v4, 128, v4", "v_add_u32 v15, 32, v15", f"s_add_u32 s{S_ADV}, s{S_ADV}, 32"]
        aux = {2: [("sm", f"ds_read_u16 v{T1+1}, v2 offset:{L_YS + 6 + 128*(p+2)}")],
               4: tr_[:2], 8: tr_[2:3], 10: tr_[3:], 12: W1}
        if prio == 1 or (prio == 2 and p == 0):
            pre[1] = prio_addr(7, T3)[1:]; aux[1] = [prio_add(7, T3)]
            pre[4] = prio_read(T3) + ([] if opt.get('rprio') else prio_set())
        if opt.get('rprio'):
            for l in prio_set(1): a(l)
        for e in range(16):
            x = XX[e % 3]
            if prio == 3 and 16*p + e in opt.get('phb', {0: 2, 21: 0}): young_prio(a, opt.get('phb', {0: 2, 21: 0})[16*p + e])
            if e == 8 and opt.get('half', 1): a(f"s_cmp_eq_u32 s{S_REM}, s{S_HALF}\ns_cbranch_scc1 {name}_b_done")
            if e in (8, 9, 10): a(m0x(e-8, 2*p))
            ds.need(f"x{e}", vm=7 if e == 6 else None)
            if e in (8, 9, 10): a(f"{ldx(T1+1, e-8)}\ns_set_gpr_idx_mode 0")
            a(f"v_mfma_f32_4x4x4_16b_bf16 {vr(GG,4)}, {vr(M1,2)}, {vr(x,2)}, 0 cbsz:4 abid:{e}")
            for l in pre.get(e, []): a(l)
            a(f"s_set_gpr_idx_on s{si + 2*(e >> 3) + (e & 1)}, 0x8")
            if (e & 1) and (e & 7) != 7:
                r = si + 2*(e >> 3)
                a(f"s_lshr_b64 s[{r}:{r+1}], s[{r}:{r+1}], 8")
            for op in aux.get(e, []): ds.op(*op)
            if e < 14: xread(ds, p, e+2)
            elif e == 14: ds.op(*ar(p ^ 1, 0)); ds.op(*W2[0])
            else: ds.op(*ar(p ^ 1, 1))
            for i, src in enumerate((x+2, x+3, x+1)): a(f"v_fmac_f32 v{ACC+4+i}, v{src}, v{T1+e}")
            for i in range(4): a(f"v_fmac_f32 v{ACC+i}, v{GG+i}, v{(T2, T2, T2, T3)[i]+e}")
            if e == 15: a("s_set_gpr_idx_off")
            elif e + 1 not in (8, 9, 10): a("s_set_gpr_idx_mode 0")
        a(f"s_sub_u32 s{S_REM}, s{S_REM}, 1\ns_cbranch_scc1 {name}_b_done")
        assert ds.q == entry, (ds.q, entry)
    a(f"s_branch {name}_b_loop")
    if opt.get('ahead', 0):
        a(f"""
{name}_b_ahead:
v_lshlrev_b32 v{T1}, 3, v0
s_mov_b32 m0, {L_MT}
s_mov_b32 s{S_PF}, -100
s_mov_b32 exec_hi, 0
""")
        for i in range(4): a(f"buffer_load_dword v{T1}, {srd(SRD_X)}, s{S_PFO} offen lds\ns_add_u32 s{S_PFO}, s{S_PFO}, 4096")
        a(f"s_mov_b32 exec_hi, -1\ns_branch {name}_b_back")
    a(f"{name}_b_done:\ns_set_gpr_idx_off")

def pack(a, ops, spare):
    ops, spare, moves = list(ops), list(spare), []
    while ops:
        for k, (d, x, y) in enumerate(ops):
            if not any(d in o[1:] for j, o in enumerate(ops) if j != k): break
        else:
            k = 0; d, x, y = ops[0]; t = spare.pop(); moves.append((d, t)); d = t
        a(f"v_cvt_pk_bf16_f32 v{d}, v{x}, v{y}"); ops.pop(k)
    for d, t in moves: a(f"v_mov_b32 v{d}, v{t}")

ORD_B = (3, 4, 0, 5, 1, 6, 2)
ORD_A = (2, 1, 0, 3)
PB, ACA = 68, 156
TA0, TA2 = 32, 48
SB_ = (10, 12, 64, 66)
M2, SELA, AA, WA = 8, 6, 16, 24

def pass_a(a, name, opt):
    def dma_s(v, slot, fill="s_nop 0"):
        a(f"s_add_u32 m0, s{S_RING}, {slot*1024}\n{fill}\nbuffer_load_dwordx4 v{v}, {srd(SRD_X)}, s{S_VAL} offen lds")
    SR = SB_ + (AA, AA+2, AA+4, AA+6)
    def sread(c, m):
        slot = 2*c + (m >> 2)
        return (f"s{m}", f"ds_read_b64_tr_b16 {vr(SR[m],2)}, v1 offset:{slot*1024 + (m & 3)*256}")
    def next_reads(c, off):
        r = [("sr1", f"ds_read_u16 v{TA2+2}, v2 offset:{L_YS + 6 + 128*(off+2) + 64}"),
             ("sr0", f"ds_read_u16 v{TA2+3}, v2 offset:{L_YS + 6 + 128*(off+3)}"),
             ("pt", f"ds_read_b32 v{TA2+5}, v4 offset:{L_PT + 64*(off+3)}")]
        r += [(f"W0{h}", f"ds_read_b128 {vr(TA2+8+4*h,4)}, v0 offset:{L_WR + h*1024}") for h in range(2)]
        r += [("A0", f"ds_read_b128 {vr(AA,4)}, v5 offset:{c*512}"),
              ("A1", f"ds_read_b128 {vr(AA+4,4)}, v7 offset:{c*512}")]
        r += [sread(c, m) for m in range(4)]
        r += [("ys", f"ds_read_b64 {vr(TA2,2)}, v3 offset:{L_YS + 128*off}"),
              ("id", f"ds_read_b32 v{TA2+4}, v15 offset:{L_ID + 16*off}")]
        return r
    a(f"""
s_waitcnt vmcnt(0) lgkmcnt(0)
s_mul_i32 s{S_T1}, s{S_WAVE}, 5120
s_add_u32 s{S_T1}, s{S_T1}, 10240
""")
    for j in range(5):
        a(f"s_add_u32 m0, s{S_RING}, {RA_WS}\ns_nop 0\nbuffer_load_dwordx4 v0, {srd(SRD_W)}, s{S_T1} offen offset:{1024*j if j < 4 else 0} lds"
          if j < 4 else
          f"s_add_u32 m0, s{S_RING}, {RA_WS+4096}\ns_add_u32 s{S_T1}, s{S_T1}, 4096\nbuffer_load_dwordx4 v0, {srd(SRD_W)}, s{S_T1} offen lds")
    a(f"""
s_lshl_b32 s{S_T0}, s{S_ADV}, 3
s_lshl_b32 s{S_T1}, s{S_ADV}, 2
v_subrev_u32 v2, s{S_T0}, v2
v_subrev_u32 v4, s{S_T1}, v4
v_lshrrev_b32 v17, 1, v14
""")
    ds = DS(a)
    for h in range(5): ds.op(f"sr{h}", f"ds_read_u16 v{TA0+h}, v2 offset:{L_YS + 6 + 64*h}")
    for t in range(3): ds.op(f"pt{t}", f"ds_read_b32 v{TA0+8+t}, v4 offset:{L_PT + 64*t}")
    ds.op("mt", f"ds_read_b64 {vr(M2,2)}, v17 offset:{L_MT + 64}")
    a(f"""
v_subrev_u32 v3, s{S_T0}, v3
v_subrev_u32 v15, s{S_ADV}, v15
v_bfe_u32 v17, v0, 7, 1
v_mul_u32_u24 v17, {LINE - 128}, v17
v_sub_u32 v1, v6, v17
v_subrev_u32 v5, {RB_EA - RA_EA}, v5
v_subrev_u32 v7, {RB_EA - RA_EA}, v80
s_sub_u32 s{S_REM}, s{S_NB}, 1
""")
    ds.drain()
    for h in range(5): a(f"v_lshl_or_b32 v{TA0+h}, v{TA0+h}, 9, v14")
    for t in range(3): a(f"v_and_or_b32 v{TA0+8+t}, v0, 16, v{TA0+8+t}")
    a(f"v_mov_b32 v{SELA}, v{M2}")
    for t in range(3):
        valid(a, t)
        dma_s(TA0+2*t, 2*t)
        dma_e(a, TA0+8+t, RA_EA + 512*t)
        if t < 2: dma_s(TA0+2*t+1, 2*t+1)
    for h in range(2): ds.op(f"W2{h}", f"ds_read_b128 {vr(WA+4*h,4)}, v0 offset:{L_WR + (4+h)*1024}")
    pack(a, [(PB + 12*ORD_B.index(i) + p, ACC+14*p+i, ACC+14*p+7+i) for p in range(12) for i in range(7)]
            + [(PB+84+i, ACC+168+2*i, ACC+168+min(2*i+1, 6)) for i in range(4)], range(48, 64))
    zero(a, ACA, 256)
    a(f"""
s_waitcnt vmcnt(6)
v_mov_b32 v17, {L_FLAG}
v_mov_b32 v18, 1
s_mov_b64 exec, 1
ds_add_u32 v17, v18
s_mov_b64 exec, -1
s_cmp_eq_u32 s{S_NB}, 0
s_cbranch_scc1 {name}_a_done
s_waitcnt lgkmcnt(0)
""")
    ds.q = []
    stamp(a, opt, 3)
    for tag, text in next_reads(0, 0): ds.op(tag, text)
    entry = list(ds.q)
    si = S_IDX[0]
    align(a, opt.get('ala'))
    a(f"{name}_a_loop:")
    for c in range(3):
        ds = DS(a, entry)
        pra = opt.get('prio', 3) == 1 or (opt.get('prio', 3) == 2 and c == 0)
        def big(tile, w, h): a(f"v_mfma_f32_32x32x16_bf16 {vr(tile,16)}, {vr(AA+4*h,4)}, {vr(w+4*h,4)}, {vr(tile,16) if h else 0}")
        def mul(tile, *ms):
            for m in ms:
                for i in range(2): a(f"v_mul_f32 v{tile+2*m+i}, v{tile+2*m+i}, v{SR[m]+i}")
        def cvt_t(*ms):
            for m in ms: a(f"v_cvt_pk_bf16_f32 v{TA0+2*m+1}, v{TA0+2*m}, v{TA0+2*m+1}")
        def cvt_u(*ms):
            for m in ms: a(f"v_cvt_pk_bf16_f32 v{TA0+2*m}, v{TA2+2*m}, v{TA2+2*m+1}")
        if opt.get('prio', 3) == 3 and 2*c in opt.get('pha', {0: 2, 4: 0}): young_prio(a, opt.get('pha', {0: 2, 4: 0})[2*c])
        ds.need("s3")
        big(TA0, TA2+8, 0)
        a(f"v_lshl_or_b32 v{TA2+2}, v{TA2+2}, 9, v14")
        dma_s(TA2+2, (2*c+5) % 6, f"v_lshl_or_b32 v{TA2+3}, v{TA2+3}, 9, v14")
        valid(a, 3)
        a(f"s_add_u32 m0, s{S_RING}, {2*c*1024}")
        big(TA0, TA2+8, 1)
        a(f"buffer_load_dwordx4 v{TA2+3}, {srd(SRD_X)}, s{S_VAL} offen lds\nv_and_or_b32 v{TA2+5}, v0, 16, v{TA2+5}")
        dma_e(a, TA2+5, RA_EA + 512*c)
        ds.need("id", vm=6)
        a(f"v_perm_b32 v{M2}, v{TA2+1}, v{TA2}, v{SELA}")
        for i in range(4): a(f"v_readlane_b32 s{si+i}, v{TA2+4}, {i}")
        big(TA2, WA, 0)
        a(f"s_lshl_b64 s[{si}:{si+1}], s[{si}:{si+1}], 2")
        ds.op(*sread(c, 4)); ds.op(*sread(c, 5))
        mul(TA0, 0, 1)
        big(TA2, WA, 1)
        a(f"s_lshl_b64 s[{si+2}:{si+3}], s[{si+2}:{si+3}], 2")
        ds.op(*sread(c, 6)); ds.op(*sread(c, 7))
        mul(TA0, 2, 3); cvt_t(0, 1, 2, 3)
        ds.need("s5")
        mul(TA0, 4, 5); mul(TA2, 0, 1, 2, 3)
        ds.need("s7")
        cvt_u(0, 1, 2, 3)
        mul(TA0, 6, 7); mul(TA2, 4, 5)
        if pra:
            for l in prio_addr(TA2+6, TA2+7): a(l)
        cvt_t(4, 5, 6, 7)
        mul(TA2, 6, 7)
        cvt_u(4, 5, 6, 7)
        if opt.get('prio', 3) == 3 and 2*c+1 in opt.get('pha', {}): young_prio(a, opt['pha'][2*c+1])
        fill = ([prio_add(TA2+6, TA2+7)] if pra else []) + next_reads((c + 1) % 3, c+1)
        for e in range(16):
            a(f"s_set_gpr_idx_on s{si + 2*(e >> 3) + (e & 1)}, 0xc")
            if (e & 1) and (e & 7) != 7:
                q = si + 2*(e >> 3)
                a(f"s_lshr_b64 s[{q}:{q+1}], s[{q}:{q+1}], 8")
                if e < 8 or (pra and e == 9): ds.op(*fill.pop(0))
            else: ds.op(*fill.pop(0))
            a(f"v_mfma_f32_4x4x4_16b_bf16 {vr(ACA,4)}, {vr(M2,2)}, {vr(TA0+(e&14),2)}, {vr(ACA,4)} cbsz:4 abid:{e}")
        assert not fill
        a("s_set_gpr_idx_off")
        if pra:
            ds.need("pr")
            for l in prio_read(TA2+7) + prio_set(): a(l)
        if c == 2:
            a("v_add_u32 v2, 384, v2\nv_add_u32 v3, 384, v3\nv_add_u32 v4, 192, v4\nv_add_u32 v15, 48, v15")
        a(f"s_sub_u32 s{S_REM}, s{S_REM}, 1\ns_cbranch_scc1 {name}_a_done")
        assert ds.q == entry, (ds.q, entry)
    a(f"s_branch {name}_a_loop\n{name}_a_done:")

def epilogue(a, name, opt):
    PA = ACA
    DT = ((224, 240), (192, 208), (74, 176), (192, 208))
    AOP, WOP, TMP, ROW = 8, 24, (56, 57, 58, 59), 60
    nt = opt.get('store_nt', ' sc1')
    young_prio(a, opt.get('phe', 2))
    a(f"""
s_waitcnt lgkmcnt(0)
v_mov_b32 v7, {L_FLAG}
v_lshrrev_b32 v16, 4, v0
v_mul_u32_u24 v1, 56, v16
v_add_u32 v1, s{S_RING}, v1
v_lshrrev_b32 v17, 5, v16
v_bfe_u32 v18, v16, 2, 2
v_lshl_add_u32 v18, v17, 3, v18
v_mul_u32_u24 v2, 56, v18
v_bfe_u32 v18, v16, 4, 1
v_lshl_add_u32 v2, v18, 5, v2
v_and_b32 v18, 3, v16
v_lshl_add_u32 v2, v18, 3, v2
v_add_u32 v2, s{S_RING}, v2
v_add_u32 v3, {L_RING + RA_WS}, v0
v_add_u32 v4, {L_RING + RA_WS + 5*RING}, v0
v_and_b32 v18, 31, v16
v_lshlrev_b32 v18, 2, v18
s_lshl_b32 s{S_T0}, s{S_SB}, 9
v_add_u32 v5, s{S_T0}, v18
s_lshl_b32 s{S_T0}, s{S_WAVE}, 5
v_lshl_add_u32 v6, v17, 2, s{S_T0}
s_add_u32 s{S_T2}, s{S_WBASE}, s{S_WCNT}
s_cmp_ge_u32 s{S_T2}, s{S_TOTAL}
s_cselect_b32 s{SRD_O+2}, {0 if opt.get('nostore') else XB}, 0
s_lshl_b32 s{S_T3}, s2, 3
s_add_u32 s{S_T3}, s{S_T3}, s{S_WAVE}
s_lshl_b32 s{S_T3}, s{S_T3}, 15
{name}_spin:
ds_read_b32 v17, v7
s_waitcnt lgkmcnt(0)
v_readfirstlane_b32 s{S_T0}, v17
s_cmp_lt_u32 s{S_T0}, 8
s_cbranch_scc1 {name}_spin
""")
    def ga(i): return (PA + 2 + 12*ORD_A.index(i), PA + (i >> 1), i & 1)
    def gb(i): return (PB + 12*ORD_B.index(i), PB + 84 + (i >> 1), i & 1)
    groups = [(gb(3), 1, 0), (ga(3), 0, 0)]
    for j in range(3): groups += [(ga(j), 2, j+1), (gb(4+j), 3, j+1), (gb(j), 4, j+1)]
    NG = len(groups)
    ds = DS(a)
    def writes(g):
        base, tail, hi = groups[g][0]
        off = (g & 1) * TILE
        return [(f"w{g}", f"ds_write_b64 v1, {vr(base+2*q,2)} offset:{off + 8*q}") for q in range(6)] + \
               [(f"w{g}", f"ds_write_b16{'_d16_hi' if hi else ''} v1, v{tail} offset:{off + 48}")]
    def aread(m):
        g, t = divmod(m, 4)
        return [(f"a{m}", f"ds_read_b64_tr_b16 {vr(AOP+4*t+2*j,2)}, v2 offset:{(g & 1)*TILE + (16*t+4*j)*56}") for j in range(2)]
    def wread(n):
        g, i = divmod(n, 8)
        w, k = divmod(groups[g][1]*8 + i, 5)
        v, o = (3, w*RING) if w < 5 else (4, (w-5)*RING)
        return (f"W{n}", f"ds_read_b128 {vr(WOP+4*(n&7),4)}, v{v} offset:{o + k*1024}")
    def fin(comp):
        D, G_ = DT[comp], DT[0]
        out = []
        for r in range(13):
            t = TMP[r & 3]
            if comp: out += [f"v_mul_f32 v{D[u]+r}, v{D[u]+r}, v{G_[u]+r}" for u in range(2)]
            out += [f"v_cvt_pk_bf16_f32 v{t}, v{D[0]+r}, v{D[1]+r}"]
            if not comp:
                out += [f"v_mul_f32 v{D[u]+r}, 0xbfb8aa3b, v{D[u]+r}" for u in range(2)]
                out += [f"v_exp_f32 v{D[u]+r}, v{D[u]+r}" for u in range(2)]
            out += [f"buffer_store_dword v{t}, v{ROW+r}, {srd(SRD_O)}, 0 offen offset:{128*comp}{nt}"]
            if not comp:
                out += [f"v_add_f32 v{D[u]+r}, 1.0, v{D[u]+r}" for u in range(2)]
                out += [f"v_rcp_f32 v{D[u]+r}, v{D[u]+r}" for u in range(2)]
        return out
    a("s_waitcnt vmcnt(0)")
    for op in writes(0) + aread(0) + [wread(0), wread(1)] + aread(1) + [wread(2), wread(3)]: ds.op(*op)
    pack(a, [(ga(i)[0] + p, ACA+8*p+i, ACA+8*p+4+i) for p in range(12) for i in range(4)]
            + [(PA+i, ACA+96+2*i, ACA+97+2*i) for i in range(2)], range(40, 68))
    side = []
    for m in range(4*NG):
        g, t = divmod(m, 4)
        comp = groups[g][2]
        first = (g == 0 or groups[g-1][2] != comp) and t == 0
        D = DT[comp]
        ops = []
        if g+1 < NG and t < 2: ops += writes(g+1)[4*t:4*t+4]
        if m+2 < 4*NG: ops += aread(m+2) + [wread(2*m+4), wread(2*m+5)]
        if m == 2: ops += [("row", f"ds_read_u8 v{ROW+r}, v6 offset:{L_INV + (r >> 2)*8 + (r & 3)}") for r in range(13)]
        if m == 6: side = [f"v_lshl_add_u32 v{ROW+r}, v{ROW+r}, 17, v5" for r in range(13)]
        ds.need(f"a{m}", f"W{2*m+1}")
        for u in range(2):
            a(f"v_mfma_f32_32x32x16_bf16 {vr(D[u],16)}, {vr(AOP+4*t,4)}, {vr(WOP+4*((2*m+u)&7),4)}, {0 if first else vr(D[u],16)}")
            k = (len(ops) + 1 - u) // (2 - u)
            for op in ops[:k]: ds.op(*op)
            ops = ops[k:]
            if not first:
                for l in side[:opt.get('side', 6)]: a(l)
                side = side[opt.get('side', 6):]
        if t == 3 and (g+1 == NG or groups[g+1][2] != comp):
            for l in side: a(l)
            a(f"s_cmp_lg_u32 s{S_TOTAL}, s{S_WCNT}\ns_cbranch_scc1 {name}_multi{comp}\n{name}_fin{comp}:")
            side = fin(comp)
    a("s_nop 9")
    for l in side: a(l)
    a(f"{name}_next3:")
    stamp(a, opt, 5)
    stamps_out(a, opt)
    a(f"""
s_cmp_ge_u32 s{S_T2}, s{S_TOTAL}
s_cbranch_scc1 {name}_end
s_mov_b32 s{S_WBASE}, s{S_T2}
s_setprio 0
s_waitcnt vmcnt(0) lgkmcnt(0)
s_barrier
s_branch {name}_window
""")
    for comp in range(4):
        D = DT[comp]
        a(f"""
{name}_multi{comp}:
s_nop 15
v_lshrrev_b32 v7, 2, v0
s_add_u32 s{S_T0}, s{S_T3}, {comp*8192}
s_add_u32 s{S_T1}, s{S_T0}, 4096
s_cmp_eq_u32 s{S_WBASE}, 0
s_cbranch_scc1 {name}_mst{comp}
""")
        for u in range(2):
            for r in range(13):
                a(f"buffer_load_dword v{TMP[0]}, v7, {srd(SRD_S)}, s{S_T0+u} offen offset:{256*r} sc1\ns_waitcnt vmcnt(0)\nv_add_f32 v{D[u]+r}, v{D[u]+r}, v{TMP[0]}")
        a(f"{name}_mst{comp}:")
        for u in range(2):
            for r in range(13):
                a(f"buffer_store_dword v{D[u]+r}, v7, {srd(SRD_S)}, s{S_T0+u} offen offset:{256*r}")
        a(f"s_waitcnt vmcnt(0)\ns_branch {name}_fin{comp}")
    a(f"{name}_end:\ns_endpgm")

def dump_regs(a):
    a("s_waitcnt vmcnt(0) lgkmcnt(0)\ns_nop 15")
    a.srd(96, 76, 128 << 20, 64 << 20)
    a(f"""
v_lshrrev_b32 v0, 2, v0
s_lshl_b32 s{S_T0}, s2, 3
s_add_u32 s{S_T0}, s{S_T0}, s{S_WAVE}
s_lshl_b32 s{S_T0}, s{S_T0}, 16
v_mov_b32 v1, s{S_START}
v_mov_b32 v2, s{S_NB}
""")
    for r in range(256):
        a(f"buffer_store_dword v{r}, v0, s[96:99], s{S_T0} offen\ns_add_u32 s{S_T0}, s{S_T0}, 256")
    a("s_endpgm")

def dump_lds(a):
    a("s_waitcnt vmcnt(0) lgkmcnt(0)\ns_barrier")
    a.srd(96, 76, 16 << 20, 200 << 20)
    a(f"""
s_lshl_b32 s{S_T0}, s2, 16
s_lshl_b32 s{S_T1}, s{S_WAVE}, 13
v_add_u32 v21, s{S_T1}, v0
""")
    for j in range(8):
        a(f"ds_read_b128 v[24:27], v21\ns_waitcnt lgkmcnt(0)\nbuffer_store_dwordx4 v[24:27], v21, s[96:99], s{S_T0} offen\ns_waitcnt vmcnt(0)\nv_add_u32 v21, 1024, v21")

def stamp(a, opt, i, grp=0):
    if opt.get('stamps') and (i in (0, 6) or grp == opt.get('grp', 0)):
        a(f"{'s_memtime' if opt['stamps'] == 2 else 's_memrealtime'} s[100:101]\ns_waitcnt lgkmcnt(0)\ns_mov_b32 s{93+i}, s100")

def stamps_out(a, opt):
    if opt.get('stamps'):
        a("s_waitcnt vmcnt(0)")
        stamp(a, opt, 6)
        a.srd(SRD_S, 76, 1 << 20, 240 << 20)
        a(f"s_lshl_b32 s{S_T0}, s2, 3\ns_add_u32 s{S_T0}, s{S_T0}, s{S_WAVE}\ns_lshl_b32 s{S_T0}, s{S_T0}, 5\nv_mov_b32 v0, 0")
        for i in range(7):
            a(f"v_mov_b32 v1, s{93+i}\nbuffer_store_dword v1, v0, {srd(SRD_S)}, s{S_T0} offen offset:{4*i}")
        if opt.get('vmstat'): a(f"s_mov_b32 s{S_NB}, s89")
        if opt.get('xcc'): a(f"s_getreg_b32 s{S_NB}, hwreg(HW_REG_XCC_ID)")
        a(f"v_mov_b32 v1, s{S_NB}\nbuffer_store_dword v1, v0, {srd(SRD_S)}, s{S_T0} offen offset:28\ns_endpgm")

def gen_k2(name, **opt):
    a = Asm()
    prologue(a, name, opt)
    if opt.get('dump'): dump_lds(a)
    pass_b(a, name, opt)
    if opt.get('dump') == 'b': dump_regs(a)
    stamp(a, opt, 2)
    pass_a(a, name, opt)
    if opt.get('dump') == 'a': dump_regs(a)
    stamp(a, opt, 4)
    epilogue(a, name, opt)
    if opt.get('drope'):
        import re
        lo = a.lines.index(f"{name}_spin:") + 6; hi = a.lines.index(f"{name}_next3:")
        a.lines[lo:hi] = [l for l in a.lines[lo:hi] if not re.search(opt['drope'], l)]
    for key, ps in (('drop', 'b'), ('dropa', 'a')):
        if opt.get(key):
            import re
            lo = a.lines.index(f"{name}_{ps}_loop:"); hi = a.lines.index(f"{name}_{ps}_done:")
            a.lines[lo:hi] = [l for l in a.lines[lo:hi] if not re.search(opt[key], l)]
    return a.text()
```

```python
from common import *

NSLOT = 3704
CAPW = NSLOT - 120
L_WR = 0
L_MT = 10240
L_FLAG = L_MT + 128
L_INV = L_MT + 256
L_YS = L_INV + 256
L_PT = L_YS + NSLOT * 8
L_RING = 56320
RING = 13440
LINE = 4160
RB_EA = 12416
RA_EA = 6144
RA_WS = 7680
TILE = 3584
K2_LDS = L_RING + 8 * RING
assert L_PT + NSLOT * 4 <= L_RING and CAPW <= 7 * 512 and K2_LDS == 163840
L_HIST = L_RING
L_DEG = L_HIST + 1024
L_BASE = L_DEG + 1024
L_MAP = L_BASE + 1024
L_CNT = L_MAP + 1024
L_WTOT = L_CNT + 256
L_IDXL = L_WTOT + 64
OOB = 0x40000
XB, EB = N * 512, E * 32

S_WAVE, S_SB, S_RING, S_WBASE, S_TOTAL, S_WCNT, S_START, S_NB, S_REM = 3, 32, 33, 34, 35, 36, 37, 38, 39
SRD_X, SRD_E, SRD_T, SRD_O, SRD_W, SRD_M, SRD_S = 4, 8, 12, 16, 20, 24, 28
S_IDX = (40, 44)
S_T0, S_T1, S_T2, S_T3 = 48, 49, 50, 51
S_MASK = 52
S_VAL, S_ADV, S_HALF, S_ROT = 80, 81, 82, 83
SRD_K = 84
SRD_I = 88
S_LND, S_IOF, S_512, S_IBASE = 44, 92, 78, 70
S_VON, S_VOFF, S_PADDR, S_PINC, S_PSGN, S_PVAL, S_PF, S_PFO = 68, 69, 70, 71, 66, 67, 78, 79

def srd(d): return f"s[{d}:{d+3}]"
def vr(b, n): return f"v[{b}:{b+n-1}]"

class DS:
    def __init__(self, a, init=()):
        self.a, self.q = a, list(init)
    def op(self, tag, text):
        self.a(text); self.q.append(tag)
    def need(self, *tags, vm=None):
        idx = [i for i, t in enumerate(self.q) if t in tags]
        if not idx:
            if vm is not None: self.a(f"s_waitcnt vmcnt({vm})")
            return False
        n = len(self.q) - 1 - max(idx)
        self.a(f"s_waitcnt {'' if vm is None else 'vmcnt(%d) ' % vm}lgkmcnt({min(n, 15)})")
        self.q = self.q[len(self.q) - min(n, 15):] if n else []
        return True
    def drain(self):
        if self.q: self.a("s_waitcnt lgkmcnt(0)")
        self.q = []

def rho(v_dst, v_e, tmp):
    return f"""
v_bfe_u32 v{v_dst}, v{v_e}, 1, 2
v_and_b32 v{tmp}, 1, v{v_e}
v_lshl_or_b32 v{v_dst}, v{tmp}, 2, v{v_dst}
v_and_or_b32 v{v_dst}, v{v_e}, 8, v{v_dst}
"""

def prologue(a, name, opt):
    a(f"""
{name}:
s_cmp_ge_u32 s2, 256
s_cbranch_scc1 {name}_end
""")
    stamp(a, opt, 1, 5)
    a(f"""
s_load_dwordx2 s[72:73], s[0:1], {KA_X}
s_load_dwordx2 s[74:75], s[0:1], {KA_OUT}
s_load_dwordx2 s[76:77], s[0:1], {KA_WS}
v_lshrrev_b32 v1, 6, v0
s_and_b32 s{S_SB}, s2, 7
v_readfirstlane_b32 s{S_WAVE}, v1
s_lshl_b32 s{S_SB}, s{S_SB}, 5
s_lshr_b32 s{S_T0}, s2, 3
s_add_u32 s{S_SB}, s{S_SB}, s{S_T0}
s_mul_i32 s{S_RING}, s{S_WAVE}, {RING}
s_add_u32 s{S_RING}, s{S_RING}, {L_RING}
s_mov_b32 s{S_VON}, {0x80000000 if opt.get('nomem') else 0}
s_mov_b32 s{S_VOFF}, 0x80000000
s_mov_b32 s{S_WBASE}, 0
s_waitcnt lgkmcnt(0)
""")
    stamp(a, opt, 0)
    a.srd(SRD_T, 76, NCH * 1024, WS_TAB)
    a(f"""
{name}_window:
v_mbcnt_lo_u32_b32 v16, -1, 0
v_mbcnt_hi_u32_b32 v16, -1, v16
v_lshlrev_b32 v0, 4, v16
s_lshl_b32 s{S_T0}, s{S_WAVE}, 6
v_add_u32 v17, s{S_T0}, v16
v_lshrrev_b32 v26, 1, v17
v_lshlrev_b32 v19, 10, v26
s_lshl_b32 s{S_T1}, s{S_SB}, 2
buffer_load_dword v27, v19, {srd(SRD_T)}, s{S_T1} offen
v_mov_b32 v21, 0
""")
    a.srd(SRD_X, 72, XB)
    a.srd(SRD_E, 76, EB, WS_EAS)
    a.srd(SRD_O, 74, XB)
    a.srd(SRD_W, 76, 51200, WS_WR)
    a.srd(SRD_M, 76, E * 8, WS_META)
    a.srd(SRD_K, 76, E * 4, WS_KEY)
    a.srd(SRD_S, 76, 256 * 8 * 128 * 256, WS_SCR)
    a.srd(SRD_I, 76, 256 * 8192, WS_ID)
    mt = [0x05040c0c, 0x03020c0c, 0x80000000, 0,
              0x0c0c0504, 0x01000c0c, 0x8000, 0,
              0x01000302, 0x0c0c0c0c, 0x8000, 0,
              0x03020100, 0x05040c0c, 0, 0,
              0x0c0c0100, 0, 0x0c0c0302, 0, 0x0c0c0504, 0, 0x0c0c0c0c, 0x3f80,
              0x01000c0c, 0, 0x03020c0c, 0, 0x05040c0c, 0, 0x0c0c0c0c, 0x3f800000]
    a(f"""
v_lshlrev_b32 v22, 2, v17
ds_write_b32 v22, v21 offset:{L_HIST}
v_lshlrev_b32 v22, 2, v16
v_mov_b32 v23, -1
v_mov_b32 v63, v17
s_cmp_lg_u32 s{S_WAVE}, 7
s_cbranch_scc1 {name}_nomt
ds_write_b32 v22, v21 offset:{L_CNT}
ds_write_b32 v22, v23 offset:{L_INV}
""")
    for i, c in enumerate(mt):
        if c: a(f"s_mov_b32 s{S_T1}, {c:#x}\nv_writelane_b32 v21, s{S_T1}, {i}")
    a(f"""
ds_write_b32 v22, v21 offset:{L_MT}
{name}_nomt:
""")
    lane_consts_b(a)
    npf0, npf = opt.get('pf0', 1), opt.get('prefetch', 1)
    a(f"""
s_getreg_b32 s{S_ROT}, hwreg(HW_REG_XCC_ID, 0, 3)
s_mul_i32 s{S_ROT}, s{S_ROT}, {opt.get('rot', 25)}
s_add_u32 s{S_ROT}, s{S_ROT}, 8
s_lshr_b32 s{S_ROT}, s{S_ROT}, 4
s_lshr_b32 s{S_PFO}, s2, 3
s_lshl_b32 s{S_PFO}, s{S_PFO}, 15
s_lshl_b32 s{S_T0}, s{S_ROT}, 21
s_add_u32 s{S_PFO}, s{S_PFO}, s{S_T0}
s_sub_u32 s{S_ROT}, 16, s{S_ROT}
s_lshl_b32 s{S_ROT}, s{S_ROT}, 12
v_lshrrev_b32 v8, 3, v63
v_and_b32 v9, 3, v63
v_max_u32 v9, 1, v9
v_lshlrev_b32 v9, 7, v9
v_lshl_add_u32 v8, v8, 9, v9
s_waitcnt vmcnt(0)
""")
    stamp(a, opt, 1, 1)
    def warm(n):
        for _ in range(n): a(f"buffer_load_dword v9, v8, {srd(SRD_X)}, s{S_PFO} offen\ns_add_u32 s{S_PFO}, s{S_PFO}, {1 << 20}")
    warm(npf0)
    if opt.get('tlb'):
        a(f"v_lshlrev_b32 v15, {opt['tlb']}, v63\nbuffer_load_dword v9, v15, {srd(SRD_E)}, 0 offen\nbuffer_load_dword v9, v15, {srd(SRD_X)}, 0 offen")
    a(f"""
s_lshl_b32 s{S_T1}, s{S_WAVE}, 10
s_mov_b32 m0, s{S_T1}
s_and_b32 s{S_T2}, s{S_T1}, 1024
buffer_load_dwordx4 v0, {srd(SRD_W)}, s{S_T1} offen lds
s_add_u32 s{S_T2}, s{S_T2}, 8192
s_mov_b32 m0, s{S_T2}
s_nop 0
buffer_load_dwordx4 v0, {srd(SRD_W)}, s{S_T2} offen lds
v_lshrrev_b32 v21, 16, v27
v_and_b32 v20, 0xffff, v27
v_and_b32 v23, 1, v16
v_cmp_eq_u32 vcc, 0, v23
s_nop 1
v_cndmask_b32 v22, 0, v21, vcc
""")
    a.scan64(22)
    a(f"""
s_nop 0
v_readlane_b32 s{S_T0}, v22, 63
s_lshl_b32 s{S_T1}, s{S_WAVE}, 2
s_add_u32 s{S_T1}, s{S_T1}, {L_WTOT}
v_mov_b32 v24, s{S_T1}
v_mov_b32 v25, s{S_T0}
ds_write_b32 v24, v25
v_and_b32 v24, 7, v16
v_lshlrev_b32 v24, 2, v24
v_add_u32 v24, {L_WTOT}, v24
v_sub_u32 v22, v22, v21
v_mul_u32_u24 v18, {CH}, v26
v_add_u32 v20, v20, v18
s_waitcnt lgkmcnt(0)
s_barrier
ds_read_b32 v25, v24
s_waitcnt lgkmcnt(0)
""")
    for sh in (1, 2, 4):
        a(f"s_nop 1\nv_add_u32_dpp v25, v25, v25 row_shr:{sh} row_mask:0xf bank_mask:0xf bound_ctrl:0")
    a(f"""
s_nop 0
v_readlane_b32 s{S_TOTAL}, v25, 7
v_readlane_b32 s{S_T1}, v25, s{S_WAVE}
s_sub_u32 s{S_T1}, s{S_T1}, s{S_T0}
s_sub_u32 s{S_T1}, s{S_T1}, s{S_WBASE}
s_sub_u32 s{S_WCNT}, s{S_TOTAL}, s{S_WBASE}
s_min_u32 s{S_WCNT}, s{S_WCNT}, {CAPW}
v_add_u32 v22, s{S_T1}, v22
v_sub_u32 v24, 0, v22
v_max_i32 v24, 0, v24
v_sub_u32 v25, {CAPW}, v22
v_min_i32 v25, v25, v21
v_add_u32 v24, v24, v23
v_sub_u32 v20, v20, v22
v_sub_u32 v25, v25, v24
v_add_lshl_u32 v22, v22, v24, 2
{name}_expand:
""")
    for k in range(8):
        a(f"v_cmpx_lt_i32 vcc, {2*k}, v25")
        if k in (0, 4): a(f"s_cbranch_execz {name}_expanded")
        a(f"ds_write_b32 v22, v20 offset:{L_IDXL + 8*k}")
    a(f"""
v_add_u32 v22, 64, v22
v_subrev_u32 v25, 16, v25
s_branch {name}_expand
{name}_expanded:
s_mov_b64 exec, -1
v_lshlrev_b32 v22, 2, v63
v_add_u32 v22, {L_IDXL}, v22
""")
    REC, RK, BA, PAD = 24, 56, 64, 72
    for j in range(7):
        a(f"v_add_u32 v{BA+j}, {512*j}, v63\nv_cmp_gt_u32 s[{S_MASK+2*j}:{S_MASK+2*j+1}], s{S_WCNT}, v{BA+j}")
    a("v_bfrev_b32 v23, 2")
    a("s_waitcnt lgkmcnt(0)\ns_barrier")
    stamp(a, opt, 2, 1)
    def pay(js):
        for j in js: a(f"buffer_load_dwordx2 {vr(REC+4*j,2)}, v{PAD+j}, {srd(SRD_M)}, 0 offen")
    for j in range(7): a(f"ds_read_b32 v{RK+j}, v22 offset:{2048*j}")
    for j in range(7):
        a(f"""
s_waitcnt lgkmcnt({6-j})
v_add_lshl_u32 v{RK+j}, v{RK+j}, v{BA+j}, 2
v_cndmask_b32 v{RK+j}, v23, v{RK+j}, s[{S_MASK+2*j}:{S_MASK+2*j+1}]
buffer_load_dword v{REC+4*j+2}, v{RK+j}, {srd(SRD_K)}, 0 offen
""")
    stamp(a, opt, 1, 3)
    for j in range(7): a(f"v_lshlrev_b32 v{PAD+j}, 1, v{RK+j}")
    a(f"v_and_b32 v17, 48, v0\nds_read_b128 {vr(MT,4)}, v17 offset:{L_MT}")
    zero(a, ACC, opt.get('z0', 180))
    def mask(j): return f"s_mov_b64 exec, s[{S_MASK+2*j}:{S_MASK+2*j+1}]"
    a("v_mov_b32 v23, 1")
    for j in range(7):
        a(f"""
s_waitcnt vmcnt({6-j})
v_bfe_u32 v{BA+j}, v{REC+4*j+2}, 16, 8
{mask(j)}
v_lshlrev_b32 v{BA+j}, 2, v{BA+j}
v_add_u32 v{RK+j}, s{S_ROT}, v{REC+4*j+2}
ds_add_u32 v{BA+j}, v23 offset:{L_DEG}
v_bfe_u32 v{RK+j}, v{RK+j}, 11, 5
v_lshlrev_b32 v{RK+j}, 2, v{RK+j}
""")
        if j == 0: stamp(a, opt, 2, 3)
        if j == 6: stamp(a, opt, 3, 3)
    a("s_mov_b64 exec, -1")
    stamp(a, opt, 4, 3)
    a(f"""
v_lshlrev_b32 v22, 2, v63
v_cmp_gt_u32 vcc, 200, v63
s_waitcnt lgkmcnt(0)
s_barrier
""")
    stamp(a, opt, 1, 2)
    stamp(a, opt, 5, 3)
    a(f"s_cmp_lt_u32 s{S_WAVE}, 4\ns_cbranch_scc1 {name}_rank")
    pay(range(4))
    a("s_barrier")
    pay(range(4, 7))
    a(f"s_branch {name}_nomap\n{name}_rank:")
    a(f"""
s_and_b64 exec, exec, vcc
ds_read_b32 v21, v22 offset:{L_DEG}
s_waitcnt lgkmcnt(0)
v_min_u32 v21, 63, v21
v_sub_u32 v21, 63, v21
v_lshlrev_b32 v21, 2, v21
ds_add_rtn_u32 v20, v21, v23 offset:{L_CNT}
s_mov_b64 exec, -1
v_lshlrev_b32 v19, 2, v16
s_waitcnt lgkmcnt(0)
s_barrier
""")
    stamp(a, opt, 2, 2)
    a(f"""
ds_read_b32 v18, v19 offset:{L_CNT}
s_waitcnt lgkmcnt(0)
v_mov_b32 v19, v18
""")
    a.scan64(19)
    a(f"""
v_sub_u32 v19, v19, v18
ds_bpermute_b32 v19, v21, v19
s_cmp_lg_u32 s{S_TOTAL}, s{S_WCNT}
s_cselect_b64 s[{S_T2}:{S_T3}], -1, 0
s_and_b64 exec, exec, vcc
s_waitcnt lgkmcnt(0)
v_add_u32 v19, v19, v20
v_cndmask_b32 v19, v19, v63, s[{S_T2}:{S_T3}]
v_lshrrev_b32 v18, 3, v19
v_bfe_i32 v20, v19, 3, 1
v_xor_b32 v19, v19, v20
v_and_b32 v19, 7, v19
v_lshl_add_u32 v20, v19, 5, v18
ds_write_b8 v20, v63 offset:{L_INV}
v_lshl_or_b32 v18, v19, 23, v18
ds_write_b32 v22, v18 offset:{L_MAP}
s_mov_b64 exec, -1
{name}_nomap:
""")
    a("s_waitcnt lgkmcnt(0)\ns_barrier")
    stamp(a, opt, 3, 2)
    for j in range(7): a(f"ds_read_b32 v{REC+4*j+3}, v{BA+j} offset:{L_MAP}")
    a(f"s_cmp_ge_u32 s{S_WAVE}, 4\ns_cbranch_scc1 {name}_nopay1")
    pay(range(3))
    a(f"{name}_nopay1:\ns_waitcnt lgkmcnt(0)")
    for j in range(7):
        a(f"v_add_u32_sdwa v{BA+j}, v{RK+j}, v{REC+4*j+3} dst_sel:DWORD dst_unused:UNUSED_PAD src0_sel:DWORD src1_sel:WORD_1")
    for j in range(7): a(f"{mask(j)}\nds_add_rtn_u32 v{RK+j}, v{BA+j}, v23 offset:{L_HIST}")
    a(f"s_mov_b64 exec, -1\ns_cbranch_scc1 {name}_nopay2")
    pay(range(3, 7))
    a(f"{name}_nopay2:")
    stamp(a, opt, 3, 1)
    a(f"""
s_waitcnt lgkmcnt(0)
s_barrier
""")
    stamp(a, opt, 4, 2)
    stamp(a, opt, 1, 6)
    a(f"""
ds_read_b128 v[72:75], v0 offset:{L_HIST}
""")
    warm(npf)
    a(f"""
s_waitcnt lgkmcnt(0)
v_add_u32 v77, v72, v73
v_add_u32 v78, v77, v74
v_add_u32 v79, v78, v75
v_mov_b32 v71, v79
""")
    for sh in (1, 2, 4):
        a(f"s_nop 1\nv_add_u32_dpp v71, v71, v71 row_shr:{sh} row_mask:0xf bank_mask:0xf bound_ctrl:0")
    a(f"""
v_and_b32 v23, 7, v16
v_cmp_eq_u32 vcc, 7, v23
v_sub_u32 v76, 0, v71
v_and_b32 v76, 15, v76
v_cndmask_b32 v76, 0, v76, vcc
v_add_u32 v79, v79, v76
v_mov_b32 v76, v79
""")
    a.scan64(76)
    a(f"""
v_sub_u32 v76, v76, v79
v_add_u32 v79, v76, v78
v_add_u32 v78, v76, v77
v_add_u32 v77, v76, v72
ds_write_b128 v0, v[76:79] offset:{L_BASE}
s_lshl_b32 s{S_T0}, s{S_WAVE}, 3
s_add_u32 s{S_T1}, s{S_T0}, 7
v_readlane_b32 s{S_START}, v76, s{S_T0}
v_readlane_b32 s{S_T2}, v71, s{S_T1}
""")
    for j in range(7): a(f"ds_read_b32 v{BA+j}, v{BA+j} offset:{L_BASE}")
    a(f"""
s_add_u32 s{S_NB}, s{S_T2}, 15
s_lshr_b32 s{S_NB}, s{S_NB}, 4
s_lshl_b32 s{S_T3}, s{S_NB}, 4
s_sub_u32 s{S_HALF}, s{S_T3}, s{S_T2}
s_cmp_ge_u32 s{S_HALF}, 8
s_cselect_b32 s{S_HALF}, 0, -2
s_mov_b32 s{S_ADV}, 0
{'s_mov_b32 s89, 0' if opt.get('vmstat') else ''}
v_add_u32 v23, s{S_T2}, v16
v_cmp_gt_u32 vcc, s{S_T3}, v23
v_add_u32 v23, s{S_START}, v23
v_mov_b32 v18, 0
v_mov_b32 v19, 0xffff0000
v_mov_b32 v20, 0x1fffffe0
v_lshlrev_b32 v21, 3, v23
v_lshlrev_b32 v22, 2, v23
s_and_b64 exec, exec, vcc
ds_write_b64 v21, v[18:19] offset:{L_YS}
ds_write_b32 v22, v20 offset:{L_PT}
s_mov_b64 exec, -1
s_waitcnt lgkmcnt(0)
""")
    stamp(a, opt, 5, 2)
    stamp(a, opt, 2, 6)
    a(f"s_mov_b32 s{S_T0}, 0x0c070302\ns_mov_b32 s{S_T1}, 0x05040100\ns_waitcnt vmcnt({npf})")
    stamp(a, opt, 3, 6)
    for j in range(7):
        a(f"""
{mask(j)}
v_perm_b32 v20, v{REC+4*j+2}, v{REC+4*j+1}, s{S_T0}
v_perm_b32 v{REC+4*j+1}, v{REC+4*j+2}, v{REC+4*j+1}, s{S_T1}
v_lshlrev_b32 v20, 5, v20
v_add_lshl_u32 v21, v{BA+j}, v{RK+j}, 3
v_add_lshl_u32 v22, v{BA+j}, v{RK+j}, 2
v_and_or_b32 v{REC+4*j+2}, v{REC+4*j+3}, 31, v20
ds_write_b64 v21, {vr(REC+4*j,2)} offset:{L_YS}
ds_write_b32 v22, v{REC+4*j+2} offset:{L_PT}
""")
    a("s_mov_b64 exec, -1")
    stamp(a, opt, 4, 6)

def list_lanes(a):
    a("v_lshrrev_b32 v17, 3, v16")
    a(rho(2, 17, 18))
    a("v_lshrrev_b32 v17, 2, v16")
    a(rho(3, 17, 18))
    a("v_bfe_u32 v17, v16, 1, 4")
    a(rho(4, 17, 18))
    a("v_and_b32 v14, 0x70, v0")

def list_addrs(a):
    a(f"""
v_add_lshl_u32 v2, v2, s{S_START}, 3
v_add_u32 v2, {L_YS + 4}, v2
v_add_lshl_u32 v3, v3, s{S_START}, 3
v_add_lshl_u32 v4, v4, s{S_START}, 2
""")

def ea_addrs(a, v_a0, v_a1, ring_off):
    a(f"""
v_bfe_u32 v17, v16, 3, 2
v_and_b32 v18, 3, v16
v_lshl_or_b32 v17, v17, 2, v18
v_lshlrev_b32 v17, 5, v17
v_lshrrev_b32 v18, 5, v16
v_lshl_or_b32 v17, v18, 4, v17
v_bfe_u32 v18, v16, 2, 1
v_mul_u32_u24 v18, {OOB + 16}, v18
v_xor_b32 v17, v18, v17
s_add_u32 s{S_T0}, s{S_RING}, {ring_off}
v_add_u32 v{v_a0}, s{S_T0}, v17
v_xor_b32 v17, {OOB + 16}, v17
v_add_u32 v{v_a1}, s{S_T0}, v17
""")

def valid(a, k):
    a(f"""
s_cmp_ge_i32 s{S_REM}, {k}
s_cselect_b32 s{S_VAL}, s{S_VON}, s{S_VOFF}
""")

def dma_e(a, v, off, restore=True):
    a(f"""
s_add_u32 m0, s{S_RING}, {off}
s_mov_b32 exec_hi, 0
buffer_load_dwordx4 v{v}, {srd(SRD_E)}, s{S_VAL} offen lds
""")
    if restore: a("s_mov_b32 exec_hi, -1")

def zero(a, lo, hi):
    if lo & 1 and lo < hi: a(f"v_mov_b32 v{lo}, 0"); lo += 1
    for r in range(lo, hi, 2): a(f"v_mov_b64 {vr(r,2)}, 0")

def align(a, k):
    if k is None: return
    a(".p2alignl 5, 0xbf800000")
    for _ in range(k): a("s_nop 0")

def idload(): return f"s_buffer_load_dwordx4 s[{S_LND}:{S_LND+3}], {srd(SRD_I)}, s{S_IOF}\ns_add_u32 s{S_IOF}, s{S_IOF}, 16"
def rowaddr(d, w): return f"v_mad_u32_u16 v{d}, v{w}, s{S_512}, v14 op_sel:[1,0,0,0]"

def prio_init(a):
    a(f"""
s_max_u32 s{S_T0}, s{S_NB}, 1
v_cvt_f32_u32 v17, s{S_T0}
v_rcp_f32 v17, v17
s_and_b32 s{S_PADDR}, s{S_WAVE}, 3
s_lshl_b32 s{S_PADDR}, s{S_PADDR}, 2
v_mul_f32 v17, 0x47800000, v17
s_add_u32 s{S_PADDR}, s{S_PADDR}, {L_FLAG + 16}
v_cvt_u32_f32 v17, v17
s_cmp_ge_u32 s{S_WAVE}, 4
s_cselect_b32 s{S_PSGN}, -1, 1
v_readfirstlane_b32 s{S_PINC}, v17
s_mul_i32 s{S_PINC}, s{S_PINC}, s{S_PSGN}
s_mov_b32 s{S_PVAL}, 0
""")
def young_prio(a, lvl): a(f"s_setprio 1\ns_cmp_lt_u32 s{S_WAVE}, 4\ns_cbranch_scc1 1\ns_setprio {lvl}")
def prio_addr(va, vd): return [f"v_lshl_add_u32 v{va}, v0, 14, s{S_PADDR}", f"v_mov_b32 v{vd}, s{S_PINC}"]
def prio_add(va, vd): return ("pr", f"ds_add_rtn_u32 v{vd}, v{va}, v{vd}")
def prio_read(vd): return [f"v_readfirstlane_b32 s{S_PVAL}, v{vd}", f"s_mul_i32 s{S_PVAL}, s{S_PVAL}, s{S_PSGN}"]
def prio_set(base=0):
    return [f"s_cmp_ge_i32 s{S_PVAL}, 0", f"s_setprio {base}", "s_cbranch_scc1 1", f"s_setprio {base+1}"]

M3, M1, XR, G, T1, T2, T3, ACC = 6, 8, (10, 12), (16, 24), 32, 48, 64, 81

def dma_x(a, v, slot, fill):
    for b in range(3):
        a(f"s_add_u32 m0, s{S_RING}, {b*LINE + slot*1024 - 128*(b+1)}")
        a(fill[b] if b < len(fill) else "s_nop 0")
        a(f"buffer_load_dwordx4 v{v}, {srd(SRD_X)}, s{S_VAL} offen offset:{128*(b+1)} lds")

GG, XX, MT, EC = 16, (20, 24, 28), 10, 7

def lane_consts_b(a):
    list_lanes(a)
    ea_addrs(a, 5, 80, RB_EA)
    a(f"""
v_lshrrev_b32 v18, 4, v16
v_lshlrev_b32 v17, 5, v18
v_and_b32 v18, 3, v16
v_lshl_add_u32 v17, v18, 3, v17
v_add_u32 v17, s{S_RING}, v17
v_bfe_u32 v18, v16, 2, 2
v_min_u32 v19, 2, v18
v_mul_u32_u24 v19, {LINE}, v19
v_cmp_eq_u32 vcc, 2, v18
v_mov_b32 v20, {OOB + 192}
v_bfe_u32 v21, v16, 3, 1
v_cndmask_b32 v19, v19, v20, vcc
v_add_u32 v1, v17, v19
v_and_b32 v18, 1, v18
v_cmp_eq_u32 vcc, 0, v18
v_mul_u32_u24 v21, {LINE}, v21
s_nop 0
v_cndmask_b32 v21, v21, v20, vcc
v_add_u32 v6, v17, v21
""")

def pass_b(a, name, opt):
    si = S_IDX[0]
    prio = opt.get('prio', 3)
    def xread(ds, p, e):
        o = ((2*p + (e >> 3)) & 3)*1024 + (e & 7)*128
        ds.op(f"x{e}", f"ds_read_b64_tr_b16 {vr(XX[e%3],2)}, v1 offset:{o}")
        ds.op(f"x{e}", f"ds_read_b64_tr_b16 {vr(XX[e%3]+2,2)}, v6 offset:{o}")
    def wr(tag, dst, path, h): return (f"{tag}{h}", f"ds_read_b128 {vr(dst,4)}, v0 offset:{L_WR + (path*2+h)*1024}")
    W1 = [wr("W1", T3+4*h, 3, h) for h in range(2)]
    W2 = [wr("W2", T3+8+4*h, 4, h) for h in range(2)]
    W3 = [wr("W3", (XX[0], GG)[h], 1, h) for h in range(2)]
    AR = (XX[1], XX[2])
    def ar(p, h): return (f"A{h}", f"ds_read_b128 {vr(AR[h],4)}, v{(5, 80)[h]} offset:{p*512}")
    def tail_reads(off):
        return [("ys", f"ds_read_b64 {vr(T2,2)}, v3 offset:{L_YS + 128*off}"),
                ("pt", f"ds_read_b32 v{T2+3}, v4 offset:{L_PT + 64*(off+2)}"),
                ("sr", f"ds_read2_b32 v[12:13], v2 offset0:{32*off + 48} offset1:{32*off + 64}")]
    if opt.get('solo'): a(f"s_cmp_ge_u32 s{S_WAVE}, 4\ns_cselect_b32 s{S_NB}, 0, s{S_NB}")
    if prio in (1, 2):
        prio_init(a)
        a(prio_addr(7, 0)[0])
    list_addrs(a)
    a(f"""
v_mov_b32 v7, v{MT+2}
s_movk_i32 s{S_512}, 512
s_lshl_b32 s{S_T0}, s2, 7
s_add_u32 s{S_T0}, s{S_T0}, s{S_WAVE}
s_add_u32 s{S_IBASE}, s{S_START}, 63
s_lshr_b32 s{S_IBASE}, s{S_IBASE}, 6
s_add_u32 s{S_IBASE}, s{S_IBASE}, s{S_T0}
s_lshl_b32 s{S_IBASE}, s{S_IBASE}, 6
s_add_u32 s{S_IOF}, s{S_IBASE}, 16
s_lshl_b32 s{S_T1}, s{S_NB}, 4
s_max_u32 s{S_T0}, s{S_T1}, 1
s_sub_u32 s{S_T0}, s{S_T0}, 1
s_and_b32 s{S_T0}, s{S_T0}, 0xff00
s_mov_b32 s{S_T2}, 0x0c0c0400
s_mov_b32 s{S_T3}, 0x04000c0c
v_lshrrev_b32 v15, 2, v0
""")
    if opt.get('ahead', 0):
        a(f"""
s_lshl_b32 s{S_T0}, s{S_WAVE}, 8
s_add_u32 s{S_T0}, s{S_T0}, s2
s_lshl_b32 s{S_PFO}, s{S_T0}, 14
s_sub_u32 s{S_T0}, {1563 + opt.get('lead', 190)}, s{S_T0}
s_mul_i32 s{S_T0}, s{S_T0}, s{S_NB}
s_mul_i32 s{S_T0}, s{S_T0}, 42
s_ashr_i32 s{S_PF}, s{S_T0}, 16
""")
    a(f"""
s_sub_u32 s{S_REM}, s{S_NB}, 1
s_waitcnt lgkmcnt(0)
s_barrier
""")
    stamp(a, opt, 1)
    stamp(a, opt, 4, 1)
    stamp(a, opt, 5, 6)
    ds = DS(a)
    for t in range(2): ds.op(f"pt{t}", f"ds_read_b32 v{T1+8+t}, v4 offset:{L_PT + 64*t}")
    for h in range(3): ds.op(f"sr{h}", f"ds_read_u16 v{T1+10+h}, v2 offset:{2 + 64*h}")
    for op in tail_reads(0) + W1: ds.op(*op)
    ds.need("sr2")
    for t in range(2): a(f"v_bfi_b32 v{T1+8+t}, 31, v0, v{T1+8+t}")
    for h in range(3): a(f"v_lshl_or_b32 v{T1+10+h}, v{T1+10+h}, 9, v14")
    valid(a, 0)
    dma_e(a, T1+8, RB_EA)
    dma_x(a, T1+10, 0, [])
    a(f"""
{name}_idcopy:
v_add_u32 v{T2+12}, s{S_T0}, v15
v_add_lshl_u32 v{T2+13}, v{T2+12}, s{S_START}, 2
v_cmp_gt_u32 vcc, s{S_T1}, v{T2+12}
ds_read_b128 {vr(T2+8,4)}, v{T2+13} offset:{L_PT}
v_bfrev_b32 v{T2+13}, 1
v_cndmask_b32 v{T2+12}, v{T2+13}, v{T2+12}, vcc
s_waitcnt lgkmcnt(0)
v_perm_b32 v{T2+8}, v{T2+9}, v{T2+8}, s{S_T2}
v_perm_b32 v{T2+10}, v{T2+11}, v{T2+10}, s{S_T3}
v_or_b32 v{T2+8}, v{T2+8}, v{T2+10}
v_and_b32 v{T2+8}, 0x1f1f1f1f, v{T2+8}
s_sub_u32 s{S_T0}, s{S_T0}, 256
buffer_store_dword v{T2+8}, v{T2+12}, {srd(SRD_I)}, s{S_IBASE} offen
s_cbranch_scc0 {name}_idcopy
""")
    for i in range(4): a(f"v_readlane_b32 s{S_LND+i}, v{T2+8}, {i}")
    zero(a, opt.get('z0', 180), opt.get('z1', 256))
    dma_x(a, T1+11, 1, [])
    def deeper():
        valid(a, 1)
        dma_e(a, T1+9, RB_EA + 512)
        dma_x(a, T1+12, 2, [])
    late = opt.get('late', 0)
    if not late: deeper()
    zero(a, opt.get('z1', 256), 256)
    a(f"s_cmp_eq_u32 s{S_NB}, 0\ns_cbranch_scc1 {name}_b_done")
    ds.drain()
    a(f"""
s_lshl_b32 s{S_T1}, s{S_NB}, 4
s_add_u32 s{S_T1}, s{S_T1}, s{S_IBASE}
s_mov_b32 s{S_T0}, s{S_IBASE}
s_waitcnt vmcnt({3 if late else 7})
s_cmp_eq_u32 s{S_WBASE}, 0
s_cbranch_scc1 {name}_idfresh
{name}_idwarm:
s_buffer_load_dword s{S_T2}, {srd(SRD_I)}, s{S_T0}{opt.get('wglc', ' glc')}
s_add_u32 s{S_T0}, s{S_T0}, 64
s_cmp_le_u32 s{S_T0}, s{S_T1}
s_cbranch_scc1 {name}_idwarm
s_waitcnt lgkmcnt(0)
{name}_idfresh:
""")
    stamp(a, opt, 5, 1)
    for op in (ar(0, 0), W2[0], ar(0, 1)): ds.op(*op)
    if late: deeper()
    entry = list(ds.q)
    align(a, opt.get('alb'))
    a(f"{name}_b_loop:")
    for p in range(2):
        ds = DS(a, entry)
        def big(tag, tile, w, h):
            ds.need(f"A{h}", f"{tag}{h}")
            a(f"v_mfma_f32_32x32x16_bf16 {vr(tile,16)}, {vr(AR[h],4)}, {vr(w,4)}, {vr(tile,16) if h else 0}")
        def m0x(b, slot): return f"s_add_u32 m0, s{S_RING}, {b*LINE + slot*1024 - 128*(b+1)}"
        def setidx(e):
            r, k = si + 2*(e >> 3) + (e & 1), (e >> 1) & 3
            return f"s_lshr_b32 m0, s{r}, 24" if k == 3 else f"s_bfe_u32 m0, s{r}, {0x80000 + 8*k:#x}"
        def ldx(v, b): return f"buffer_load_dwordx4 v{v}, {srd(SRD_X)}, s{S_VAL} offen offset:{128*(b+1)} lds"
        if p == 0 and opt.get('grp') == 4:
            for i, it in enumerate((1, 2, 4, 7, 10)):
                a(f"s_cmp_lg_u32 s{S_ADV}, {32*it}\ns_cbranch_scc1 4")
                stamp(a, opt, 1 + i, 4)
        if p == 0 and opt.get('ahead', 0):
            a(f"s_cmp_le_i32 s{S_REM}, s{S_PF}\ns_cbranch_scc1 {name}_b_ahead\n{name}_b_back:")
        if opt.get('rprio'): a("s_setprio 0")
        big("W1", T1, T3, 0)
        ds.op(*W2[1]); ds.op(*W3[0]); ds.op(*W3[1])
        a(f"""
v_perm_b32 v{M1}, v{T2+1}, v{T2}, v{MT}
v_perm_b32 v{M1+1}, v{T2+1}, v{T2}, v{MT+1}
v_xor_b32 v{M1}, v{M1}, v7
""")
        big("W1", T1, T3+4, 1)
        a(f"{rowaddr(12, 12)}\nv_bfi_b32 v{T3+1}, 31, v0, v{T2+3}\n{rowaddr(13, 13)}")
        sl = (2*p + 3) & 3
        a(m0x(0, sl))
        big("W2", T2, T3+8, 0)
        a(f"{ldx(12, 0)}\n{m0x(1, sl)}")
        ds.drain()
        a(ldx(12, 1))
        for i in range(4): a(f"s_mul_i32 s{si+i}, s{S_LND+i}, 7")
        a(f"{idload()}\n{m0x(2, sl)}")
        big("W2", T2, T3+12, 1)
        a(ldx(12, 2))
        valid(a, 2)
        dma_e(a, T3+1, RB_EA + 512*p)
        big("W3", T3, XX[0], 0)
        if opt.get('vmstat'): a("s_getreg_b32 s88, hwreg(HW_REG_IB_STS, 0, 4)\ns_add_u32 s89, s89, s88\ns_cmp_gt_u32 s88, 11\ns_cselect_b32 s88, 0x10000, 0\ns_add_u32 s89, s89, s88")
        a("s_waitcnt vmcnt(11)")
        xread(ds, p, 0); xread(ds, p, 1)
        big("W3", T3, GG, 1)
        a("s_nop 0")
        tr_ = tail_reads(p+1)
        pre = {}
        if p == 1: pre[13] = ["v_add_u32 v2, 256, v2", "v_add_u32 v3, 256, v3", "v_add_u32 v4, 128, v4", f"s_add_u32 s{S_ADV}, s{S_ADV}, 32"]
        aux = {4: tr_[:1], 6: tr_[1:2], 11: tr_[2:], 12: W1}
        if prio == 1 or (prio == 2 and p == 0):
            pre[1] = prio_addr(7, T3)[1:]; aux[1] = [prio_add(7, T3)]
            pre[4] = prio_read(T3) + ([] if opt.get('rprio') else prio_set())
        if opt.get('rprio'):
            for l in prio_set(1): a(l)
        for e in range(16):
            x = XX[e % 3]
            if prio == 3 and 16*p + e in opt.get('phb', {0: 2, 21: 0}): young_prio(a, opt.get('phb', {0: 2, 21: 0})[16*p + e])
            if e == 8 and opt.get('half', 1): a(f"s_cmp_eq_u32 s{S_REM}, s{S_HALF}\ns_cbranch_scc1 {name}_b_done")
            if e in (8, 9, 10): a(m0x(e-8, 2*p))
            w2 = opt.get('wait2', 0) and e % 2 == 0 and e not in (0, 8)
            if not ds.need(f"x{e}", f"x{e+1}" if w2 else "", vm=7 if e == 6 else None): assert e not in (8, 9, 10)
            if e in (8, 9, 10): a(f"{ldx(13, e-8)}\n{setidx(e)}")
            a(f"v_mfma_f32_4x4x4_16b_bf16 {vr(GG,4)}, {vr(M1,2)}, {vr(x,2)}, 0 cbsz:4 abid:{e}")
            for l in pre.get(e, []): a(l)
            a(f"s_set_gpr_idx_on s{si}, 0x8" if e == 0 else "s_set_gpr_idx_mode 0x8")
            for op in aux.get(e, []): ds.op(*op)
            if e < 14: xread(ds, p, e+2)
            elif e == 14: ds.op(*ar(p ^ 1, 0)); ds.op(*W2[0])
            else: ds.op(*ar(p ^ 1, 1))
            for i, src in enumerate((x+2, x+3, x+1)): a(f"v_fmac_f32 v{ACC+4+i}, v{src}, v{T1+e}")
            for i in range(4): a(f"v_fmac_f32 v{ACC+i}, v{GG+i}, v{(T2, T2, T2, T3)[i]+e}")
            if e == 15: a("s_set_gpr_idx_off")
            elif e + 1 not in (8, 9, 10): a(setidx(e+1))
        a(f"s_sub_u32 s{S_REM}, s{S_REM}, 1\ns_cbranch_scc1 {name}_b_done")
        assert ds.q == entry, (ds.q, entry)
    a(f"s_branch {name}_b_loop")
    if opt.get('ahead', 0):
        a(f"""
{name}_b_ahead:
v_lshlrev_b32 v{T1}, 3, v0
s_mov_b32 m0, {L_MT}
s_mov_b32 s{S_PF}, -100
s_mov_b32 exec_hi, 0
""")
        for i in range(4): a(f"buffer_load_dword v{T1}, {srd(SRD_X)}, s{S_PFO} offen lds\ns_add_u32 s{S_PFO}, s{S_PFO}, 4096")
        a(f"s_mov_b32 exec_hi, -1\ns_branch {name}_b_back")
    a(f"{name}_b_done:\ns_set_gpr_idx_off")

def pack(a, ops, spare, neg=()):
    ops, spare, moves = list(ops), list(spare), []
    while ops:
        for k, (d, x, y) in enumerate(ops):
            if not any(d in o[1:] for j, o in enumerate(ops) if j != k): break
        else:
            k = 0; d, x, y = ops[0]; t = spare.pop(); moves.append((d, t)); d = t
        a(f"v_cvt_pk_bf16_f32 v{d}, {'-' if x in neg else ''}v{x}, {'-' if y in neg else ''}v{y}"); ops.pop(k)
    for d, t in moves: a(f"v_mov_b32 v{d}, v{t}")

ORD_B = (3, 4, 0, 5, 1, 6, 2)
ORD_A = (2, 1, 0, 3)
PB, ACA = 68, 156
TA0, TA2 = 32, 48
SB_ = (10, 12, 64, 66)
M2, SELA, AA, WA = 8, 6, 16, 24

def pass_a(a, name, opt):
    def dma_s(v, slot, fill="s_nop 0"):
        a(f"s_add_u32 m0, s{S_RING}, {slot*1024}\n{fill}\nbuffer_load_dwordx4 v{v}, {srd(SRD_X)}, s{S_VAL} offen lds")
    SR = SB_ + (AA, AA+2, AA+4, AA+6)
    def sread(c, m):
        slot = 2*c + (m >> 2)
        return (f"s{m}", f"ds_read_b64_tr_b16 {vr(SR[m],2)}, v1 offset:{slot*1024 + (m & 3)*256}")
    def next_reads(c, off):
        r = [("sr", f"ds_read2_b32 {vr(TA2+2,2)}, v2 offset0:{32*off + 80} offset1:{32*off + 96}"),
             ("pt", f"ds_read_b32 v{TA2+5}, v4 offset:{L_PT + 64*(off+3)}")]
        r += [(f"W0{h}", f"ds_read_b128 {vr(TA2+8+4*h,4)}, v0 offset:{L_WR + h*1024}") for h in range(2)]
        r += [("A0", f"ds_read_b128 {vr(AA,4)}, v5 offset:{c*512}"),
              ("A1", f"ds_read_b128 {vr(AA+4,4)}, v7 offset:{c*512}")]
        r += [sread(c, m) for m in range(4)]
        r += [("ys", f"ds_read_b64 {vr(TA2,2)}, v3 offset:{L_YS + 128*off}")]
        return r
    a(f"""
s_waitcnt vmcnt(0) lgkmcnt(0)
s_mul_i32 s{S_T1}, s{S_WAVE}, 5120
s_add_u32 s{S_T1}, s{S_T1}, 10240
""")
    for j in range(5):
        a(f"s_add_u32 m0, s{S_RING}, {RA_WS}\ns_nop 0\nbuffer_load_dwordx4 v0, {srd(SRD_W)}, s{S_T1} offen offset:{1024*j if j < 4 else 0} lds"
          if j < 4 else
          f"s_add_u32 m0, s{S_RING}, {RA_WS+4096}\ns_add_u32 s{S_T1}, s{S_T1}, 4096\nbuffer_load_dwordx4 v0, {srd(SRD_W)}, s{S_T1} offen lds")
    a(f"""
s_lshl_b32 s{S_T0}, s{S_ADV}, 3
s_lshl_b32 s{S_T1}, s{S_ADV}, 2
v_subrev_u32 v2, s{S_T0}, v2
v_subrev_u32 v4, s{S_T1}, v4
v_lshrrev_b32 v17, 1, v14
""")
    ds = DS(a)
    for h in range(5): ds.op(f"sr{h}", f"ds_read_u16 v{TA0+h}, v2 offset:{2 + 64*h}")
    for t in range(3): ds.op(f"pt{t}", f"ds_read_b32 v{TA0+8+t}, v4 offset:{L_PT + 64*t}")
    ds.op("mt", f"ds_read_b64 {vr(M2,2)}, v17 offset:{L_MT + 64}")
    a(f"""
v_subrev_u32 v3, s{S_T0}, v3
s_mov_b32 s{S_IOF}, s{S_IBASE}
{idload()}
v_bfe_u32 v17, v0, 7, 1
v_mul_u32_u24 v17, {LINE - 128}, v17
v_sub_u32 v1, v6, v17
v_subrev_u32 v5, {RB_EA - RA_EA}, v5
v_subrev_u32 v7, {RB_EA - RA_EA}, v80
s_sub_u32 s{S_REM}, s{S_NB}, 1
""")
    ds.drain()
    for h in range(5): a(f"v_lshl_or_b32 v{TA0+h}, v{TA0+h}, 9, v14")
    for t in range(3): a(f"v_bfi_b32 v{TA0+8+t}, 31, v0, v{TA0+8+t}")
    a(f"v_mov_b32 v{SELA}, v{M2}")
    for t in range(3):
        valid(a, t)
        dma_s(TA0+2*t, 2*t)
        dma_e(a, TA0+8+t, RA_EA + 512*t)
        if t < 2: dma_s(TA0+2*t+1, 2*t+1)
    for h in range(2): ds.op(f"W2{h}", f"ds_read_b128 {vr(WA+4*h,4)}, v0 offset:{L_WR + (4+h)*1024}")
    pack(a, [(PB + 12*ORD_B.index(i) + p, ACC+14*p+i, ACC+14*p+7+i) for p in range(12) for i in range(7)]
            + [(PB+84+i, ACC+168+2*i, ACC+168+min(2*i+1, 6)) for i in range(4)], range(48, 64), range(ACC+1, 256, 7))
    zero(a, ACA, 256)
    a(f"""
s_waitcnt vmcnt(6)
v_mov_b32 v17, {L_FLAG}
v_mov_b32 v18, 1
s_mov_b64 exec, 1
ds_add_u32 v17, v18
s_mov_b64 exec, -1
s_cmp_eq_u32 s{S_NB}, 0
s_cbranch_scc1 {name}_a_done
s_waitcnt lgkmcnt(0)
""")
    ds.q = []
    stamp(a, opt, 3)
    for tag, text in next_reads(0, 0): ds.op(tag, text)
    entry = list(ds.q)
    si = S_IDX[0]
    align(a, opt.get('ala'))
    a(f"{name}_a_loop:")
    for c in range(3):
        ds = DS(a, entry)
        pra = opt.get('prio', 3) == 1 or (opt.get('prio', 3) == 2 and c == 0)
        def big(tile, w, h): a(f"v_mfma_f32_32x32x16_bf16 {vr(tile,16)}, {vr(AA+4*h,4)}, {vr(w+4*h,4)}, {vr(tile,16) if h else 0}")
        def mul(tile, *ms):
            for m in ms:
                for i in range(2): a(f"v_mul_f32 v{tile+2*m+i}, v{tile+2*m+i}, v{SR[m]+i}")
        def cvt_t(*ms):
            for m in ms: a(f"v_cvt_pk_bf16_f32 v{TA0+2*m+1}, v{TA0+2*m}, v{TA0+2*m+1}")
        def cvt_u(*ms):
            for m in ms: a(f"v_cvt_pk_bf16_f32 v{TA0+2*m}, v{TA2+2*m}, v{TA2+2*m+1}")
        if opt.get('prio', 3) == 3 and 2*c in opt.get('pha', {0: 2, 4: 0}): young_prio(a, opt.get('pha', {0: 2, 4: 0})[2*c])
        ds.need("s3")
        big(TA0, TA2+8, 0)
        a(rowaddr(TA2+2, TA2+2))
        dma_s(TA2+2, (2*c+5) % 6, rowaddr(TA2+3, TA2+3))
        valid(a, 3)
        a(f"s_add_u32 m0, s{S_RING}, {2*c*1024}")
        big(TA0, TA2+8, 1)
        a(f"buffer_load_dwordx4 v{TA2+3}, {srd(SRD_X)}, s{S_VAL} offen lds\nv_bfi_b32 v{TA2+5}, 31, v0, v{TA2+5}")
        dma_e(a, TA2+5, RA_EA + 512*c)
        ds.need("ys", vm=6)
        assert not ds.q
        a(f"v_perm_b32 v{M2}, v{TA2+1}, v{TA2}, v{SELA}")
        big(TA2, WA, 0)
        a(f"s_lshl_b64 s[{si}:{si+1}], s[{S_LND}:{S_LND+1}], 2")
        ds.op(*sread(c, 4)); ds.op(*sread(c, 5))
        mul(TA0, 0, 1)
        big(TA2, WA, 1)
        a(f"s_lshl_b64 s[{si+2}:{si+3}], s[{S_LND+2}:{S_LND+3}], 2")
        ds.op(*sread(c, 6)); ds.op(*sread(c, 7))
        mul(TA0, 2, 3); cvt_t(0, 1, 2, 3)
        ds.need("s5")
        mul(TA0, 4, 5); mul(TA2, 0, 1, 2, 3)
        ds.need("s7")
        a(idload())
        cvt_u(0, 1, 2, 3)
        mul(TA0, 6, 7); mul(TA2, 4, 5)
        if pra:
            for l in prio_addr(TA2+6, TA2+7): a(l)
        cvt_t(4, 5, 6, 7)
        mul(TA2, 6, 7)
        cvt_u(4, 5, 6, 7)
        if opt.get('prio', 3) == 3 and 2*c+1 in opt.get('pha', {}): young_prio(a, opt['pha'][2*c+1])
        fill = ([prio_add(TA2+6, TA2+7)] if pra else []) + next_reads((c + 1) % 3, c+1)
        for e in range(16):
            a(f"s_set_gpr_idx_on s{si + 2*(e >> 3) + (e & 1)}, 0xc")
            if (e & 1) and (e & 7) != 7:
                q = si + 2*(e >> 3)
                a(f"s_lshr_b64 s[{q}:{q+1}], s[{q}:{q+1}], 8")
                if e == 1 or (pra and e == 3): ds.op(*fill.pop(0))
            else: ds.op(*fill.pop(0))
            a(f"v_mfma_f32_4x4x4_16b_bf16 {vr(ACA,4)}, {vr(M2,2)}, {vr(TA0+(e&14),2)}, {vr(ACA,4)} cbsz:4 abid:{e}")
        assert not fill
        a("s_set_gpr_idx_off")
        if pra:
            ds.need("pr")
            for l in prio_read(TA2+7) + prio_set(): a(l)
        if c == 2:
            a("v_add_u32 v2, 384, v2\nv_add_u32 v3, 384, v3\nv_add_u32 v4, 192, v4")
        a(f"s_sub_u32 s{S_REM}, s{S_REM}, 1\ns_cbranch_scc1 {name}_a_done")
        assert ds.q == entry, (ds.q, entry)
    a(f"s_branch {name}_a_loop\n{name}_a_done:")

def epilogue(a, name, opt):
    PA = ACA
    DT = ((224, 240), (192, 208), (74, 176), (192, 208))
    AOP, WOP, TMP, ROW = 8, 24, (56, 57, 58, 59), 60
    nt = opt.get('store_nt', ' sc1')
    young_prio(a, opt.get('phe', 0))
    a(f"""
s_waitcnt lgkmcnt(0)
v_mov_b32 v7, {L_FLAG}
v_lshrrev_b32 v16, 4, v0
v_mul_u32_u24 v1, 56, v16
v_add_u32 v1, s{S_RING}, v1
v_lshrrev_b32 v17, 5, v16
v_bfe_u32 v18, v16, 2, 2
v_lshl_add_u32 v18, v17, 3, v18
v_mul_u32_u24 v2, 56, v18
v_bfe_u32 v18, v16, 4, 1
v_lshl_add_u32 v2, v18, 5, v2
v_and_b32 v18, 3, v16
v_lshl_add_u32 v2, v18, 3, v2
v_add_u32 v2, s{S_RING}, v2
v_add_u32 v3, {L_RING + RA_WS}, v0
v_add_u32 v4, {L_RING + RA_WS + 5*RING}, v0
v_and_b32 v18, 31, v16
v_lshlrev_b32 v18, 2, v18
s_lshl_b32 s{S_T0}, s{S_SB}, 9
v_add_u32 v5, s{S_T0}, v18
s_lshl_b32 s{S_T0}, s{S_WAVE}, 5
v_lshl_add_u32 v6, v17, 2, s{S_T0}
s_add_u32 s{S_T2}, s{S_WBASE}, s{S_WCNT}
s_cmp_ge_u32 s{S_T2}, s{S_TOTAL}
s_cselect_b32 s{SRD_O+2}, {0 if opt.get('nostore') else XB}, 0
s_lshl_b32 s{S_T3}, s2, 3
s_add_u32 s{S_T3}, s{S_T3}, s{S_WAVE}
s_lshl_b32 s{S_T3}, s{S_T3}, 15
{name}_spin:
ds_read_b32 v17, v7
s_waitcnt lgkmcnt(0)
v_readfirstlane_b32 s{S_T0}, v17
s_cmp_lt_u32 s{S_T0}, 8
s_cbranch_scc1 {name}_spin
""")
    def ga(i): return (PA + 2 + 12*ORD_A.index(i), PA + (i >> 1), i & 1)
    def gb(i): return (PB + 12*ORD_B.index(i), PB + 84 + (i >> 1), i & 1)
    groups = [(gb(3), 1, 0), (ga(3), 0, 0)]
    for j in range(3): groups += [(ga(j), 2, j+1), (gb(4+j), 3, j+1), (gb(j), 4, j+1)]
    NG = len(groups)
    ds = DS(a)
    def writes(g):
        base, tail, hi = groups[g][0]
        off = (g & 1) * TILE
        return [(f"w{g}", f"ds_write_b64 v1, {vr(base+2*q,2)} offset:{off + 8*q}") for q in range(6)] + \
               [(f"w{g}", f"ds_write_b16{'_d16_hi' if hi else ''} v1, v{tail} offset:{off + 48}")]
    def aread(m):
        g, t = divmod(m, 4)
        return [(f"a{m}", f"ds_read_b64_tr_b16 {vr(AOP+4*t+2*j,2)}, v2 offset:{(g & 1)*TILE + (16*t+4*j)*56}") for j in range(2)]
    def wread(n):
        g, i = divmod(n, 8)
        w, k = divmod(groups[g][1]*8 + i, 5)
        v, o = (3, w*RING) if w < 5 else (4, (w-5)*RING)
        return (f"W{n}", f"ds_read_b128 {vr(WOP+4*(n&7),4)}, v{v} offset:{o + k*1024}")
    def fin(comp):
        D, G_ = DT[comp], DT[0]
        out = []
        for r in range(13):
            t = TMP[r & 3]
            if comp: out += [f"v_mul_f32 v{D[u]+r}, v{D[u]+r}, v{G_[u]+r}" for u in range(2)]
            out += [f"v_cvt_pk_bf16_f32 v{t}, v{D[0]+r}, v{D[1]+r}"]
            if not comp:
                out += [f"v_mul_f32 v{D[u]+r}, 0xbfb8aa3b, v{D[u]+r}" for u in range(2)]
                out += [f"v_exp_f32 v{D[u]+r}, v{D[u]+r}" for u in range(2)]
            out += [f"buffer_store_dword v{t}, v{ROW+r}, {srd(SRD_O)}, 0 offen offset:{128*comp}{nt}"]
            if not comp:
                out += [f"v_add_f32 v{D[u]+r}, 1.0, v{D[u]+r}" for u in range(2)]
                out += [f"v_rcp_f32 v{D[u]+r}, v{D[u]+r}" for u in range(2)]
        return out
    a("s_waitcnt vmcnt(0)")
    for op in writes(0) + aread(0) + [wread(0), wread(1)] + aread(1) + [wread(2), wread(3)]: ds.op(*op)
    pack(a, [(ga(i)[0] + p, ACA+8*p+i, ACA+8*p+4+i) for p in range(12) for i in range(4)]
            + [(PA+i, ACA+96+2*i, ACA+97+2*i) for i in range(2)], range(40, 68))
    side = []
    for m in range(4*NG):
        g, t = divmod(m, 4)
        comp = groups[g][2]
        first = (g == 0 or groups[g-1][2] != comp) and t == 0
        D = DT[comp]
        ops = []
        if g+1 < NG and t < 2: ops += writes(g+1)[4*t:4*t+4]
        if m+2 < 4*NG: ops += aread(m+2) + [wread(2*m+4), wread(2*m+5)]
        if m == 2: ops += [("row", f"ds_read_u8 v{ROW+r}, v6 offset:{L_INV + (r >> 2)*8 + (r & 3)}") for r in range(13)]
        if m == 6: side = [f"v_lshl_add_u32 v{ROW+r}, v{ROW+r}, 17, v5" for r in range(13)]
        ds.need(f"a{m}", f"W{2*m+1}")
        for u in range(2):
            a(f"v_mfma_f32_32x32x16_bf16 {vr(D[u],16)}, {vr(AOP+4*t,4)}, {vr(WOP+4*((2*m+u)&7),4)}, {0 if first else vr(D[u],16)}")
            k = (len(ops) + 1 - u) // (2 - u)
            for op in ops[:k]: ds.op(*op)
            ops = ops[k:]
            if not first:
                for l in side[:opt.get('side', 6)]: a(l)
                side = side[opt.get('side', 6):]
        if t == 3 and (g+1 == NG or groups[g+1][2] != comp):
            for l in side: a(l)
            a(f"s_cmp_lg_u32 s{S_TOTAL}, s{S_WCNT}\ns_cbranch_scc1 {name}_multi{comp}\n{name}_fin{comp}:")
            side = fin(comp)
    a("s_nop 9")
    for l in side: a(l)
    a(f"{name}_next3:")
    stamp(a, opt, 5)
    stamps_out(a, opt)
    a(f"""
s_cmp_ge_u32 s{S_T2}, s{S_TOTAL}
s_cbranch_scc1 {name}_end
s_mov_b32 s{S_WBASE}, s{S_T2}
s_setprio 0
s_waitcnt vmcnt(0) lgkmcnt(0)
s_barrier
s_branch {name}_window
""")
    for comp in range(4):
        D = DT[comp]
        a(f"""
{name}_multi{comp}:
s_nop 15
v_lshrrev_b32 v7, 2, v0
s_add_u32 s{S_T0}, s{S_T3}, {comp*8192}
s_add_u32 s{S_T1}, s{S_T0}, 4096
s_cmp_eq_u32 s{S_WBASE}, 0
s_cbranch_scc1 {name}_mst{comp}
""")
        for u in range(2):
            for r in range(13):
                a(f"buffer_load_dword v{TMP[0]}, v7, {srd(SRD_S)}, s{S_T0+u} offen offset:{256*r} sc1\ns_waitcnt vmcnt(0)\nv_add_f32 v{D[u]+r}, v{D[u]+r}, v{TMP[0]}")
        a(f"{name}_mst{comp}:")
        for u in range(2):
            for r in range(13):
                a(f"buffer_store_dword v{D[u]+r}, v7, {srd(SRD_S)}, s{S_T0+u} offen offset:{256*r}")
        a(f"s_waitcnt vmcnt(0)\ns_branch {name}_fin{comp}")
    a(f"{name}_end:\ns_endpgm")

def dump_regs(a):
    a("s_waitcnt vmcnt(0) lgkmcnt(0)\ns_nop 15")
    a.srd(96, 76, 128 << 20, 64 << 20)
    a(f"""
v_lshrrev_b32 v0, 2, v0
s_lshl_b32 s{S_T0}, s2, 3
s_add_u32 s{S_T0}, s{S_T0}, s{S_WAVE}
s_lshl_b32 s{S_T0}, s{S_T0}, 16
v_mov_b32 v1, s{S_START}
v_mov_b32 v2, s{S_NB}
""")
    for r in range(256):
        a(f"buffer_store_dword v{r}, v0, s[96:99], s{S_T0} offen\ns_add_u32 s{S_T0}, s{S_T0}, 256")
    a("s_endpgm")

def dump_lds(a):
    a("s_waitcnt vmcnt(0) lgkmcnt(0)\ns_barrier")
    a.srd(96, 76, 16 << 20, 200 << 20)
    a(f"""
s_lshl_b32 s{S_T0}, s2, 16
s_lshl_b32 s{S_T1}, s{S_WAVE}, 13
v_add_u32 v21, s{S_T1}, v0
""")
    for j in range(8):
        a(f"ds_read_b128 v[24:27], v21\ns_waitcnt lgkmcnt(0)\nbuffer_store_dwordx4 v[24:27], v21, s[96:99], s{S_T0} offen\ns_waitcnt vmcnt(0)\nv_add_u32 v21, 1024, v21")

def stamp(a, opt, i, grp=0):
    if opt.get('stamps') == 3:
        lo = opt.get('seg', 1)
        if grp == 0 and i in (lo, lo+1):
            a(f"s_memrealtime s[100:101]\ns_waitcnt lgkmcnt(0)\ns_mov_b32 s{93+i-lo}, s100\ns_memtime s[100:101]\ns_waitcnt lgkmcnt(0)\ns_mov_b32 s{95+i-lo}, s100")
        return
    if opt.get('stamps') and (i in (0, 6) or grp == opt.get('grp', 0)):
        a(f"{'s_memtime' if opt['stamps'] == 2 else 's_memrealtime'} s[100:101]\ns_waitcnt lgkmcnt(0)\ns_mov_b32 s{93+i}, s100")

def stamps_out(a, opt):
    if opt.get('stamps'):
        a("s_waitcnt vmcnt(0)")
        stamp(a, opt, 6)
        a.srd(SRD_S, 76, 1 << 20, 240 << 20)
        a(f"s_lshl_b32 s{S_T0}, s2, 3\ns_add_u32 s{S_T0}, s{S_T0}, s{S_WAVE}\ns_lshl_b32 s{S_T0}, s{S_T0}, 5\nv_mov_b32 v0, 0")
        for i in range(7):
            a(f"v_mov_b32 v1, s{93+i}\nbuffer_store_dword v1, v0, {srd(SRD_S)}, s{S_T0} offen offset:{4*i}")
        if opt.get('vmstat'): a(f"s_mov_b32 s{S_NB}, s89")
        if opt.get('xcc'): a(f"s_getreg_b32 s{S_NB}, hwreg(HW_REG_XCC_ID)")
        a(f"v_mov_b32 v1, s{S_NB}\nbuffer_store_dword v1, v0, {srd(SRD_S)}, s{S_T0} offen offset:28\ns_endpgm")

def gen_k2(name, **opt):
    a = Asm()
    prologue(a, name, opt)
    if opt.get('dump'): dump_lds(a)
    pass_b(a, name, opt)
    if opt.get('dump') == 'b': dump_regs(a)
    stamp(a, opt, 2)
    pass_a(a, name, opt)
    if opt.get('dump') == 'a': dump_regs(a)
    stamp(a, opt, 4)
    epilogue(a, name, opt)
    if opt.get('drope'):
        import re
        lo = a.lines.index(f"{name}_spin:") + 6; hi = a.lines.index(f"{name}_next3:")
        a.lines[lo:hi] = [l for l in a.lines[lo:hi] if not re.search(opt['drope'], l)]
    for key, ps in (('drop', 'b'), ('dropa', 'a')):
        if opt.get(key):
            import re
            lo = a.lines.index(f"{name}_{ps}_loop:"); hi = a.lines.index(f"{name}_{ps}_done:")
            a.lines[lo:hi] = [('    s_nop 0' if re.search(opt[key], l) else l) for l in a.lines[lo:hi]]
    return a.text()
```

```python
from common import *

NSLOT = 3704
CAPW = NSLOT - 120
L_WR = 0
L_MT = 10240
L_FLAG = L_MT + 128
L_INV = L_MT + 256
L_YS = L_INV + 256
L_PT = L_YS + NSLOT * 8
L_RING = 56320
RING = 13440
LINE = 4160
RB_EA = 12416
RA_EA = 6144
RA_WS = 7680
TILE = 3584
K2_LDS = L_RING + 8 * RING
assert L_PT + NSLOT * 4 <= L_RING and CAPW <= 7 * 512 and K2_LDS == 163840
L_HIST = L_RING
L_DEG = L_HIST + 1024
L_BASE = L_DEG + 1024
L_MAP = L_BASE + 1024
L_CNT = L_MAP + 1024
L_WTOT = L_CNT + 256
L_IDXL = L_WTOT + 64
OOB = 0x40000
XB, EB = N * 512, E * 32

S_WAVE, S_SB, S_RING, S_WBASE, S_TOTAL, S_WCNT, S_START, S_NB, S_REM = 3, 32, 33, 34, 35, 36, 37, 38, 39
SRD_X, SRD_E, SRD_T, SRD_O, SRD_W, SRD_M, SRD_S = 4, 8, 12, 16, 20, 24, 28
S_IDX = (40, 44)
S_T0, S_T1, S_T2, S_T3 = 48, 49, 50, 51
S_MASK = 52
S_VAL, S_ADV, S_HALF, S_ROT = 80, 81, 82, 83
SRD_K = 84
SRD_I = 88
S_LND, S_IOF, S_512, S_IBASE = 44, 92, 78, 70
S_VON, S_VOFF, S_PADDR, S_PINC, S_PSGN, S_PVAL, S_PF, S_PFO = 68, 69, 70, 71, 66, 67, 78, 79

def srd(d): return f"s[{d}:{d+3}]"
def vr(b, n): return f"v[{b}:{b+n-1}]"

class DS:
    def __init__(self, a, init=()):
        self.a, self.q = a, list(init)
    def op(self, tag, text):
        self.a(text); self.q.append(tag)
    def need(self, *tags, vm=None):
        idx = [i for i, t in enumerate(self.q) if t in tags]
        if not idx:
            if vm is not None: self.a(f"s_waitcnt vmcnt({vm})")
            return False
        n = len(self.q) - 1 - max(idx)
        self.a(f"s_waitcnt {'' if vm is None else 'vmcnt(%d) ' % vm}lgkmcnt({min(n, 15)})")
        self.q = self.q[len(self.q) - min(n, 15):] if n else []
        return True
    def drain(self):
        if self.q: self.a("s_waitcnt lgkmcnt(0)")
        self.q = []

def rho(v_dst, v_e, tmp):
    return f"""
v_bfe_u32 v{v_dst}, v{v_e}, 1, 2
v_and_b32 v{tmp}, 1, v{v_e}
v_lshl_or_b32 v{v_dst}, v{tmp}, 2, v{v_dst}
v_and_or_b32 v{v_dst}, v{v_e}, 8, v{v_dst}
"""

def prologue(a, name, opt):
    a(f"""
{name}:
s_cmp_ge_u32 s2, 256
s_cbranch_scc1 {name}_end
""")
    stamp(a, opt, 1, 5)
    a(f"""
s_load_dwordx2 s[72:73], s[0:1], {KA_X}
s_load_dwordx2 s[74:75], s[0:1], {KA_OUT}
s_load_dwordx2 s[76:77], s[0:1], {KA_WS}
v_lshrrev_b32 v1, 6, v0
s_and_b32 s{S_SB}, s2, 7
v_readfirstlane_b32 s{S_WAVE}, v1
s_lshl_b32 s{S_SB}, s{S_SB}, 5
s_lshr_b32 s{S_T0}, s2, 3
s_add_u32 s{S_SB}, s{S_SB}, s{S_T0}
s_mul_i32 s{S_RING}, s{S_WAVE}, {RING}
s_add_u32 s{S_RING}, s{S_RING}, {L_RING}
s_mov_b32 s{S_VON}, {0x80000000 if opt.get('nomem') else 0}
s_mov_b32 s{S_VOFF}, 0x80000000
s_mov_b32 s{S_WBASE}, 0
s_waitcnt lgkmcnt(0)
""")
    stamp(a, opt, 0)
    a.srd(SRD_T, 76, NCH * 1024, WS_TAB)
    a(f"""
{name}_window:
v_mbcnt_lo_u32_b32 v16, -1, 0
v_mbcnt_hi_u32_b32 v16, -1, v16
v_lshlrev_b32 v0, 4, v16
s_lshl_b32 s{S_T0}, s{S_WAVE}, 6
v_add_u32 v17, s{S_T0}, v16
v_lshrrev_b32 v26, 1, v17
v_lshlrev_b32 v19, 10, v26
s_lshl_b32 s{S_T1}, s{S_SB}, 2
buffer_load_dword v27, v19, {srd(SRD_T)}, s{S_T1} offen
v_mov_b32 v21, 0
""")
    a.srd(SRD_X, 72, XB)
    a.srd(SRD_E, 76, EB, WS_EAS)
    a.srd(SRD_O, 74, XB)
    a.srd(SRD_W, 76, 51200, WS_WR)
    a.srd(SRD_M, 76, E * 8, WS_META)
    a.srd(SRD_K, 76, E * 4, WS_KEY)
    a.srd(SRD_S, 76, 256 * 8 * 128 * 256, WS_SCR)
    a.srd(SRD_I, 76, 256 * 8192, WS_ID)
    mt = [0x05040c0c, 0x03020c0c, 0x80000000, 0,
              0x0c0c0504, 0x01000c0c, 0x8000, 0,
              0x01000302, 0x0c0c0c0c, 0x8000, 0,
              0x03020100, 0x05040c0c, 0, 0,
              0x0c0c0100, 0, 0x0c0c0302, 0, 0x0c0c0504, 0, 0x0c0c0c0c, 0x3f80,
              0x01000c0c, 0, 0x03020c0c, 0, 0x05040c0c, 0, 0x0c0c0c0c, 0x3f800000]
    a(f"""
v_lshlrev_b32 v22, 2, v17
ds_write_b32 v22, v21 offset:{L_HIST}
v_lshlrev_b32 v22, 2, v16
v_mov_b32 v23, -1
v_mov_b32 v63, v17
s_cmp_lg_u32 s{S_WAVE}, 7
s_cbranch_scc1 {name}_nomt
ds_write_b32 v22, v21 offset:{L_CNT}
ds_write_b32 v22, v23 offset:{L_INV}
""")
    for i, c in enumerate(mt):
        if c: a(f"s_mov_b32 s{S_T1}, {c:#x}\nv_writelane_b32 v21, s{S_T1}, {i}")
    a(f"""
ds_write_b32 v22, v21 offset:{L_MT}
{name}_nomt:
""")
    lane_consts_b(a)
    npf0, npf = opt.get('pf0', 1), opt.get('prefetch', 1)
    a(f"""
s_getreg_b32 s{S_ROT}, hwreg(HW_REG_XCC_ID, 0, 3)
s_mul_i32 s{S_ROT}, s{S_ROT}, {opt.get('rot', 25)}
s_add_u32 s{S_ROT}, s{S_ROT}, 8
s_lshr_b32 s{S_ROT}, s{S_ROT}, 4
s_lshr_b32 s{S_PFO}, s2, 3
s_lshl_b32 s{S_PFO}, s{S_PFO}, 15
s_lshl_b32 s{S_T0}, s{S_ROT}, 21
s_add_u32 s{S_PFO}, s{S_PFO}, s{S_T0}
s_sub_u32 s{S_ROT}, 16, s{S_ROT}
s_lshl_b32 s{S_ROT}, s{S_ROT}, 12
v_lshrrev_b32 v8, 3, v63
v_and_b32 v9, 3, v63
v_max_u32 v9, 1, v9
v_lshlrev_b32 v9, 7, v9
v_lshl_add_u32 v8, v8, 9, v9
s_waitcnt vmcnt(0)
""")
    stamp(a, opt, 1, 1)
    def warm(n):
        for _ in range(n): a(f"buffer_load_dword v9, v8, {srd(SRD_X)}, s{S_PFO} offen\ns_add_u32 s{S_PFO}, s{S_PFO}, {1 << 20}")
    warm(npf0)
    if opt.get('tlb'):
        a(f"v_lshlrev_b32 v15, {opt['tlb']}, v63\nbuffer_load_dword v9, v15, {srd(SRD_E)}, 0 offen\nbuffer_load_dword v9, v15, {srd(SRD_X)}, 0 offen")
    a(f"""
s_lshl_b32 s{S_T1}, s{S_WAVE}, 10
s_mov_b32 m0, s{S_T1}
s_and_b32 s{S_T2}, s{S_T1}, 1024
buffer_load_dwordx4 v0, {srd(SRD_W)}, s{S_T1} offen lds
s_add_u32 s{S_T2}, s{S_T2}, 8192
s_mov_b32 m0, s{S_T2}
s_nop 0
buffer_load_dwordx4 v0, {srd(SRD_W)}, s{S_T2} offen lds
v_lshrrev_b32 v21, 16, v27
v_and_b32 v20, 0xffff, v27
v_and_b32 v23, 1, v16
v_cmp_eq_u32 vcc, 0, v23
s_nop 1
v_cndmask_b32 v22, 0, v21, vcc
""")
    a.scan64(22)
    a(f"""
s_nop 0
v_readlane_b32 s{S_T0}, v22, 63
s_lshl_b32 s{S_T1}, s{S_WAVE}, 2
s_add_u32 s{S_T1}, s{S_T1}, {L_WTOT}
v_mov_b32 v24, s{S_T1}
v_mov_b32 v25, s{S_T0}
ds_write_b32 v24, v25
v_and_b32 v24, 7, v16
v_lshlrev_b32 v24, 2, v24
v_add_u32 v24, {L_WTOT}, v24
v_sub_u32 v22, v22, v21
v_mul_u32_u24 v18, {CH}, v26
v_add_u32 v20, v20, v18
s_waitcnt lgkmcnt(0)
s_barrier
ds_read_b32 v25, v24
s_waitcnt lgkmcnt(0)
""")
    for sh in (1, 2, 4):
        a(f"s_nop 1\nv_add_u32_dpp v25, v25, v25 row_shr:{sh} row_mask:0xf bank_mask:0xf bound_ctrl:0")
    a(f"""
s_nop 0
v_readlane_b32 s{S_TOTAL}, v25, 7
v_readlane_b32 s{S_T1}, v25, s{S_WAVE}
s_sub_u32 s{S_T1}, s{S_T1}, s{S_T0}
s_sub_u32 s{S_T1}, s{S_T1}, s{S_WBASE}
s_sub_u32 s{S_WCNT}, s{S_TOTAL}, s{S_WBASE}
s_min_u32 s{S_WCNT}, s{S_WCNT}, {CAPW}
v_add_u32 v22, s{S_T1}, v22
v_sub_u32 v24, 0, v22
v_max_i32 v24, 0, v24
v_sub_u32 v25, {CAPW}, v22
v_min_i32 v25, v25, v21
v_add_u32 v24, v24, v23
v_sub_u32 v20, v20, v22
v_sub_u32 v25, v25, v24
v_add_lshl_u32 v22, v22, v24, 2
{name}_expand:
""")
    for k in range(8):
        a(f"v_cmpx_lt_i32 vcc, {2*k}, v25")
        if k in (0, 4): a(f"s_cbranch_execz {name}_expanded")
        a(f"ds_write_b32 v22, v20 offset:{L_IDXL + 8*k}")
    a(f"""
v_add_u32 v22, 64, v22
v_subrev_u32 v25, 16, v25
s_branch {name}_expand
{name}_expanded:
s_mov_b64 exec, -1
v_lshlrev_b32 v22, 2, v63
v_add_u32 v22, {L_IDXL}, v22
""")
    REC, RK, BA, PAD = 24, 56, 64, 72
    for j in range(7):
        a(f"v_add_u32 v{BA+j}, {512*j}, v63\nv_cmp_gt_u32 s[{S_MASK+2*j}:{S_MASK+2*j+1}], s{S_WCNT}, v{BA+j}")
    a("v_bfrev_b32 v23, 2")
    a("s_waitcnt lgkmcnt(0)\ns_barrier")
    stamp(a, opt, 2, 1)
    def pay(js):
        for j in js: a(f"buffer_load_dwordx2 {vr(REC+4*j,2)}, v{PAD+j}, {srd(SRD_M)}, 0 offen")
    for j in range(7): a(f"ds_read_b32 v{RK+j}, v22 offset:{2048*j}")
    for j in range(7):
        a(f"""
s_waitcnt lgkmcnt({6-j})
v_add_lshl_u32 v{RK+j}, v{RK+j}, v{BA+j}, 2
v_cndmask_b32 v{RK+j}, v23, v{RK+j}, s[{S_MASK+2*j}:{S_MASK+2*j+1}]
buffer_load_dword v{REC+4*j+2}, v{RK+j}, {srd(SRD_K)}, 0 offen
""")
    stamp(a, opt, 1, 3)
    for j in range(7): a(f"v_lshlrev_b32 v{PAD+j}, 1, v{RK+j}")
    a(f"v_and_b32 v17, 48, v0\nds_read_b128 {vr(MT,4)}, v17 offset:{L_MT}")
    zero(a, ACC, opt.get('z0', 180))
    def mask(j): return f"s_mov_b64 exec, s[{S_MASK+2*j}:{S_MASK+2*j+1}]"
    a("; ---- node degrees; nodes are ranked by degree and dealt to the waves in snake order\nv_mov_b32 v23, 1")
    for j in range(7):
        a(f"""
s_waitcnt vmcnt({6-j})
v_bfe_u32 v{BA+j}, v{REC+4*j+2}, 16, 8
{mask(j)}
v_lshlrev_b32 v{BA+j}, 2, v{BA+j}
v_add_u32 v{RK+j}, s{S_ROT}, v{REC+4*j+2}
ds_add_u32 v{BA+j}, v23 offset:{L_DEG}
v_bfe_u32 v{RK+j}, v{RK+j}, 11, 5
v_lshlrev_b32 v{RK+j}, 2, v{RK+j}
""")
        if j == 0: stamp(a, opt, 2, 3)
        if j == 6: stamp(a, opt, 3, 3)
    a("s_mov_b64 exec, -1")
    stamp(a, opt, 4, 3)
    a(f"""
v_lshlrev_b32 v22, 2, v63
v_cmp_gt_u32 vcc, 200, v63
s_waitcnt lgkmcnt(0)
s_barrier
""")
    stamp(a, opt, 1, 2)
    stamp(a, opt, 5, 3)
    a(f"s_cmp_lt_u32 s{S_WAVE}, 4\ns_cbranch_scc1 {name}_rank")
    pay(range(4))
    a("s_barrier")
    pay(range(4, 7))
    a(f"s_branch {name}_nomap\n{name}_rank:")
    a(f"""
s_and_b64 exec, exec, vcc
ds_read_b32 v21, v22 offset:{L_DEG}
s_waitcnt lgkmcnt(0)
v_min_u32 v21, 63, v21
v_sub_u32 v21, 63, v21
v_lshlrev_b32 v21, 2, v21
ds_add_rtn_u32 v20, v21, v23 offset:{L_CNT}
s_mov_b64 exec, -1
v_lshlrev_b32 v19, 2, v16
s_waitcnt lgkmcnt(0)
s_barrier
""")
    stamp(a, opt, 2, 2)
    a(f"""
ds_read_b32 v18, v19 offset:{L_CNT}
s_waitcnt lgkmcnt(0)
v_mov_b32 v19, v18
""")
    a.scan64(19)
    a(f"""
v_sub_u32 v19, v19, v18
ds_bpermute_b32 v19, v21, v19
s_cmp_lg_u32 s{S_TOTAL}, s{S_WCNT}
s_cselect_b64 s[{S_T2}:{S_T3}], -1, 0
s_and_b64 exec, exec, vcc
s_waitcnt lgkmcnt(0)
v_add_u32 v19, v19, v20
v_cndmask_b32 v19, v19, v63, s[{S_T2}:{S_T3}]
v_lshrrev_b32 v18, 3, v19
v_bfe_i32 v20, v19, 3, 1
v_xor_b32 v19, v19, v20
v_and_b32 v19, 7, v19
v_lshl_add_u32 v20, v19, 5, v18
ds_write_b8 v20, v63 offset:{L_INV}
v_lshl_or_b32 v18, v19, 23, v18
ds_write_b32 v22, v18 offset:{L_MAP}
s_mov_b64 exec, -1
{name}_nomap:
""")
    a("s_waitcnt lgkmcnt(0)\ns_barrier")
    stamp(a, opt, 3, 2)
    for j in range(7): a(f"ds_read_b32 v{REC+4*j+3}, v{BA+j} offset:{L_MAP}")
    a(f"s_cmp_ge_u32 s{S_WAVE}, 4\ns_cbranch_scc1 {name}_nopay1")
    pay(range(3))
    a(f"{name}_nopay1:\ns_waitcnt lgkmcnt(0)")
    for j in range(7):
        a(f"v_add_u32_sdwa v{BA+j}, v{RK+j}, v{REC+4*j+3} dst_sel:DWORD dst_unused:UNUSED_PAD src0_sel:DWORD src1_sel:WORD_1")
    for j in range(7): a(f"{mask(j)}\nds_add_rtn_u32 v{RK+j}, v{BA+j}, v23 offset:{L_HIST}")
    a(f"s_mov_b64 exec, -1\ns_cbranch_scc1 {name}_nopay2")
    pay(range(3, 7))
    a(f"{name}_nopay2:")
    stamp(a, opt, 3, 1)
    a(f"""
s_waitcnt lgkmcnt(0)
s_barrier
""")
    stamp(a, opt, 4, 2)
    stamp(a, opt, 1, 6)
    a(f"""
ds_read_b128 v[72:75], v0 offset:{L_HIST}
""")
    warm(npf)
    a(f"""
s_waitcnt lgkmcnt(0)
v_add_u32 v77, v72, v73
v_add_u32 v78, v77, v74
v_add_u32 v79, v78, v75
v_mov_b32 v71, v79
""")
    for sh in (1, 2, 4):
        a(f"s_nop 1\nv_add_u32_dpp v71, v71, v71 row_shr:{sh} row_mask:0xf bank_mask:0xf bound_ctrl:0")
    a(f"""
v_and_b32 v23, 7, v16
v_cmp_eq_u32 vcc, 7, v23
v_sub_u32 v76, 0, v71
v_and_b32 v76, 15, v76
v_cndmask_b32 v76, 0, v76, vcc
v_add_u32 v79, v79, v76
v_mov_b32 v76, v79
""")
    a.scan64(76)
    a(f"""
v_sub_u32 v76, v76, v79
v_add_u32 v79, v76, v78
v_add_u32 v78, v76, v77
v_add_u32 v77, v76, v72
ds_write_b128 v0, v[76:79] offset:{L_BASE}
s_lshl_b32 s{S_T0}, s{S_WAVE}, 3
s_add_u32 s{S_T1}, s{S_T0}, 7
v_readlane_b32 s{S_START}, v76, s{S_T0}
v_readlane_b32 s{S_T2}, v71, s{S_T1}
""")
    for j in range(7): a(f"ds_read_b32 v{BA+j}, v{BA+j} offset:{L_BASE}")
    a(f"""
s_add_u32 s{S_NB}, s{S_T2}, 15
s_lshr_b32 s{S_NB}, s{S_NB}, 4
s_lshl_b32 s{S_T3}, s{S_NB}, 4
s_sub_u32 s{S_HALF}, s{S_T3}, s{S_T2}
s_cmp_ge_u32 s{S_HALF}, 8
s_cselect_b32 s{S_HALF}, 0, -2
s_mov_b32 s{S_ADV}, 0
{'s_mov_b32 s89, 0' if opt.get('vmstat') else ''}
v_add_u32 v23, s{S_T2}, v16
v_cmp_gt_u32 vcc, s{S_T3}, v23
v_add_u32 v23, s{S_START}, v23
v_mov_b32 v18, 0
v_mov_b32 v19, 0xffff0000
v_mov_b32 v20, 0x1fffffe0
v_lshlrev_b32 v21, 3, v23
v_lshlrev_b32 v22, 2, v23
s_and_b64 exec, exec, vcc
ds_write_b64 v21, v[18:19] offset:{L_YS}
ds_write_b32 v22, v20 offset:{L_PT}
s_mov_b64 exec, -1
s_waitcnt lgkmcnt(0)
""")
    stamp(a, opt, 5, 2)
    stamp(a, opt, 2, 6)
    a(f"s_mov_b32 s{S_T0}, 0x0c070302\ns_mov_b32 s{S_T1}, 0x05040100\ns_waitcnt vmcnt({npf})")
    stamp(a, opt, 3, 6)
    for j in range(7):
        a(f"""
{mask(j)}
v_perm_b32 v20, v{REC+4*j+2}, v{REC+4*j+1}, s{S_T0}
v_perm_b32 v{REC+4*j+1}, v{REC+4*j+2}, v{REC+4*j+1}, s{S_T1}
v_lshlrev_b32 v20, 5, v20
v_add_lshl_u32 v21, v{BA+j}, v{RK+j}, 3
v_add_lshl_u32 v22, v{BA+j}, v{RK+j}, 2
v_and_or_b32 v{REC+4*j+2}, v{REC+4*j+3}, 31, v20
ds_write_b64 v21, {vr(REC+4*j,2)} offset:{L_YS}
ds_write_b32 v22, v{REC+4*j+2} offset:{L_PT}
""")
    a("s_mov_b64 exec, -1")
    stamp(a, opt, 4, 6)

def list_lanes(a):
    a("v_lshrrev_b32 v17, 3, v16")
    a(rho(2, 17, 18))
    a("v_lshrrev_b32 v17, 2, v16")
    a(rho(3, 17, 18))
    a("v_bfe_u32 v17, v16, 1, 4")
    a(rho(4, 17, 18))
    a("v_and_b32 v14, 0x70, v0")

def list_addrs(a):
    a(f"""
v_add_lshl_u32 v2, v2, s{S_START}, 3
v_add_u32 v2, {L_YS + 4}, v2
v_add_lshl_u32 v3, v3, s{S_START}, 3
v_add_lshl_u32 v4, v4, s{S_START}, 2
""")

def ea_addrs(a, v_a0, v_a1, ring_off):
    a(f"""
v_bfe_u32 v17, v16, 3, 2
v_and_b32 v18, 3, v16
v_lshl_or_b32 v17, v17, 2, v18
v_lshlrev_b32 v17, 5, v17
v_lshrrev_b32 v18, 5, v16
v_lshl_or_b32 v17, v18, 4, v17
v_bfe_u32 v18, v16, 2, 1
v_mul_u32_u24 v18, {OOB + 16}, v18
v_xor_b32 v17, v18, v17
s_add_u32 s{S_T0}, s{S_RING}, {ring_off}
v_add_u32 v{v_a0}, s{S_T0}, v17
v_xor_b32 v17, {OOB + 16}, v17
v_add_u32 v{v_a1}, s{S_T0}, v17
""")

def valid(a, k):
    a(f"""
s_cmp_ge_i32 s{S_REM}, {k}
s_cselect_b32 s{S_VAL}, s{S_VON}, s{S_VOFF}
""")

def dma_e(a, v, off, restore=True):
    a(f"""
s_add_u32 m0, s{S_RING}, {off}
s_mov_b32 exec_hi, 0
buffer_load_dwordx4 v{v}, {srd(SRD_E)}, s{S_VAL} offen lds
""")
    if restore: a("s_mov_b32 exec_hi, -1")

def zero(a, lo, hi):
    if lo & 1 and lo < hi: a(f"v_mov_b32 v{lo}, 0"); lo += 1
    for r in range(lo, hi, 2): a(f"v_mov_b64 {vr(r,2)}, 0")

def align(a, k):
    if k is None: return
    a(".p2alignl 5, 0xbf800000")
    for _ in range(k): a("s_nop 0")

def idload(): return f"s_buffer_load_dwordx4 s[{S_LND}:{S_LND+3}], {srd(SRD_I)}, s{S_IOF}\ns_add_u32 s{S_IOF}, s{S_IOF}, 16"
def rowaddr(d, w): return f"v_mad_u32_u16 v{d}, v{w}, s{S_512}, v14 op_sel:[1,0,0,0]"

def prio_init(a):
    a(f"""
s_max_u32 s{S_T0}, s{S_NB}, 1
v_cvt_f32_u32 v17, s{S_T0}
v_rcp_f32 v17, v17
s_and_b32 s{S_PADDR}, s{S_WAVE}, 3
s_lshl_b32 s{S_PADDR}, s{S_PADDR}, 2
v_mul_f32 v17, 0x47800000, v17
s_add_u32 s{S_PADDR}, s{S_PADDR}, {L_FLAG + 16}
v_cvt_u32_f32 v17, v17
s_cmp_ge_u32 s{S_WAVE}, 4
s_cselect_b32 s{S_PSGN}, -1, 1
v_readfirstlane_b32 s{S_PINC}, v17
s_mul_i32 s{S_PINC}, s{S_PINC}, s{S_PSGN}
s_mov_b32 s{S_PVAL}, 0
""")
def young_prio(a, lvl): a(f"s_setprio 1\ns_cmp_lt_u32 s{S_WAVE}, 4\ns_cbranch_scc1 1\ns_setprio {lvl}")
def prio_addr(va, vd): return [f"v_lshl_add_u32 v{va}, v0, 14, s{S_PADDR}", f"v_mov_b32 v{vd}, s{S_PINC}"]
def prio_add(va, vd): return ("pr", f"ds_add_rtn_u32 v{vd}, v{va}, v{vd}")
def prio_read(vd): return [f"v_readfirstlane_b32 s{S_PVAL}, v{vd}", f"s_mul_i32 s{S_PVAL}, s{S_PVAL}, s{S_PSGN}"]
def prio_set(base=0):
    return [f"s_cmp_ge_i32 s{S_PVAL}, 0", f"s_setprio {base}", "s_cbranch_scc1 1", f"s_setprio {base+1}"]

M3, M1, XR, G, T1, T2, T3, ACC = 6, 8, (10, 12), (16, 24), 32, 48, 64, 81

def dma_x(a, v, slot, fill):
    for b in range(3):
        a(f"s_add_u32 m0, s{S_RING}, {b*LINE + slot*1024 - 128*(b+1)}")
        a(fill[b] if b < len(fill) else "s_nop 0")
        a(f"buffer_load_dwordx4 v{v}, {srd(SRD_X)}, s{S_VAL} offen offset:{128*(b+1)} lds")

GG, XX, MT, EC = 16, (20, 24, 28), 10, 7

def lane_consts_b(a):
    list_lanes(a)
    ea_addrs(a, 5, 80, RB_EA)
    a(f"""
v_lshrrev_b32 v18, 4, v16
v_lshlrev_b32 v17, 5, v18
v_and_b32 v18, 3, v16
v_lshl_add_u32 v17, v18, 3, v17
v_add_u32 v17, s{S_RING}, v17
v_bfe_u32 v18, v16, 2, 2
v_min_u32 v19, 2, v18
v_mul_u32_u24 v19, {LINE}, v19
v_cmp_eq_u32 vcc, 2, v18
v_mov_b32 v20, {OOB + 192}
v_bfe_u32 v21, v16, 3, 1
v_cndmask_b32 v19, v19, v20, vcc
v_add_u32 v1, v17, v19
v_and_b32 v18, 1, v18
v_cmp_eq_u32 vcc, 0, v18
v_mul_u32_u24 v21, {LINE}, v21
s_nop 0
v_cndmask_b32 v21, v21, v20, vcc
v_add_u32 v6, v17, v21
""")

def pass_b(a, name, opt):
    si = S_IDX[0]
    prio = opt.get('prio', 3)
    VM = opt.get('vm', (11, 7))
    PHB = opt.get('phb', {0: 2, 20: 0, 32: 2, 52: 0})
    def xread(ds, p, e):
        o = ((2*p + (e >> 3)) & 3)*1024 + (e & 7)*128
        ds.op(f"x{e}", f"ds_read_b64_tr_b16 {vr(XX[e%3],2)}, v1 offset:{o}")
        ds.op(f"x{e}", f"ds_read_b64_tr_b16 {vr(XX[e%3]+2,2)}, v6 offset:{o}")
    def wr(tag, dst, path, h): return (f"{tag}{h}", f"ds_read_b128 {vr(dst,4)}, v0 offset:{L_WR + (path*2+h)*1024}")
    W1 = [wr("W1", T3+4*h, 3, h) for h in range(2)]
    W2 = [wr("W2", T3+8+4*h, 4, h) for h in range(2)]
    W3 = [wr("W3", (XX[0], GG)[h], 1, h) for h in range(2)]
    AR = (XX[1], XX[2])
    def ar(p, h): return (f"A{h}", f"ds_read_b128 {vr(AR[h],4)}, v{(5, 80)[h]} offset:{p*512}")
    def tail_reads(off):
        return [("ys", f"ds_read_b64 {vr(T2,2)}, v3 offset:{L_YS + 128*off}"),
                ("pt", f"ds_read_b32 v{T2+3}, v4 offset:{L_PT + 64*(off+2)}"),
                ("sr", f"ds_read2_b32 v[12:13], v2 offset0:{32*off + 48} offset1:{32*off + 64}")]
    if opt.get('solo'): a(f"s_cmp_ge_u32 s{S_WAVE}, 4\ns_cselect_b32 s{S_NB}, 0, s{S_NB}")
    if prio in (1, 2):
        prio_init(a)
        a(prio_addr(7, 0)[0])
    list_addrs(a)
    a(f"""
v_mov_b32 v7, v{MT+2}
s_movk_i32 s{S_512}, 512
s_lshl_b32 s{S_T0}, s2, 7
s_add_u32 s{S_T0}, s{S_T0}, s{S_WAVE}
s_add_u32 s{S_IBASE}, s{S_START}, 63
s_lshr_b32 s{S_IBASE}, s{S_IBASE}, 6
s_add_u32 s{S_IBASE}, s{S_IBASE}, s{S_T0}
s_lshl_b32 s{S_IBASE}, s{S_IBASE}, 6
s_add_u32 s{S_IOF}, s{S_IBASE}, 16
s_lshl_b32 s{S_T1}, s{S_NB}, 4
s_max_u32 s{S_T0}, s{S_T1}, 1
s_sub_u32 s{S_T0}, s{S_T0}, 1
s_and_b32 s{S_T0}, s{S_T0}, 0xff00
s_mov_b32 s{S_T2}, 0x0c0c0400
s_mov_b32 s{S_T3}, 0x04000c0c
v_lshrrev_b32 v15, 2, v0
""")
    if opt.get('ahead', 0):
        a(f"""
s_lshl_b32 s{S_T0}, s{S_WAVE}, 8
s_add_u32 s{S_T0}, s{S_T0}, s2
s_lshl_b32 s{S_PFO}, s{S_T0}, 14
s_sub_u32 s{S_T0}, {1563 + opt.get('lead', 190)}, s{S_T0}
s_mul_i32 s{S_T0}, s{S_T0}, s{S_NB}
s_mul_i32 s{S_T0}, s{S_T0}, 42
s_ashr_i32 s{S_PF}, s{S_T0}, 16
""")
    a(f"""
s_sub_u32 s{S_REM}, s{S_NB}, 1
s_waitcnt lgkmcnt(0)
s_barrier
""")
    stamp(a, opt, 1)
    stamp(a, opt, 4, 1)
    stamp(a, opt, 5, 6)
    ds = DS(a)
    for t in range(2): ds.op(f"pt{t}", f"ds_read_b32 v{T1+8+t}, v4 offset:{L_PT + 64*t}")
    for h in range(3): ds.op(f"sr{h}", f"ds_read_u16 v{T1+10+h}, v2 offset:{2 + 64*h}")
    for op in tail_reads(0) + W1: ds.op(*op)
    ds.need("sr2")
    for t in range(2): a(f"v_bfi_b32 v{T1+8+t}, 31, v0, v{T1+8+t}")
    for h in range(3): a(f"v_lshl_or_b32 v{T1+10+h}, v{T1+10+h}, 9, v14")
    valid(a, 0)
    dma_e(a, T1+8, RB_EA)
    dma_x(a, T1+10, 0, [])
    a(f"""
{name}_idcopy:
v_add_u32 v{T2+12}, s{S_T0}, v15
v_add_lshl_u32 v{T2+13}, v{T2+12}, s{S_START}, 2
v_cmp_gt_u32 vcc, s{S_T1}, v{T2+12}
ds_read_b128 {vr(T2+8,4)}, v{T2+13} offset:{L_PT}
v_bfrev_b32 v{T2+13}, 1
v_cndmask_b32 v{T2+12}, v{T2+13}, v{T2+12}, vcc
s_waitcnt lgkmcnt(0)
v_perm_b32 v{T2+8}, v{T2+9}, v{T2+8}, s{S_T2}
v_perm_b32 v{T2+10}, v{T2+11}, v{T2+10}, s{S_T3}
v_or_b32 v{T2+8}, v{T2+8}, v{T2+10}
v_and_b32 v{T2+8}, 0x1f1f1f1f, v{T2+8}
s_sub_u32 s{S_T0}, s{S_T0}, 256
buffer_store_dword v{T2+8}, v{T2+12}, {srd(SRD_I)}, s{S_IBASE} offen
s_cbranch_scc0 {name}_idcopy
""")
    for i in range(4): a(f"v_readlane_b32 s{S_LND+i}, v{T2+8}, {i}")
    zero(a, opt.get('z0', 180), opt.get('z1', 256))
    dma_x(a, T1+11, 1, [])
    def deeper():
        valid(a, 1)
        dma_e(a, T1+9, RB_EA + 512)
        dma_x(a, T1+12, 2, [])
    late = opt.get('late', 0)
    if not late: deeper()
    zero(a, opt.get('z1', 256), 256)
    a(f"s_cmp_eq_u32 s{S_NB}, 0\ns_cbranch_scc1 {name}_b_done")
    ds.drain()
    a(f"""
s_lshl_b32 s{S_T1}, s{S_NB}, 4
s_add_u32 s{S_T1}, s{S_T1}, s{S_IBASE}
s_mov_b32 s{S_T0}, s{S_IBASE}
s_waitcnt vmcnt({3 if late else 7})
s_cmp_eq_u32 s{S_WBASE}, 0
s_cbranch_scc1 {name}_idfresh
{name}_idwarm:
s_buffer_load_dword s{S_T2}, {srd(SRD_I)}, s{S_T0}{opt.get('wglc', ' glc')}
s_add_u32 s{S_T0}, s{S_T0}, 64
s_cmp_le_u32 s{S_T0}, s{S_T1}
s_cbranch_scc1 {name}_idwarm
s_waitcnt lgkmcnt(0)
{name}_idfresh:
""")
    stamp(a, opt, 5, 1)
    for op in (ar(0, 0), W2[0], ar(0, 1)): ds.op(*op)
    if late: deeper()
    entry = list(ds.q)
    align(a, opt.get('alb'))
    a(f"{name}_b_loop:")
    UB = opt.get('ub', 2)
    for t in range(UB):
        p = t & 1
        ds = DS(a, entry)
        def big(tag, tile, w, h):
            ds.need(f"A{h}", f"{tag}{h}")
            a(f"v_mfma_f32_32x32x16_bf16 {vr(tile,16)}, {vr(AR[h],4)}, {vr(w,4)}, {vr(tile,16) if h else 0}")
        def m0x(b, slot): return f"s_add_u32 m0, s{S_RING}, {b*LINE + slot*1024 - 128*(b+1)}"
        def setidx(e):
            r, k = si + 2*(e >> 3) + (e & 1), (e >> 1) & 3
            return f"s_lshr_b32 m0, s{r}, 24" if k == 3 else f"s_bfe_u32 m0, s{r}, {0x80000 + 8*k:#x}"
        def ldx(v, b): return f"buffer_load_dwordx4 v{v}, {srd(SRD_X)}, s{S_VAL} offen offset:{128*(b+1)} lds"
        if p == 0 and opt.get('grp') == 4:
            for i, it in enumerate((1, 2, 4, 7, 10)):
                a(f"s_cmp_lg_u32 s{S_ADV}, {32*it}\ns_cbranch_scc1 4")
                stamp(a, opt, 1 + i, 4)
        if p == 0 and opt.get('ahead', 0):
            a(f"s_cmp_le_i32 s{S_REM}, s{S_PF}\ns_cbranch_scc1 {name}_b_ahead\n{name}_b_back:")
        if opt.get('rprio'): a("s_setprio 0")
        big("W1", T1, T3, 0)
        ds.op(*W2[1]); ds.op(*W3[0]); ds.op(*W3[1])
        a(f"""
v_perm_b32 v{M1}, v{T2+1}, v{T2}, v{MT}
v_perm_b32 v{M1+1}, v{T2+1}, v{T2}, v{MT+1}
v_xor_b32 v{M1}, v{M1}, v7
""")
        big("W1", T1, T3+4, 1)
        a(f"{rowaddr(12, 12)}\nv_bfi_b32 v{T3+1}, 31, v0, v{T2+3}\n{rowaddr(13, 13)}")
        sl = (2*p + 3) & 3
        a(m0x(0, sl))
        big("W2", T2, T3+8, 0)
        a(f"{ldx(12, 0)}\n{m0x(1, sl)}")
        ds.drain()
        a(ldx(12, 1))
        for i in range(4): a(f"s_mul_i32 s{si+i}, s{S_LND+i}, 7")
        a(f"{idload()}\n{m0x(2, sl)}")
        big("W2", T2, T3+12, 1)
        a(ldx(12, 2))
        valid(a, 2)
        dma_e(a, T3+1, RB_EA + 512*p)
        big("W3", T3, XX[0], 0)
        if opt.get('vmstat'): a("s_getreg_b32 s88, hwreg(HW_REG_IB_STS, 0, 4)\ns_add_u32 s89, s89, s88\ns_cmp_gt_u32 s88, 11\ns_cselect_b32 s88, 0x10000, 0\ns_add_u32 s89, s89, s88")
        a(f"s_waitcnt vmcnt({VM[0]})")
        xread(ds, p, 0); xread(ds, p, 1)
        big("W3", T3, GG, 1)
        a("s_nop 0")
        tr_ = tail_reads(t+1)
        pre = {}
        if t == UB-1: pre[13] = [f"v_add_u32 v2, {128*UB}, v2", f"v_add_u32 v3, {128*UB}, v3", f"v_add_u32 v4, {64*UB}, v4", f"s_add_u32 s{S_ADV}, s{S_ADV}, {16*UB}"]
        aux = {4: tr_[:1], 6: tr_[1:2], 11: tr_[2:], 12: W1}
        if prio == 1 or (prio == 2 and p == 0):
            pre[1] = prio_addr(7, T3)[1:]; aux[1] = [prio_add(7, T3)]
            pre[4] = prio_read(T3) + ([] if opt.get('rprio') else prio_set())
        if opt.get('rprio'):
            for l in prio_set(1): a(l)
        for e in range(16):
            x = XX[e % 3]
            if prio == 3 and 16*t + e in PHB: young_prio(a, PHB[16*t + e])
            if e == 8 and opt.get('half', 1): a(f"s_cmp_eq_u32 s{S_REM}, s{S_HALF}\ns_cbranch_scc1 {name}_b_done")
            if e in (8, 9, 10): a(m0x(e-8, 2*p))
            w2 = opt.get('wait2', 0) and e % 2 == 0 and e not in (0, 8)
            if not ds.need(f"x{e}", f"x{e+1}" if w2 else "", vm=VM[1] if e == 6 else None): assert e not in (8, 9, 10)
            if e in (8, 9, 10): a(f"{ldx(13, e-8)}\n{setidx(e)}")
            a(f"v_mfma_f32_4x4x4_16b_bf16 {vr(GG,4)}, {vr(M1,2)}, {vr(x,2)}, 0 cbsz:4 abid:{e}")
            for l in pre.get(e, []): a(l)
            a(f"s_set_gpr_idx_on s{si}, 0x8" if e == 0 else "s_set_gpr_idx_mode 0x8")
            for op in aux.get(e, []): ds.op(*op)
            if e < 14: xread(ds, p, e+2)
            elif e == 14: ds.op(*ar(p ^ 1, 0)); ds.op(*W2[0])
            else: ds.op(*ar(p ^ 1, 1))
            for i, src in enumerate((x+2, x+3, x+1)): a(f"v_fmac_f32 v{ACC+4+i}, v{src}, v{T1+e}")
            for i in range(4): a(f"v_fmac_f32 v{ACC+i}, v{GG+i}, v{(T2, T2, T2, T3)[i]+e}")
            if e == 15: a("s_set_gpr_idx_off")
            elif e + 1 not in (8, 9, 10): a(setidx(e+1))
        a(f"s_sub_u32 s{S_REM}, s{S_REM}, 1\ns_cbranch_scc1 {name}_b_done")
        assert ds.q == entry, (ds.q, entry)
    a(f"s_branch {name}_b_loop")
    if opt.get('ahead', 0):
        a(f"""
{name}_b_ahead:
v_lshlrev_b32 v{T1}, 3, v0
s_mov_b32 m0, {L_MT}
s_mov_b32 s{S_PF}, -100
s_mov_b32 exec_hi, 0
""")
        for i in range(4): a(f"buffer_load_dword v{T1}, {srd(SRD_X)}, s{S_PFO} offen lds\ns_add_u32 s{S_PFO}, s{S_PFO}, 4096")
        a(f"s_mov_b32 exec_hi, -1\ns_branch {name}_b_back")
    a(f"; ---- pack the pass-B sums to bf16 and set up pass A\n{name}_b_done:\ns_set_gpr_idx_off")

def pack(a, ops, spare, neg=()):
    ops, spare, moves = list(ops), list(spare), []
    while ops:
        for k, (d, x, y) in enumerate(ops):
            if not any(d in o[1:] for j, o in enumerate(ops) if j != k): break
        else:
            k = 0; d, x, y = ops[0]; t = spare.pop(); moves.append((d, t)); d = t
        a(f"v_cvt_pk_bf16_f32 v{d}, {'-' if x in neg else ''}v{x}, {'-' if y in neg else ''}v{y}"); ops.pop(k)
    for d, t in moves: a(f"v_mov_b32 v{d}, v{t}")

ORD_B = (3, 4, 0, 5, 1, 6, 2)
ORD_A = (2, 1, 0, 3)
PB, ACA = 68, 156
TA0, TA2 = 32, 48
SB_ = (10, 12, 64, 66)
M2, SELA, AA, WA = 8, 6, 16, 24

def pass_a(a, name, opt):
    def dma_s(v, slot, fill="s_nop 0"):
        a(f"s_add_u32 m0, s{S_RING}, {slot*1024}\n{fill}\nbuffer_load_dwordx4 v{v}, {srd(SRD_X)}, s{S_VAL} offen lds")
    SR = SB_ + (AA, AA+2, AA+4, AA+6)
    def sread(c, m):
        slot = 2*c + (m >> 2)
        return (f"s{m}", f"ds_read_b64_tr_b16 {vr(SR[m],2)}, v1 offset:{slot*1024 + (m & 3)*256}")
    def next_reads(c, off):
        r = [("sr", f"ds_read2_b32 {vr(TA2+2,2)}, v2 offset0:{32*off + 80} offset1:{32*off + 96}"),
             ("pt", f"ds_read_b32 v{TA2+5}, v4 offset:{L_PT + 64*(off+3)}")]
        r += [(f"W0{h}", f"ds_read_b128 {vr(TA2+8+4*h,4)}, v0 offset:{L_WR + h*1024}") for h in range(2)]
        r += [("A0", f"ds_read_b128 {vr(AA,4)}, v5 offset:{c*512}"),
              ("A1", f"ds_read_b128 {vr(AA+4,4)}, v7 offset:{c*512}")]
        r += [sread(c, m) for m in range(4)]
        r += [("ys", f"ds_read_b64 {vr(TA2,2)}, v3 offset:{L_YS + 128*off}")]
        return r
    a(f"""
s_waitcnt vmcnt(0) lgkmcnt(0)
s_add_u32 m0, s{S_RING}, {RA_WS}
s_mul_i32 s{S_T1}, s{S_WAVE}, 5120
s_add_u32 s{S_T1}, s{S_T1}, 10240
""")
    for j in range(4): a(f"buffer_load_dwordx4 v0, {srd(SRD_W)}, s{S_T1} offen offset:{1024*j} lds")
    a(f"s_add_u32 m0, s{S_RING}, {RA_WS+4096}\ns_add_u32 s{S_T1}, s{S_T1}, 4096\nbuffer_load_dwordx4 v0, {srd(SRD_W)}, s{S_T1} offen lds")
    a(f"""
s_lshl_b32 s{S_T0}, s{S_ADV}, 3
s_lshl_b32 s{S_T1}, s{S_ADV}, 2
v_subrev_u32 v2, s{S_T0}, v2
v_subrev_u32 v4, s{S_T1}, v4
v_lshrrev_b32 v17, 1, v14
""")
    ds = DS(a)
    for h in range(5): ds.op(f"sr{h}", f"ds_read_u16 v{TA0+h}, v2 offset:{2 + 64*h}")
    for t in range(3): ds.op(f"pt{t}", f"ds_read_b32 v{TA0+8+t}, v4 offset:{L_PT + 64*t}")
    ds.op("mt", f"ds_read_b64 {vr(M2,2)}, v17 offset:{L_MT + 64}")
    a(f"""
v_subrev_u32 v3, s{S_T0}, v3
s_mov_b32 s{S_IOF}, s{S_IBASE}
{idload()}
v_bfe_u32 v17, v0, 7, 1
v_mul_u32_u24 v17, {LINE - 128}, v17
v_sub_u32 v1, v6, v17
v_subrev_u32 v5, {RB_EA - RA_EA}, v5
v_subrev_u32 v7, {RB_EA - RA_EA}, v80
s_sub_u32 s{S_REM}, s{S_NB}, 1
""")
    ds.drain()
    for h in range(5): a(f"v_lshl_or_b32 v{TA0+h}, v{TA0+h}, 9, v14")
    for t in range(3): a(f"v_bfi_b32 v{TA0+8+t}, 31, v0, v{TA0+8+t}")
    a(f"v_mov_b32 v{SELA}, v{M2}")
    for t in range(3):
        valid(a, t)
        dma_s(TA0+2*t, 2*t)
        dma_e(a, TA0+8+t, RA_EA + 512*t)
        if t < 2: dma_s(TA0+2*t+1, 2*t+1)
    for h in range(2): ds.op(f"W2{h}", f"ds_read_b128 {vr(WA+4*h,4)}, v0 offset:{L_WR + (4+h)*1024}")
    pack(a, [(PB + 12*ORD_B.index(i) + p, ACC+14*p+i, ACC+14*p+7+i) for p in range(12) for i in range(7)]
            + [(PB+84+i, ACC+168+2*i, ACC+168+min(2*i+1, 6)) for i in range(4)], range(48, 64), range(ACC+1, 256, 7))
    zero(a, ACA, 256)
    a(f"""
s_waitcnt vmcnt(6)
v_mov_b32 v17, {L_FLAG}
v_mov_b32 v18, 1
s_mov_b64 exec, 1
ds_add_u32 v17, v18
s_mov_b64 exec, -1
s_cmp_eq_u32 s{S_NB}, 0
s_cbranch_scc1 {name}_a_done
s_waitcnt lgkmcnt(0)
""")
    ds.q = []
    stamp(a, opt, 3)
    for tag, text in next_reads(0, 0): ds.op(tag, text)
    entry = list(ds.q)
    si = S_IDX[0]
    align(a, opt.get('ala'))
    a(f"{name}_a_loop:")
    for c in range(3):
        ds = DS(a, entry)
        pra = opt.get('prio', 3) == 1 or (opt.get('prio', 3) == 2 and c == 0)
        def big(tile, w, h): a(f"v_mfma_f32_32x32x16_bf16 {vr(tile,16)}, {vr(AA+4*h,4)}, {vr(w+4*h,4)}, {vr(tile,16) if h else 0}")
        def mul(tile, *ms):
            for m in ms:
                for i in range(2): a(f"v_mul_f32 v{tile+2*m+i}, v{tile+2*m+i}, v{SR[m]+i}")
        def cvt_t(*ms):
            for m in ms: a(f"v_cvt_pk_bf16_f32 v{TA0+2*m+1}, v{TA0+2*m}, v{TA0+2*m+1}")
        def cvt_u(*ms):
            for m in ms: a(f"v_cvt_pk_bf16_f32 v{TA0+2*m}, v{TA2+2*m}, v{TA2+2*m+1}")
        if opt.get('prio', 3) == 3 and 2*c in opt.get('pha', {0: 2, 4: 0}): young_prio(a, opt.get('pha', {0: 2, 4: 0})[2*c])
        ds.need("s3")
        big(TA0, TA2+8, 0)
        a(rowaddr(TA2+2, TA2+2))
        dma_s(TA2+2, (2*c+5) % 6, rowaddr(TA2+3, TA2+3))
        valid(a, 3)
        a(f"s_add_u32 m0, s{S_RING}, {2*c*1024}")
        big(TA0, TA2+8, 1)
        a(f"buffer_load_dwordx4 v{TA2+3}, {srd(SRD_X)}, s{S_VAL} offen lds\nv_bfi_b32 v{TA2+5}, 31, v0, v{TA2+5}")
        dma_e(a, TA2+5, RA_EA + 512*c)
        ds.need("ys", vm=opt.get('vma', 6))
        assert not ds.q
        a(f"v_perm_b32 v{M2}, v{TA2+1}, v{TA2}, v{SELA}")
        big(TA2, WA, 0)
        a(f"s_lshl_b64 s[{si}:{si+1}], s[{S_LND}:{S_LND+1}], 2")
        ds.op(*sread(c, 4)); ds.op(*sread(c, 5))
        mul(TA0, 0, 1)
        big(TA2, WA, 1)
        a(f"s_lshl_b64 s[{si+2}:{si+3}], s[{S_LND+2}:{S_LND+3}], 2")
        ds.op(*sread(c, 6)); ds.op(*sread(c, 7))
        mul(TA0, 2, 3); cvt_t(0, 1, 2, 3)
        ds.need("s5")
        mul(TA0, 4, 5); mul(TA2, 0, 1, 2, 3)
        ds.need("s7")
        a(idload())
        cvt_u(0, 1, 2, 3)
        mul(TA0, 6, 7); mul(TA2, 4, 5)
        if pra:
            for l in prio_addr(TA2+6, TA2+7): a(l)
        cvt_t(4, 5, 6, 7)
        mul(TA2, 6, 7)
        cvt_u(4, 5, 6, 7)
        if opt.get('prio', 3) == 3 and 2*c+1 in opt.get('pha', {}): young_prio(a, opt['pha'][2*c+1])
        fill = ([prio_add(TA2+6, TA2+7)] if pra else []) + next_reads((c + 1) % 3, c+1)
        for e in range(16):
            a(f"s_set_gpr_idx_on s{si + 2*(e >> 3) + (e & 1)}, 0xc")
            if (e & 1) and (e & 7) != 7:
                q = si + 2*(e >> 3)
                a(f"s_lshr_b64 s[{q}:{q+1}], s[{q}:{q+1}], 8")
                if e == 1 or (pra and e == 3): ds.op(*fill.pop(0))
            else: ds.op(*fill.pop(0))
            a(f"v_mfma_f32_4x4x4_16b_bf16 {vr(ACA,4)}, {vr(M2,2)}, {vr(TA0+(e&14),2)}, {vr(ACA,4)} cbsz:4 abid:{e}")
        assert not fill
        a("s_set_gpr_idx_off")
        if pra:
            ds.need("pr")
            for l in prio_read(TA2+7) + prio_set(): a(l)
        if c == 2:
            a("v_add_u32 v2, 384, v2\nv_add_u32 v3, 384, v3\nv_add_u32 v4, 192, v4")
        a(f"s_sub_u32 s{S_REM}, s{S_REM}, 1\ns_cbranch_scc1 {name}_a_done")
        assert ds.q == entry, (ds.q, entry)
    a(f"s_branch {name}_a_loop\n{name}_a_done:")

def epilogue(a, name, opt):
    PA = ACA
    DT = ((224, 240), (192, 208), (74, 176), (192, 208))
    AOP, WOP, TMP, ROW = 8, 24, (56, 57, 58, 59), 60
    nt = opt.get('store_nt', ' sc1')
    young_prio(a, opt.get('phe', 0))
    a(f"""
s_waitcnt lgkmcnt(0)
v_mov_b32 v7, {L_FLAG}
v_lshrrev_b32 v16, 4, v0
v_mul_u32_u24 v1, 56, v16
v_add_u32 v1, s{S_RING}, v1
v_lshrrev_b32 v17, 5, v16
v_bfe_u32 v18, v16, 2, 2
v_lshl_add_u32 v18, v17, 3, v18
v_mul_u32_u24 v2, 56, v18
v_bfe_u32 v18, v16, 4, 1
v_lshl_add_u32 v2, v18, 5, v2
v_and_b32 v18, 3, v16
v_lshl_add_u32 v2, v18, 3, v2
v_add_u32 v2, s{S_RING}, v2
v_add_u32 v3, {L_RING + RA_WS}, v0
v_add_u32 v4, {L_RING + RA_WS + 5*RING}, v0
v_and_b32 v18, 31, v16
v_lshlrev_b32 v18, 2, v18
s_lshl_b32 s{S_T0}, s{S_SB}, 9
v_add_u32 v5, s{S_T0}, v18
s_lshl_b32 s{S_T0}, s{S_WAVE}, 5
v_lshl_add_u32 v6, v17, 2, s{S_T0}
s_add_u32 s{S_T2}, s{S_WBASE}, s{S_WCNT}
s_cmp_ge_u32 s{S_T2}, s{S_TOTAL}
s_cselect_b32 s{SRD_O+2}, {0 if opt.get('nostore') else XB}, 0
s_lshl_b32 s{S_T3}, s2, 3
s_add_u32 s{S_T3}, s{S_T3}, s{S_WAVE}
s_lshl_b32 s{S_T3}, s{S_T3}, 15
{name}_spin:
ds_read_b32 v17, v7
s_waitcnt lgkmcnt(0)
v_readfirstlane_b32 s{S_T0}, v17
s_cmp_lt_u32 s{S_T0}, 8
s_cbranch_scc1 {name}_spin
""")
    def ga(i): return (PA + 2 + 12*ORD_A.index(i), PA + (i >> 1), i & 1)
    def gb(i): return (PB + 12*ORD_B.index(i), PB + 84 + (i >> 1), i & 1)
    groups = [(gb(3), 1, 0), (ga(3), 0, 0)]
    for j in range(3): groups += [(ga(j), 2, j+1), (gb(4+j), 3, j+1), (gb(j), 4, j+1)]
    NG = len(groups)
    ds = DS(a)
    def writes(g):
        base, tail, hi = groups[g][0]
        off = (g & 1) * TILE
        return [(f"w{g}", f"ds_write_b64 v1, {vr(base+2*q,2)} offset:{off + 8*q}") for q in range(6)] + \
               [(f"w{g}", f"ds_write_b16{'_d16_hi' if hi else ''} v1, v{tail} offset:{off + 48}")]
    def aread(m):
        g, t = divmod(m, 4)
        return [(f"a{m}", f"ds_read_b64_tr_b16 {vr(AOP+4*t+2*j,2)}, v2 offset:{(g & 1)*TILE + (16*t+4*j)*56}") for j in range(2)]
    def wread(n):
        g, i = divmod(n, 8)
        w, k = divmod(groups[g][1]*8 + i, 5)
        v, o = (3, w*RING) if w < 5 else (4, (w-5)*RING)
        return (f"W{n}", f"ds_read_b128 {vr(WOP+4*(n&7),4)}, v{v} offset:{o + k*1024}")
    def fin(comp):
        D, G_ = DT[comp], DT[0]
        out = []
        for r in range(13):
            t = TMP[r & 3]
            if comp: out += [f"v_mul_f32 v{D[u]+r}, v{D[u]+r}, v{G_[u]+r}" for u in range(2)]
            out += [f"v_cvt_pk_bf16_f32 v{t}, v{D[0]+r}, v{D[1]+r}"]
            if not comp:
                out += [f"v_mul_f32 v{D[u]+r}, 0xbfb8aa3b, v{D[u]+r}" for u in range(2)]
                out += [f"v_exp_f32 v{D[u]+r}, v{D[u]+r}" for u in range(2)]
            out += [f"buffer_store_dword v{t}, v{ROW+r}, {srd(SRD_O)}, 0 offen offset:{128*comp}{nt}"]
            if not comp:
                out += [f"v_add_f32 v{D[u]+r}, 1.0, v{D[u]+r}" for u in range(2)]
                out += [f"v_rcp_f32 v{D[u]+r}, v{D[u]+r}" for u in range(2)]
        return out
    a("s_waitcnt vmcnt(0)")
    for op in writes(0) + aread(0) + [wread(0), wread(1)] + aread(1) + [wread(2), wread(3)]: ds.op(*op)
    pack(a, [(ga(i)[0] + p, ACA+8*p+i, ACA+8*p+4+i) for p in range(12) for i in range(4)]
            + [(PA+i, ACA+96+2*i, ACA+97+2*i) for i in range(2)], range(40, 68))
    side = []
    for m in range(4*NG):
        g, t = divmod(m, 4)
        comp = groups[g][2]
        first = (g == 0 or groups[g-1][2] != comp) and t == 0
        D = DT[comp]
        if t == 0 and g in opt.get('phg', {}): young_prio(a, opt['phg'][g])
        ops = []
        if g+1 < NG and t < 2: ops += writes(g+1)[4*t:4*t+4]
        if m+2 < 4*NG: ops += aread(m+2) + [wread(2*m+4), wread(2*m+5)]
        if m == 2: ops += [("row", f"ds_read_u8 v{ROW+r}, v6 offset:{L_INV + (r >> 2)*8 + (r & 3)}") for r in range(13)]
        if m == 6: side = [f"v_lshl_add_u32 v{ROW+r}, v{ROW+r}, 17, v5" for r in range(13)]
        ds.need(f"a{m}", f"W{2*m+1}")
        for u in range(2):
            a(f"v_mfma_f32_32x32x16_bf16 {vr(D[u],16)}, {vr(AOP+4*t,4)}, {vr(WOP+4*((2*m+u)&7),4)}, {0 if first else vr(D[u],16)}")
            k = (len(ops) + 1 - u) // (2 - u)
            for op in ops[:k]: ds.op(*op)
            ops = ops[k:]
            if not first:
                for l in side[:opt.get('side', 6)]: a(l)
                side = side[opt.get('side', 6):]
        if t == 3 and (g+1 == NG or groups[g+1][2] != comp):
            for l in side: a(l)
            a(f"s_cmp_lg_u32 s{S_TOTAL}, s{S_WCNT}\ns_cbranch_scc1 {name}_multi{comp}\n{name}_fin{comp}:")
            side = fin(comp)
    a("s_nop 9")
    for l in side: a(l)
    a(f"{name}_next3:")
    stamp(a, opt, 5)
    stamps_out(a, opt)
    a(f"""
s_cmp_ge_u32 s{S_T2}, s{S_TOTAL}
s_cbranch_scc1 {name}_end
s_mov_b32 s{S_WBASE}, s{S_T2}
s_setprio 0
s_waitcnt vmcnt(0) lgkmcnt(0)
s_barrier
s_branch {name}_window
""")
    for comp in range(4):
        D = DT[comp]
        a(f"""
{name}_multi{comp}:
s_nop 15
v_lshrrev_b32 v7, 2, v0
s_add_u32 s{S_T0}, s{S_T3}, {comp*8192}
s_add_u32 s{S_T1}, s{S_T0}, 4096
s_cmp_eq_u32 s{S_WBASE}, 0
s_cbranch_scc1 {name}_mst{comp}
""")
        for u in range(2):
            for r in range(13):
                a(f"buffer_load_dword v{TMP[0]}, v7, {srd(SRD_S)}, s{S_T0+u} offen offset:{256*r} sc1\ns_waitcnt vmcnt(0)\nv_add_f32 v{D[u]+r}, v{D[u]+r}, v{TMP[0]}")
        a(f"{name}_mst{comp}:")
        for u in range(2):
            for r in range(13):
                a(f"buffer_store_dword v{D[u]+r}, v7, {srd(SRD_S)}, s{S_T0+u} offen offset:{256*r}")
        a(f"s_waitcnt vmcnt(0)\ns_branch {name}_fin{comp}")
    a(f"{name}_end:\ns_endpgm")

def dump_regs(a):
    a("s_waitcnt vmcnt(0) lgkmcnt(0)\ns_nop 15")
    a.srd(96, 76, 128 << 20, 64 << 20)
    a(f"""
v_lshrrev_b32 v0, 2, v0
s_lshl_b32 s{S_T0}, s2, 3
s_add_u32 s{S_T0}, s{S_T0}, s{S_WAVE}
s_lshl_b32 s{S_T0}, s{S_T0}, 16
v_mov_b32 v1, s{S_START}
v_mov_b32 v2, s{S_NB}
""")
    for r in range(256):
        a(f"buffer_store_dword v{r}, v0, s[96:99], s{S_T0} offen\ns_add_u32 s{S_T0}, s{S_T0}, 256")
    a("s_endpgm")

def dump_lds(a):
    a("s_waitcnt vmcnt(0) lgkmcnt(0)\ns_barrier")
    a.srd(96, 76, 16 << 20, 200 << 20)
    a(f"""
s_lshl_b32 s{S_T0}, s2, 16
s_lshl_b32 s{S_T1}, s{S_WAVE}, 13
v_add_u32 v21, s{S_T1}, v0
""")
    for j in range(8):
        a(f"ds_read_b128 v[24:27], v21\ns_waitcnt lgkmcnt(0)\nbuffer_store_dwordx4 v[24:27], v21, s[96:99], s{S_T0} offen\ns_waitcnt vmcnt(0)\nv_add_u32 v21, 1024, v21")

def stamp(a, opt, i, grp=0):
    if opt.get('stamps') == 3:
        lo = opt.get('seg', 1)
        if grp == 0 and i in (lo, lo+1):
            a(f"s_memrealtime s[100:101]\ns_waitcnt lgkmcnt(0)\ns_mov_b32 s{93+i-lo}, s100\ns_memtime s[100:101]\ns_waitcnt lgkmcnt(0)\ns_mov_b32 s{95+i-lo}, s100")
        return
    if opt.get('stamps') and (i in (0, 6) or grp == opt.get('grp', 0)):
        a(f"{'s_memtime' if opt['stamps'] == 2 else 's_memrealtime'} s[100:101]\ns_waitcnt lgkmcnt(0)\ns_mov_b32 s{93+i}, s100")

def stamps_out(a, opt):
    if opt.get('stamps'):
        a("s_waitcnt vmcnt(0)")
        stamp(a, opt, 6)
        a.srd(SRD_S, 76, 1 << 20, 240 << 20)
        a(f"s_lshl_b32 s{S_T0}, s2, 3\ns_add_u32 s{S_T0}, s{S_T0}, s{S_WAVE}\ns_lshl_b32 s{S_T0}, s{S_T0}, 5\nv_mov_b32 v0, 0")
        for i in range(7):
            a(f"v_mov_b32 v1, s{93+i}\nbuffer_store_dword v1, v0, {srd(SRD_S)}, s{S_T0} offen offset:{4*i}")
        if opt.get('vmstat'): a(f"s_mov_b32 s{S_NB}, s89")
        if opt.get('xcc'): a(f"s_getreg_b32 s{S_NB}, hwreg(HW_REG_XCC_ID)")
        a(f"v_mov_b32 v1, s{S_NB}\nbuffer_store_dword v1, v0, {srd(SRD_S)}, s{S_T0} offen offset:28\ns_endpgm")

def gen_k2(name, **opt):
    a = Asm()
    prologue(a, name, opt)
    if opt.get('dump'): dump_lds(a)
    pass_b(a, name, opt)
    if opt.get('dump') == 'b': dump_regs(a)
    stamp(a, opt, 2)
    pass_a(a, name, opt)
    if opt.get('dump') == 'a': dump_regs(a)
    stamp(a, opt, 4)
    epilogue(a, name, opt)
    if opt.get('drope'):
        import re
        lo = a.lines.index(f"{name}_spin:") + 6; hi = a.lines.index(f"{name}_next3:")
        a.lines[lo:hi] = [l for l in a.lines[lo:hi] if not re.search(opt['drope'], l)]
    for key, ps in (('drop', 'b'), ('dropa', 'a')):
        if opt.get(key):
            import re
            lo = a.lines.index(f"{name}_{ps}_loop:"); hi = a.lines.index(f"{name}_{ps}_done:")
            a.lines[lo:hi] = [('    s_nop 0' if re.search(opt[key], l) else l) for l in a.lines[lo:hi]]
    return a.text()
```

```python
import sys
from common import *
import k1, k2

REF = 'standalone__tensor_product_equiv_equiformer__graph.s.ref'

DOC = """;
;
;
"""

def build(kernels):
    head = [l for l in open(REF).read().split('\n') if l.startswith(';') and '@launch' not in l
            and 'Override launch' not in l and 'grid=ceil' not in l]
    out = '\n'.join(head) + '\n'
    for name, _, grid, block, lds, _ in kernels:
        out += f"; @launch kernel={name} grid=({grid},1,1) block=({block},1,1) lds={lds}\n"
    out += '.amdgcn_target "amdgcn-amd-amdhsa--gfx950"\n' + DOC + '.text\n'
    seen = set()
    for name, text, *_ in kernels:
        if name in seen: continue
        seen.add(name)
        out += f".globl {name}\n.p2align 8\n.type {name},@function\n{text}"
    out += '.section .rodata,"a"\n'
    seen = set()
    for name, _, _, _, _, vgpr in kernels:
        if name in seen: continue
        seen.add(name)
        out += ".p2align 6\n" + kernel_desc(name, vgpr)
    return out

def k1_entry(**kw):
    return ('tp_sort_kernel', k1.gen_k1('tp_sort_kernel', **kw), k1.K1_GRID, 1024, k1.K1_LDS, k1.K1_VGPR)

def k2_entry(**kw):
    return ('tp_main_kernel', k2.gen_k2('tp_main_kernel', **kw), 256, 512, k2.K2_LDS, 256)

if __name__ == '__main__':
    open(sys.argv[1], 'w').write(build([k1_entry(), k2_entry()]))
```

```python
from common import *

K1_LDS_EA = 0
K1_LDS_META = CH * 32
K1_LDS_INV = K1_LDS_META + CH * 12
K1_LDS_HIST = K1_LDS_INV + CH * 2
K1_LDS = K1_LDS_HIST + 2048
K1_GRID = NCH + 4
K1_VGPR = 64
QSHIFT = 12

def gen_k1(name, nt=' nt', st=' sc1', stm=' sc1', stamps=0, soff=240, sched=(3, 2, 1, 0)):
    a = Asm()
    def stamp(i):
        if stamps: a(f"{'s_memtime' if stamps == 2 else 's_memrealtime'} s[100:101]\ns_waitcnt lgkmcnt(0)\ns_mov_b32 s{90+i}, s100")
    a(f"""
{name}:
s_cmp_ge_u32 s2, {K1_GRID}
s_cbranch_scc1 {name}_end
s_load_dwordx8 s[4:11], s[0:1], {KA_RHAT}
s_load_dwordx2 s[12:13], s[0:1], {KA_WS}
s_cmp_ge_u32 s2, {NCH}
s_cbranch_scc1 {name}_weights
v_lshrrev_b32 v1, 6, v0
v_lshlrev_b32 v2, 4, v0
v_readfirstlane_b32 s3, v1
v_mul_u32_u24 v3, 24, v0
v_and_b32 v4, 63, v0
v_lshlrev_b32 v4, 4, v4
v_mov_b32 v5, 0
v_lshlrev_b32 v6, 2, v0
s_mul_i32 s40, s2, {CH*4}
s_mul_i32 s41, s2, {CH*6}
s_mul_i32 s42, s2, {CH*32}
s_mul_i32 s43, s2, {CH*8}
s_mul_i32 s44, s2, {CH}
s_lshl_b32 s62, s3, 10
s_add_u32 s63, s62, s42
v_and_b32 v7, 0x7fc, v6
v_add_u32 v7, {K1_LDS_HIST}, v7
ds_write_b32 v7, v5
v_cmp_gt_u32 vcc, {CH//4}, v0
s_and_b64 exec, exec, vcc
s_mov_b64 s[52:53], exec
""")
    for d, n in ((16, E*4), (20, E*4), (24, E*6), (28, E*32)): a(f"s_mov_b32 s{d+2}, {n:#x}\ns_mov_b32 s{d+3}, 0x20000")
    a("s_waitcnt lgkmcnt(0)")
    stamp(0)
    a(f"""
s_mov_b64 s[16:17], s[10:11]
s_mov_b64 s[20:21], s[8:9]
s_mov_b64 s[24:25], s[4:5]
s_mov_b64 s[28:29], s[6:7]
s_cbranch_execz {name}_noload
buffer_load_dwordx4 v[8:11], v2, s[16:19], s40 offen{nt}
buffer_load_dwordx4 v[12:15], v2, s[20:23], s40 offen{nt}
buffer_load_dwordx4 v[16:19], v3, s[24:27], s41 offen{nt}
buffer_load_dwordx2 v[20:21], v3, s[24:27], s41 offen offset:16{nt}
{name}_noload:
s_mov_b64 exec, -1
s_barrier
""")
    def dma(n):
        for _ in range(n):
            a(f"s_mov_b32 m0, s62\ns_add_u32 s62, s62, 0x4000\nbuffer_load_dwordx4 v4, s[28:31], s63 offen{nt} lds\ns_add_u32 s63, s63, 0x4000")
    assert sum(sched) == 6
    a(f"""
s_cmp_lt_u32 s3, 12
s_cbranch_scc1 {name}_noextra
s_add_u32 m0, s62, {84*1024}
s_add_u32 s14, s63, {84*1024}
buffer_load_dwordx4 v4, s[28:31], s14 offen{nt} lds
{name}_noextra:
""")
    dma(sched[0])
    a.srd(32, 12, E * 32, WS_EAS)
    a.srd(36, 12, E * 8, WS_META)
    a.srd(56, 12, E * 4, WS_KEY)
    a.srd(48, 12, NCH * 1024, WS_TAB)
    a(f"s_waitcnt vmcnt({2 + sched[0]})")
    stamp(1)
    a(f"""
s_mov_b64 exec, s[52:53]
s_cbranch_execz {name}_nohist
v_mov_b32 v5, 1
s_mov_b32 s14, {K1_LDS_HIST}
s_mov_b32 s15, {K1_LDS_HIST + 1024}
""")
    for k in range(4):
        a(f"""
v_and_b32 v{24+k}, 0xff, v{8+k}
v_lshrrev_b32 v{28+k}, {QSHIFT}, v{12+k}
v_bfe_u32 v1, v{8+k}, 5, 3
v_lshl_add_u32 v{24+k}, v{24+k}, 2, s14
v_lshl_add_u32 v{28+k}, v1, 5, v{28+k}
ds_add_rtn_u32 v{32+k}, v{24+k}, v5
v_lshl_add_u32 v{28+k}, v{28+k}, 2, s15
ds_add_rtn_u32 v{36+k}, v{28+k}, v5
""")
    a(f"""
{name}_nohist:
s_mov_b64 exec, -1
""")
    dma(sched[1])
    a(f"""
s_waitcnt lgkmcnt(0)
s_barrier
s_cmp_ge_u32 s3, 2
s_cbranch_scc1 {name}_noscan
v_add_u32 v7, {K1_LDS_HIST}, v2
ds_read_b128 v[40:43], v7
s_waitcnt lgkmcnt(0)
v_add_u32 v45, v40, v41
v_add_u32 v46, v45, v42
v_add_u32 v47, v46, v43
v_mov_b32 v44, v47
""")
    a.scan64(44)
    a(f"""
v_sub_u32 v44, v44, v47
v_add_u32 v47, v44, v46
v_add_u32 v46, v44, v45
v_add_u32 v45, v44, v40
ds_write_b128 v7, v[44:47]
s_cmp_eq_u32 s3, 0
s_cbranch_scc0 {name}_noscan
v_lshl_or_b32 v40, v40, 16, v44
v_lshl_or_b32 v41, v41, 16, v45
v_lshl_or_b32 v42, v42, 16, v46
v_lshl_or_b32 v43, v43, 16, v47
s_lshl_b32 s14, s2, 10
buffer_store_dwordx4 v[40:43], v2, s[48:51], s14 offen
{name}_noscan:
""")
    dma(sched[2])
    a(f"""
s_waitcnt lgkmcnt(0)
s_barrier
s_mov_b64 exec, s[52:53]
s_cbranch_execz {name}_noplace
""")
    for k in range(4):
        a(f"ds_read_b32 v{24+k}, v{24+k}\nds_read_b32 v{28+k}, v{28+k}")
    a(f"""
s_waitcnt vmcnt({sum(sched[:3])})
s_mov_b32 s14, 0x05040100
s_mov_b32 s15, 0x05040302
s_mov_b32 s45, 0x0c050100
s_mov_b32 s46, 0x06020100
v_mov_b32 v48, v16
v_alignbit_b32 v50, v18, v17, 16
v_mov_b32 v52, v19
v_alignbit_b32 v54, v21, v20, 16
""")
    for k in range(4): a(f"v_perm_b32 v{12+k}, v{8+k}, v{12+k}, s45")
    a(f"""
s_mov_b32 s47, {K1_LDS_META}
s_mov_b32 s60, {K1_LDS_META + CH*8}
s_mov_b32 s61, {K1_LDS_INV}
s_waitcnt lgkmcnt(0)
""")
    for k in range(4):
        a(f"""
v_add_u32 v{24+k}, v{24+k}, v{32+k}
v_add_u32 v{28+k}, v{28+k}, v{36+k}
v_add_u32 v23, s44, v{28+k}
v_lshl_add_u32 v22, v{24+k}, 3, s47
v_perm_b32 v{49+2*k}, v23, v{(17, 18, 20, 21)[k]}, s{14 + (k & 1)}
v_perm_b32 v23, v23, v{12+k}, s46
v_lshl_add_u32 v{24+k}, v{24+k}, 2, s60
v_lshl_add_u32 v{28+k}, v{28+k}, 1, s61
v_add_u32 v1, {k}, v6
ds_write_b64 v22, v[{48+2*k}:{49+2*k}]
ds_write_b32 v{24+k}, v23
ds_write_b16 v{28+k}, v1
""")
    a(f"""
{name}_noplace:
s_mov_b64 exec, -1
""")
    dma(sched[3])
    a(f"""
s_waitcnt lgkmcnt(0)
s_barrier
""")
    stamp(2)
    a(f"""
v_add_u32 v7, {K1_LDS_META}, v2
ds_read_b128 v[8:11], v7
ds_read_b128 v[12:15], v7 offset:16384
ds_read_b128 v[16:19], v7 offset:{CH*8}
v_and_b32 v1, 0x3fe, v0
v_add_u32 v1, {K1_LDS_INV}, v1
""")
    for j in range(7):
        a(f"ds_read_u16 v{24+j}, v1 offset:{1024*j}")
    a(f"""
s_add_u32 s14, s43, 16384
v_and_b32 v1, 1, v0
v_lshlrev_b32 v1, 4, v1
s_waitcnt lgkmcnt(0)
""")
    for j in range(7):
        a(f"v_lshl_add_u32 v{24+j}, v{24+j}, 5, v1")
    assert (CH*8//16 - 1024) % 64 == 0
    a(f"""
buffer_store_dwordx4 v[8:11], v2, s[36:39], s43 offen{stm}
s_mov_b64 exec, s[52:53]
s_cbranch_execz {name}_wait1
buffer_store_dwordx4 v[16:19], v2, s[56:59], s40 offen{stm}
s_cmp_ge_u32 s3, {(CH*8//16 - 1024)//64}
s_cbranch_scc1 {name}_wait2
buffer_store_dwordx4 v[12:15], v2, s[36:39], s14 offen{stm}
s_waitcnt vmcnt(3)
s_branch {name}_landed
{name}_wait1:
s_waitcnt vmcnt(1)
{name}_wait2:
s_waitcnt vmcnt(2)
{name}_landed:
s_mov_b64 exec, -1
""")
    stamp(3)
    a("s_barrier")
    stamp(4)
    for j in range(6):
        a(f"ds_read_b128 v[{32+4*j}:{35+4*j}], v{24+j}")
    a(f"""
s_cmp_ge_u32 s3, 4
s_cbranch_scc1 {name}_no7
ds_read_b128 v[56:59], v30
s_add_u32 s14, s42, {6*16384}
s_waitcnt lgkmcnt(0)
buffer_store_dwordx4 v[56:59], v2, s[32:35], s14 offen{st}
{name}_no7:
""")
    for j in range(6):
        a(f"""
s_waitcnt lgkmcnt({5-j})
buffer_store_dwordx4 v[{32+4*j}:{35+4*j}], v2, s[32:35], s42 offen{st}
s_add_u32 s42, s42, 16384
""")
    if stamps:
        stamp(5); a("s_waitcnt vmcnt(0)"); stamp(6)
        a.srd(16, 12, 1 << 20, 240 << 20)
        a("s_nop 0\ns_lshl_b32 s14, s2, 4\ns_add_u32 s14, s14, s3\ns_lshl_b32 s14, s14, 5\nv_mov_b32 v0, 0")
        for i in range(7): a(f"v_mov_b32 v1, s{90+i}\nbuffer_store_dword v1, v0, s[16:19], s14 offen offset:{4*i}")
    a(f"""
s_endpgm
{name}_weights:
s_load_dwordx4 s[56:59], s[0:1], {KA_WRAD}
s_load_dwordx2 s[60:61], s[0:1], {KA_WSI1}
s_sub_u32 s3, s2, {NCH}
s_lshl_b32 s3, s3, 4
v_lshrrev_b32 v1, 6, v0
v_and_b32 v2, 31, v0
v_readfirstlane_b32 s14, v1
v_bfe_u32 v3, v0, 5, 1
s_add_u32 s3, s3, s14
s_waitcnt lgkmcnt(0)
""")
    a.srd(16, 56, 16 * 640)
    a.srd(20, 58, 128 * 128)
    a.srd(24, 60, 192 * 128)
    a.srd(28, 12, 51200, WS_WR)
    a(f"""
s_cmp_ge_u32 s3, 50
s_cbranch_scc1 {name}_end
v_and_b32 v5, 63, v0
v_lshlrev_b32 v5, 4, v5
s_lshl_b32 s40, s3, 10
s_cmp_ge_u32 s3, 10
s_cbranch_scc1 {name}_wsi
v_mul_u32_u24 v4, {8*640}, v3
v_lshl_add_u32 v4, v2, 1, v4
s_lshl_b32 s15, s3, 6
""")
    for k in range(8):
        a(f"buffer_load_ushort v{8+k}, v4, s[16:19], s15 offen\ns_add_u32 s15, s15, 640")
    a(f"""
s_branch {name}_wpack
{name}_wsi:
s_sub_u32 s14, s3, 10
v_lshlrev_b32 v4, 10, v3
v_lshl_add_u32 v4, v2, 2, v4
s_and_b32 s15, s14, 1
s_lshl_b32 s15, s15, 1
s_lshr_b32 s14, s14, 1
s_lshl_b32 s41, s14, 11
s_add_u32 s15, s15, s41
s_cmp_ge_u32 s14, 8
s_cbranch_scc1 {name}_wsi1
""")
    for k in range(8):
        a(f"buffer_load_ushort v{8+k}, v4, s[20:23], s15 offen offset:{128*k}")
    a(f"""
s_branch {name}_wpack
{name}_wsi1:
s_sub_u32 s15, s15, {128*128}
""")
    for k in range(8):
        a(f"buffer_load_ushort v{8+k}, v4, s[24:27], s15 offen offset:{128*k}")
    a(f"""
{name}_wpack:
s_waitcnt vmcnt(0)
v_lshl_or_b32 v16, v9, 16, v8
v_lshl_or_b32 v17, v11, 16, v10
v_lshl_or_b32 v18, v13, 16, v12
v_lshl_or_b32 v19, v15, 16, v14
buffer_store_dwordx4 v[16:19], v5, s[28:31], s40 offen
{name}_end:
s_endpgm
""")
    return a.text()
```

```python
from common import *

NSLOT = 3704
CAPW = NSLOT - 120
L_WR = 0
L_MT = 10240
L_FLAG = L_MT + 128
L_INV = L_MT + 256
L_YS = L_INV + 256
L_PT = L_YS + NSLOT * 8
L_RING = 56320
RING = 13440
LINE = 4160
RB_EA = 12416
RA_EA = 6144
RA_WS = 7680
TILE = 3584
K2_LDS = L_RING + 8 * RING
assert L_PT + NSLOT * 4 <= L_RING and CAPW <= 7 * 512 and K2_LDS == 163840
L_HIST = L_RING
L_DEG = L_HIST + 1024
L_BASE = L_DEG + 1024
L_MAP = L_BASE + 1024
L_CNT = L_MAP + 1024
L_WTOT = L_CNT + 256
L_IDXL = L_WTOT + 64
OOB = 0x40000
XB, EB = N * 512, E * 32

S_WAVE, S_SB, S_RING, S_WBASE, S_TOTAL, S_WCNT, S_START, S_NB, S_REM = 3, 32, 33, 34, 35, 36, 37, 38, 39
SRD_X, SRD_E, SRD_T, SRD_O, SRD_W, SRD_M, SRD_S = 4, 8, 12, 16, 20, 24, 28
S_IDX = (40, 44)
S_T0, S_T1, S_T2, S_T3 = 48, 49, 50, 51
S_MASK = 52
S_VAL, S_ADV, S_HALF, S_ROT = 80, 81, 82, 83
SRD_K = 84
SRD_I = 88
S_LND, S_IOF, S_512, S_IBASE = 44, 92, 78, 70
S_VON, S_VOFF, S_PADDR, S_PINC, S_PSGN, S_PVAL, S_PF, S_PFO = 68, 69, 70, 71, 66, 67, 78, 79

def srd(d): return f"s[{d}:{d+3}]"
def vr(b, n): return f"v[{b}:{b+n-1}]"

class DS:
    def __init__(self, a, init=()):
        self.a, self.q = a, list(init)
    def op(self, tag, text):
        self.a(text); self.q.append(tag)
    def need(self, *tags, vm=None):
        idx = [i for i, t in enumerate(self.q) if t in tags]
        if not idx:
            if vm is not None: self.a(f"s_waitcnt vmcnt({vm})")
            return False
        n = len(self.q) - 1 - max(idx)
        self.a(f"s_waitcnt {'' if vm is None else 'vmcnt(%d) ' % vm}lgkmcnt({min(n, 15)})")
        self.q = self.q[len(self.q) - min(n, 15):] if n else []
        return True
    def drain(self):
        if self.q: self.a("s_waitcnt lgkmcnt(0)")
        self.q = []

def rho(v_dst, v_e, tmp):
    return f"""
v_bfe_u32 v{v_dst}, v{v_e}, 1, 2
v_and_b32 v{tmp}, 1, v{v_e}
v_lshl_or_b32 v{v_dst}, v{tmp}, 2, v{v_dst}
v_and_or_b32 v{v_dst}, v{v_e}, 8, v{v_dst}
"""

def prologue(a, name, opt):
    a(f"""
{name}:
s_cmp_ge_u32 s2, 256
s_cbranch_scc1 {name}_end
""")
    stamp(a, opt, 1, 5)
    a(f"""
s_load_dwordx2 s[72:73], s[0:1], {KA_X}
s_load_dwordx2 s[74:75], s[0:1], {KA_OUT}
s_load_dwordx2 s[76:77], s[0:1], {KA_WS}
v_lshrrev_b32 v1, 6, v0
s_and_b32 s{S_SB}, s2, 7
v_readfirstlane_b32 s{S_WAVE}, v1
s_lshl_b32 s{S_SB}, s{S_SB}, 5
s_lshr_b32 s{S_T0}, s2, 3
s_add_u32 s{S_SB}, s{S_SB}, s{S_T0}
s_mul_i32 s{S_RING}, s{S_WAVE}, {RING}
s_add_u32 s{S_RING}, s{S_RING}, {L_RING}
s_mov_b32 s{S_VON}, {0x80000000 if opt.get('nomem') else 0}
s_mov_b32 s{S_VOFF}, 0x80000000
s_mov_b32 s{S_WBASE}, 0
{name}_window:
v_mbcnt_lo_u32_b32 v16, -1, 0
v_mbcnt_hi_u32_b32 v16, -1, v16
v_lshlrev_b32 v0, 4, v16
s_lshl_b32 s{S_T0}, s{S_WAVE}, 6
v_add_u32 v17, s{S_T0}, v16
v_lshrrev_b32 v26, 1, v17
v_lshlrev_b32 v19, 10, v26
s_lshl_b32 s{S_T1}, s{S_SB}, 2
s_waitcnt lgkmcnt(0)
""")
    stamp(a, opt, 0)
    a.srd(SRD_T, 76, NCH * 1024, WS_TAB)
    a(f"""
buffer_load_dword v27, v19, {srd(SRD_T)}, s{S_T1} offen
v_mov_b32 v21, 0
""")
    a.srd(SRD_X, 72, XB)
    a.srd(SRD_E, 76, EB, WS_EAS)
    a.srd(SRD_O, 74, XB)
    a.srd(SRD_W, 76, 51200, WS_WR)
    a.srd(SRD_M, 76, E * 8, WS_META)
    a.srd(SRD_K, 76, E * 4, WS_KEY)
    a.srd(SRD_S, 76, 256 * 8 * 128 * 256, WS_SCR)
    a.srd(SRD_I, 76, 256 * 8192, WS_ID)
    mt = [0x05040c0c, 0x03020c0c, 0x80000000, 0,
              0x0c0c0504, 0x01000c0c, 0x8000, 0,
              0x01000302, 0x0c0c0c0c, 0x8000, 0,
              0x03020100, 0x05040c0c, 0, 0,
              0x0c0c0100, 0, 0x0c0c0302, 0, 0x0c0c0504, 0, 0x0c0c0c0c, 0x3f80,
              0x01000c0c, 0, 0x03020c0c, 0, 0x05040c0c, 0, 0x0c0c0c0c, 0x3f800000]
    a(f"""
v_lshlrev_b32 v22, 2, v17
ds_write_b32 v22, v21 offset:{L_HIST}
v_lshlrev_b32 v22, 2, v16
v_mov_b32 v23, -1
v_mov_b32 v63, v17
s_cmp_lg_u32 s{S_WAVE}, 7
s_cbranch_scc1 {name}_nomt
ds_write_b32 v22, v21 offset:{L_CNT}
ds_write_b32 v22, v23 offset:{L_INV}
""")
    for i, c in enumerate(mt):
        if c: a(f"s_mov_b32 s{S_T1}, {c:#x}\nv_writelane_b32 v21, s{S_T1}, {i}")
    a(f"""
ds_write_b32 v22, v21 offset:{L_MT}
{name}_nomt:
""")
    lane_consts_b(a)
    npf0, npf = opt.get('pf0', 1), opt.get('prefetch', 1)
    a(f"""
s_getreg_b32 s{S_ROT}, hwreg(HW_REG_XCC_ID, 0, 3)
s_mul_i32 s{S_ROT}, s{S_ROT}, {opt.get('rot', 25)}
s_add_u32 s{S_ROT}, s{S_ROT}, 8
s_lshr_b32 s{S_ROT}, s{S_ROT}, 4
s_lshr_b32 s{S_PFO}, s2, 3
s_lshl_b32 s{S_PFO}, s{S_PFO}, 15
s_lshl_b32 s{S_T0}, s{S_ROT}, 21
s_add_u32 s{S_PFO}, s{S_PFO}, s{S_T0}
s_sub_u32 s{S_ROT}, 16, s{S_ROT}
s_lshl_b32 s{S_ROT}, s{S_ROT}, 12
v_lshrrev_b32 v8, 3, v63
v_and_b32 v9, 3, v63
v_max_u32 v9, 1, v9
v_lshlrev_b32 v9, 7, v9
v_lshl_add_u32 v8, v8, 9, v9
s_waitcnt vmcnt(0)
""")
    stamp(a, opt, 1, 1)
    def warm(n):
        for _ in range(n): a(f"buffer_load_dword v9, v8, {srd(SRD_X)}, s{S_PFO} offen\ns_add_u32 s{S_PFO}, s{S_PFO}, {1 << 20}")
    warm(npf0)
    if opt.get('tlb'):
        a(f"v_lshlrev_b32 v15, {opt['tlb']}, v63\nbuffer_load_dword v9, v15, {srd(SRD_E)}, 0 offen\nbuffer_load_dword v9, v15, {srd(SRD_X)}, 0 offen")
    a(f"""
s_lshl_b32 s{S_T1}, s{S_WAVE}, 10
s_mov_b32 m0, s{S_T1}
s_and_b32 s{S_T2}, s{S_T1}, 1024
buffer_load_dwordx4 v0, {srd(SRD_W)}, s{S_T1} offen lds
s_add_u32 s{S_T2}, s{S_T2}, 8192
s_mov_b32 m0, s{S_T2}
s_nop 0
buffer_load_dwordx4 v0, {srd(SRD_W)}, s{S_T2} offen lds
v_lshrrev_b32 v21, 16, v27
v_and_b32 v20, 0xffff, v27
v_and_b32 v23, 1, v16
v_cmp_eq_u32 vcc, 0, v23
s_nop 1
v_cndmask_b32 v22, 0, v21, vcc
""")
    a.scan64(22)
    a(f"""
s_nop 0
v_readlane_b32 s{S_T0}, v22, 63
s_lshl_b32 s{S_T1}, s{S_WAVE}, 2
s_add_u32 s{S_T1}, s{S_T1}, {L_WTOT}
v_mov_b32 v24, s{S_T1}
v_mov_b32 v25, s{S_T0}
ds_write_b32 v24, v25
v_and_b32 v24, 7, v16
v_lshlrev_b32 v24, 2, v24
v_add_u32 v24, {L_WTOT}, v24
v_sub_u32 v22, v22, v21
v_mul_u32_u24 v18, {CH}, v26
v_add_u32 v20, v20, v18
s_waitcnt lgkmcnt(0)
s_barrier
ds_read_b32 v25, v24
s_waitcnt lgkmcnt(0)
""")
    for sh in (1, 2, 4):
        a(f"s_nop 1\nv_add_u32_dpp v25, v25, v25 row_shr:{sh} row_mask:0xf bank_mask:0xf bound_ctrl:0")
    a(f"""
s_nop 0
v_readlane_b32 s{S_TOTAL}, v25, 7
v_readlane_b32 s{S_T1}, v25, s{S_WAVE}
s_sub_u32 s{S_T1}, s{S_T1}, s{S_T0}
s_sub_u32 s{S_T1}, s{S_T1}, s{S_WBASE}
s_sub_u32 s{S_WCNT}, s{S_TOTAL}, s{S_WBASE}
s_min_u32 s{S_WCNT}, s{S_WCNT}, {CAPW}
v_add_u32 v22, s{S_T1}, v22
v_sub_u32 v24, 0, v22
v_max_i32 v24, 0, v24
v_sub_u32 v25, {CAPW}, v22
v_min_i32 v25, v25, v21
v_add_u32 v24, v24, v23
v_sub_u32 v20, v20, v22
v_sub_u32 v25, v25, v24
v_add_lshl_u32 v22, v22, v24, 2
{name}_expand:
""")
    for k in range(8):
        a(f"v_cmpx_lt_i32 vcc, {2*k}, v25")
        if k in (0, 4): a(f"s_cbranch_execz {name}_expanded")
        a(f"ds_write_b32 v22, v20 offset:{L_IDXL + 8*k}")
    a(f"""
v_add_u32 v22, 64, v22
v_subrev_u32 v25, 16, v25
s_branch {name}_expand
{name}_expanded:
s_mov_b64 exec, -1
v_lshlrev_b32 v22, 2, v63
v_add_u32 v22, {L_IDXL}, v22
""")
    REC, RK, BA, PAD = 24, 56, 64, 72
    for j in range(7):
        a(f"v_add_u32 v{BA+j}, {512*j}, v63\nv_cmp_gt_u32 s[{S_MASK+2*j}:{S_MASK+2*j+1}], s{S_WCNT}, v{BA+j}")
    a("v_bfrev_b32 v23, 2")
    a("s_waitcnt lgkmcnt(0)\ns_barrier")
    stamp(a, opt, 2, 1)
    def pay(js):
        for j in js: a(f"buffer_load_dwordx2 {vr(REC+4*j,2)}, v{PAD+j}, {srd(SRD_M)}, 0 offen")
    for j in range(7): a(f"ds_read_b32 v{RK+j}, v22 offset:{2048*j}")
    for j in range(7):
        a(f"""
s_waitcnt lgkmcnt({6-j})
v_add_lshl_u32 v{RK+j}, v{RK+j}, v{BA+j}, 2
v_cndmask_b32 v{RK+j}, v23, v{RK+j}, s[{S_MASK+2*j}:{S_MASK+2*j+1}]
buffer_load_dword v{REC+4*j+2}, v{RK+j}, {srd(SRD_K)}, 0 offen
""")
    stamp(a, opt, 1, 3)
    for j in range(7): a(f"v_lshlrev_b32 v{PAD+j}, 1, v{RK+j}")
    a(f"v_and_b32 v17, 48, v0\nds_read_b128 {vr(MT,4)}, v17 offset:{L_MT}")
    zero(a, ACC, opt.get('z0', 180))
    def mask(j): return f"s_mov_b64 exec, s[{S_MASK+2*j}:{S_MASK+2*j+1}]"
    a("; ---- node degrees; nodes are ranked by degree and dealt to the waves in snake order\nv_mov_b32 v23, 1")
    for j in range(7):
        a(f"""
s_waitcnt vmcnt({6-j})
v_bfe_u32 v{BA+j}, v{REC+4*j+2}, 16, 8
{mask(j)}
v_lshlrev_b32 v{BA+j}, 2, v{BA+j}
v_add_u32 v{RK+j}, s{S_ROT}, v{REC+4*j+2}
ds_add_u32 v{BA+j}, v23 offset:{L_DEG}
v_bfe_u32 v{RK+j}, v{RK+j}, 11, 5
v_lshlrev_b32 v{RK+j}, 2, v{RK+j}
""")
        if j == 0: stamp(a, opt, 2, 3)
        if j == 6: stamp(a, opt, 3, 3)
    a("s_mov_b64 exec, -1")
    stamp(a, opt, 4, 3)
    a(f"""
v_lshlrev_b32 v22, 2, v63
v_cmp_gt_u32 vcc, 200, v63
s_waitcnt lgkmcnt(0)
s_barrier
""")
    stamp(a, opt, 1, 2)
    stamp(a, opt, 5, 3)
    a(f"s_cmp_lt_u32 s{S_WAVE}, 4\ns_cbranch_scc1 {name}_rank")
    pay(range(4))
    a("s_barrier")
    pay(range(4, 7))
    a(f"s_branch {name}_nomap\n{name}_rank:")
    a(f"""
s_and_b64 exec, exec, vcc
ds_read_b32 v21, v22 offset:{L_DEG}
s_waitcnt lgkmcnt(0)
v_min_u32 v21, 63, v21
v_sub_u32 v21, 63, v21
v_lshlrev_b32 v21, 2, v21
ds_add_rtn_u32 v20, v21, v23 offset:{L_CNT}
s_mov_b64 exec, -1
v_lshlrev_b32 v19, 2, v16
s_waitcnt lgkmcnt(0)
s_barrier
""")
    stamp(a, opt, 2, 2)
    a(f"""
ds_read_b32 v18, v19 offset:{L_CNT}
s_waitcnt lgkmcnt(0)
v_mov_b32 v19, v18
""")
    a.scan64(19)
    a(f"""
v_sub_u32 v19, v19, v18
ds_bpermute_b32 v19, v21, v19
s_cmp_lg_u32 s{S_TOTAL}, s{S_WCNT}
s_cselect_b64 s[{S_T2}:{S_T3}], -1, 0
s_and_b64 exec, exec, vcc
s_waitcnt lgkmcnt(0)
v_add_u32 v19, v19, v20
v_cndmask_b32 v19, v19, v63, s[{S_T2}:{S_T3}]
v_lshrrev_b32 v18, 3, v19
v_bfe_i32 v20, v19, 3, 1
v_xor_b32 v19, v19, v20
v_and_b32 v19, 7, v19
v_lshl_add_u32 v20, v19, 5, v18
ds_write_b8 v20, v63 offset:{L_INV}
v_lshl_or_b32 v18, v19, 23, v18
ds_write_b32 v22, v18 offset:{L_MAP}
s_mov_b64 exec, -1
{name}_nomap:
""")
    a("s_waitcnt lgkmcnt(0)\ns_barrier")
    stamp(a, opt, 3, 2)
    for j in range(7): a(f"ds_read_b32 v{REC+4*j+3}, v{BA+j} offset:{L_MAP}")
    a(f"s_cmp_ge_u32 s{S_WAVE}, 4\ns_cbranch_scc1 {name}_nopay1")
    pay(range(3))
    a(f"{name}_nopay1:\ns_waitcnt lgkmcnt(0)")
    for j in range(7):
        a(f"v_add_u32_sdwa v{BA+j}, v{RK+j}, v{REC+4*j+3} dst_sel:DWORD dst_unused:UNUSED_PAD src0_sel:DWORD src1_sel:WORD_1")
    for j in range(7): a(f"{mask(j)}\nds_add_rtn_u32 v{RK+j}, v{BA+j}, v23 offset:{L_HIST}")
    a(f"s_mov_b64 exec, -1\ns_cbranch_scc1 {name}_nopay2")
    pay(range(3, 7))
    a(f"{name}_nopay2:")
    stamp(a, opt, 3, 1)
    a(f"""
s_waitcnt lgkmcnt(0)
s_barrier
""")
    stamp(a, opt, 4, 2)
    stamp(a, opt, 1, 6)
    a(f"""
ds_read_b128 v[72:75], v0 offset:{L_HIST}
""")
    warm(npf)
    a(f"""
s_waitcnt lgkmcnt(0)
v_add_u32 v77, v72, v73
v_add_u32 v78, v77, v74
v_add_u32 v79, v78, v75
v_mov_b32 v71, v79
""")
    for sh in (1, 2, 4):
        a(f"s_nop 1\nv_add_u32_dpp v71, v71, v71 row_shr:{sh} row_mask:0xf bank_mask:0xf bound_ctrl:0")
    a(f"""
v_and_b32 v23, 7, v16
v_cmp_eq_u32 vcc, 7, v23
v_sub_u32 v76, 0, v71
v_and_b32 v76, 15, v76
v_cndmask_b32 v76, 0, v76, vcc
v_add_u32 v79, v79, v76
v_mov_b32 v76, v79
""")
    a.scan64(76)
    a(f"""
v_sub_u32 v76, v76, v79
v_add_u32 v79, v76, v78
v_add_u32 v78, v76, v77
v_add_u32 v77, v76, v72
ds_write_b128 v0, v[76:79] offset:{L_BASE}
s_lshl_b32 s{S_T0}, s{S_WAVE}, 3
s_add_u32 s{S_T1}, s{S_T0}, 7
v_readlane_b32 s{S_START}, v76, s{S_T0}
v_readlane_b32 s{S_T2}, v71, s{S_T1}
""")
    for j in range(7): a(f"ds_read_b32 v{BA+j}, v{BA+j} offset:{L_BASE}")
    a(f"""
s_add_u32 s{S_NB}, s{S_T2}, 15
s_lshr_b32 s{S_NB}, s{S_NB}, 4
s_lshl_b32 s{S_T3}, s{S_NB}, 4
s_sub_u32 s{S_HALF}, s{S_T3}, s{S_T2}
s_cmp_ge_u32 s{S_HALF}, 8
s_cselect_b32 s{S_HALF}, 0, -2
s_mov_b32 s{S_ADV}, 0
{'s_mov_b32 s89, 0' if opt.get('vmstat') else ''}
v_add_u32 v23, s{S_T2}, v16
v_cmp_gt_u32 vcc, s{S_T3}, v23
v_add_u32 v23, s{S_START}, v23
v_mov_b32 v18, 0
v_mov_b32 v19, 0xffff0000
v_mov_b32 v20, 0x1fffffe0
v_lshlrev_b32 v21, 3, v23
v_lshlrev_b32 v22, 2, v23
s_and_b64 exec, exec, vcc
ds_write_b64 v21, v[18:19] offset:{L_YS}
ds_write_b32 v22, v20 offset:{L_PT}
s_mov_b64 exec, -1
s_waitcnt lgkmcnt(0)
""")
    stamp(a, opt, 5, 2)
    stamp(a, opt, 2, 6)
    a(f"s_mov_b32 s{S_T0}, 0x0c070302\ns_mov_b32 s{S_T1}, 0x05040100\ns_waitcnt vmcnt({npf})")
    stamp(a, opt, 3, 6)
    for j in range(7):
        a(f"""
{mask(j)}
v_perm_b32 v20, v{REC+4*j+2}, v{REC+4*j+1}, s{S_T0}
v_perm_b32 v{REC+4*j+1}, v{REC+4*j+2}, v{REC+4*j+1}, s{S_T1}
v_lshlrev_b32 v20, 5, v20
v_add_lshl_u32 v21, v{BA+j}, v{RK+j}, 3
v_add_lshl_u32 v22, v{BA+j}, v{RK+j}, 2
v_and_or_b32 v{REC+4*j+2}, v{REC+4*j+3}, 31, v20
ds_write_b64 v21, {vr(REC+4*j,2)} offset:{L_YS}
ds_write_b32 v22, v{REC+4*j+2} offset:{L_PT}
""")
    a("s_mov_b64 exec, -1")
    stamp(a, opt, 4, 6)

def list_lanes(a):
    a("v_lshrrev_b32 v17, 3, v16")
    a(rho(2, 17, 18))
    a("v_lshrrev_b32 v17, 2, v16")
    a(rho(3, 17, 18))
    a("v_bfe_u32 v17, v16, 1, 4")
    a(rho(4, 17, 18))
    a("v_and_b32 v14, 0x70, v0")

def list_addrs(a):
    a(f"""
v_add_lshl_u32 v2, v2, s{S_START}, 3
v_add_u32 v2, {L_YS + 4}, v2
v_add_lshl_u32 v3, v3, s{S_START}, 3
v_add_lshl_u32 v4, v4, s{S_START}, 2
""")

def ea_addrs(a, v_a0, v_a1, ring_off):
    a(f"""
v_bfe_u32 v17, v16, 3, 2
v_and_b32 v18, 3, v16
v_lshl_or_b32 v17, v17, 2, v18
v_lshlrev_b32 v17, 5, v17
v_lshrrev_b32 v18, 5, v16
v_lshl_or_b32 v17, v18, 4, v17
v_bfe_u32 v18, v16, 2, 1
v_mul_u32_u24 v18, {OOB + 16}, v18
v_xor_b32 v17, v18, v17
s_add_u32 s{S_T0}, s{S_RING}, {ring_off}
v_add_u32 v{v_a0}, s{S_T0}, v17
v_xor_b32 v17, {OOB + 16}, v17
v_add_u32 v{v_a1}, s{S_T0}, v17
""")

def valid(a, k):
    a(f"""
s_cmp_ge_i32 s{S_REM}, {k}
s_cselect_b32 s{S_VAL}, s{S_VON}, s{S_VOFF}
""")

def dma_e(a, v, off, restore=True):
    a(f"""
s_add_u32 m0, s{S_RING}, {off}
s_mov_b32 exec_hi, 0
buffer_load_dwordx4 v{v}, {srd(SRD_E)}, s{S_VAL} offen lds
""")
    if restore: a("s_mov_b32 exec_hi, -1")

def zero(a, lo, hi):
    if lo & 1 and lo < hi: a(f"v_mov_b32 v{lo}, 0"); lo += 1
    for r in range(lo, hi, 2): a(f"v_mov_b64 {vr(r,2)}, 0")

def align(a, k):
    if k is None: return
    a(".p2alignl 5, 0xbf800000")
    for _ in range(k): a("s_nop 0")

def idload(): return f"s_buffer_load_dwordx4 s[{S_LND}:{S_LND+3}], {srd(SRD_I)}, s{S_IOF}\ns_add_u32 s{S_IOF}, s{S_IOF}, 16"
def rowaddr(d, w): return f"v_mad_u32_u16 v{d}, v{w}, s{S_512}, v14 op_sel:[1,0,0,0]"

def prio_init(a):
    a(f"""
s_max_u32 s{S_T0}, s{S_NB}, 1
v_cvt_f32_u32 v17, s{S_T0}
v_rcp_f32 v17, v17
s_and_b32 s{S_PADDR}, s{S_WAVE}, 3
s_lshl_b32 s{S_PADDR}, s{S_PADDR}, 2
v_mul_f32 v17, 0x47800000, v17
s_add_u32 s{S_PADDR}, s{S_PADDR}, {L_FLAG + 16}
v_cvt_u32_f32 v17, v17
s_cmp_ge_u32 s{S_WAVE}, 4
s_cselect_b32 s{S_PSGN}, -1, 1
v_readfirstlane_b32 s{S_PINC}, v17
s_mul_i32 s{S_PINC}, s{S_PINC}, s{S_PSGN}
s_mov_b32 s{S_PVAL}, 0
""")
def young_prio(a, lvl): a(f"s_setprio 1\ns_cmp_lt_u32 s{S_WAVE}, 4\ns_cbranch_scc1 1\ns_setprio {lvl}")
def prio_addr(va, vd): return [f"v_lshl_add_u32 v{va}, v0, 14, s{S_PADDR}", f"v_mov_b32 v{vd}, s{S_PINC}"]
def prio_add(va, vd): return ("pr", f"ds_add_rtn_u32 v{vd}, v{va}, v{vd}")
def prio_read(vd): return [f"v_readfirstlane_b32 s{S_PVAL}, v{vd}", f"s_mul_i32 s{S_PVAL}, s{S_PVAL}, s{S_PSGN}"]
def prio_set(base=0):
    return [f"s_cmp_ge_i32 s{S_PVAL}, 0", f"s_setprio {base}", "s_cbranch_scc1 1", f"s_setprio {base+1}"]

M3, M1, XR, G, T1, T2, T3, ACC = 6, 8, (10, 12), (16, 24), 32, 48, 64, 81

def dma_x(a, v, slot, fill):
    for b in range(3):
        a(f"s_add_u32 m0, s{S_RING}, {b*LINE + slot*1024 - 128*(b+1)}")
        a(fill[b] if b < len(fill) else "s_nop 0")
        a(f"buffer_load_dwordx4 v{v}, {srd(SRD_X)}, s{S_VAL} offen offset:{128*(b+1)} lds")

GG, XX, MT, EC = 16, (20, 24, 28), 10, 7

def lane_consts_b(a):
    list_lanes(a)
    ea_addrs(a, 5, 80, RB_EA)
    a(f"""
v_lshrrev_b32 v18, 4, v16
v_lshlrev_b32 v17, 5, v18
v_and_b32 v18, 3, v16
v_lshl_add_u32 v17, v18, 3, v17
v_add_u32 v17, s{S_RING}, v17
v_bfe_u32 v18, v16, 2, 2
v_min_u32 v19, 2, v18
v_mul_u32_u24 v19, {LINE}, v19
v_cmp_eq_u32 vcc, 2, v18
v_mov_b32 v20, {OOB + 192}
v_bfe_u32 v21, v16, 3, 1
v_cndmask_b32 v19, v19, v20, vcc
v_add_u32 v1, v17, v19
v_and_b32 v18, 1, v18
v_cmp_eq_u32 vcc, 0, v18
v_mul_u32_u24 v21, {LINE}, v21
s_nop 0
v_cndmask_b32 v21, v21, v20, vcc
v_add_u32 v6, v17, v21
""")

def pass_b(a, name, opt):
    si = S_IDX[0]
    prio = opt.get('prio', 3)
    VM = opt.get('vm', (11, 7))
    PHB = opt.get('phb', {0: 2, 20: 0, 32: 2, 52: 0})
    def xread(ds, p, e):
        o = ((2*p + (e >> 3)) & 3)*1024 + (e & 7)*128
        ds.op(f"x{e}", f"ds_read_b64_tr_b16 {vr(XX[e%3],2)}, v1 offset:{o}")
        ds.op(f"x{e}", f"ds_read_b64_tr_b16 {vr(XX[e%3]+2,2)}, v6 offset:{o}")
    def wr(tag, dst, path, h): return (f"{tag}{h}", f"ds_read_b128 {vr(dst,4)}, v0 offset:{L_WR + (path*2+h)*1024}")
    W1 = [wr("W1", T3+4*h, 3, h) for h in range(2)]
    W2 = [wr("W2", T3+8+4*h, 4, h) for h in range(2)]
    W3 = [wr("W3", (XX[0], GG)[h], 1, h) for h in range(2)]
    AR = (XX[1], XX[2])
    def ar(p, h): return (f"A{h}", f"ds_read_b128 {vr(AR[h],4)}, v{(5, 80)[h]} offset:{p*512}")
    def tail_reads(off):
        return [("ys", f"ds_read_b64 {vr(T2,2)}, v3 offset:{L_YS + 128*off}"),
                ("pt", f"ds_read_b32 v{T2+3}, v4 offset:{L_PT + 64*(off+2)}"),
                ("sr", f"ds_read2_b32 v[12:13], v2 offset0:{32*off + 48} offset1:{32*off + 64}")]
    if opt.get('solo'): a(f"s_cmp_ge_u32 s{S_WAVE}, 4\ns_cselect_b32 s{S_NB}, 0, s{S_NB}")
    if prio in (1, 2):
        prio_init(a)
        a(prio_addr(7, 0)[0])
    list_addrs(a)
    a(f"""
v_mov_b32 v7, v{MT+2}
s_movk_i32 s{S_512}, 512
s_lshl_b32 s{S_T0}, s2, 7
s_add_u32 s{S_T0}, s{S_T0}, s{S_WAVE}
s_add_u32 s{S_IBASE}, s{S_START}, 63
s_lshr_b32 s{S_IBASE}, s{S_IBASE}, 6
s_add_u32 s{S_IBASE}, s{S_IBASE}, s{S_T0}
s_lshl_b32 s{S_IBASE}, s{S_IBASE}, 6
s_add_u32 s{S_IOF}, s{S_IBASE}, 16
s_lshl_b32 s{S_T1}, s{S_NB}, 4
s_max_u32 s{S_T0}, s{S_T1}, 1
s_sub_u32 s{S_T0}, s{S_T0}, 1
s_and_b32 s{S_T0}, s{S_T0}, 0xff00
s_mov_b32 s{S_T2}, 0x0c0c0400
s_mov_b32 s{S_T3}, 0x04000c0c
v_lshrrev_b32 v15, 2, v0
""")
    if opt.get('ahead', 0):
        a(f"""
s_lshl_b32 s{S_T0}, s{S_WAVE}, 8
s_add_u32 s{S_T0}, s{S_T0}, s2
s_lshl_b32 s{S_PFO}, s{S_T0}, 14
s_sub_u32 s{S_T0}, {1563 + opt.get('lead', 190)}, s{S_T0}
s_mul_i32 s{S_T0}, s{S_T0}, s{S_NB}
s_mul_i32 s{S_T0}, s{S_T0}, 42
s_ashr_i32 s{S_PF}, s{S_T0}, 16
""")
    a(f"""
s_sub_u32 s{S_REM}, s{S_NB}, 1
s_waitcnt lgkmcnt(0)
s_barrier
""")
    stamp(a, opt, 1)
    stamp(a, opt, 4, 1)
    stamp(a, opt, 5, 6)
    ds = DS(a)
    for t in range(2): ds.op(f"pt{t}", f"ds_read_b32 v{T1+8+t}, v4 offset:{L_PT + 64*t}")
    for h in range(3): ds.op(f"sr{h}", f"ds_read_u16 v{T1+10+h}, v2 offset:{2 + 64*h}")
    for op in tail_reads(0) + W1: ds.op(*op)
    ds.need("sr2")
    for t in range(2): a(f"v_bfi_b32 v{T1+8+t}, 31, v0, v{T1+8+t}")
    for h in range(3): a(f"v_lshl_or_b32 v{T1+10+h}, v{T1+10+h}, 9, v14")
    valid(a, 0)
    dma_e(a, T1+8, RB_EA)
    dma_x(a, T1+10, 0, [])
    a(f"""
{name}_idcopy:
v_add_u32 v{T2+12}, s{S_T0}, v15
v_add_lshl_u32 v{T2+13}, v{T2+12}, s{S_START}, 2
v_cmp_gt_u32 vcc, s{S_T1}, v{T2+12}
ds_read_b128 {vr(T2+8,4)}, v{T2+13} offset:{L_PT}
v_bfrev_b32 v{T2+13}, 1
v_cndmask_b32 v{T2+12}, v{T2+13}, v{T2+12}, vcc
s_waitcnt lgkmcnt(0)
v_perm_b32 v{T2+8}, v{T2+9}, v{T2+8}, s{S_T2}
v_perm_b32 v{T2+10}, v{T2+11}, v{T2+10}, s{S_T3}
v_or_b32 v{T2+8}, v{T2+8}, v{T2+10}
v_and_b32 v{T2+8}, 0x1f1f1f1f, v{T2+8}
s_sub_u32 s{S_T0}, s{S_T0}, 256
buffer_store_dword v{T2+8}, v{T2+12}, {srd(SRD_I)}, s{S_IBASE} offen
s_cbranch_scc0 {name}_idcopy
""")
    for i in range(4): a(f"v_readlane_b32 s{S_LND+i}, v{T2+8}, {i}")
    zero(a, opt.get('z0', 180), opt.get('z1', 256))
    dma_x(a, T1+11, 1, [])
    def deeper():
        valid(a, 1)
        dma_e(a, T1+9, RB_EA + 512)
        dma_x(a, T1+12, 2, [])
    late = opt.get('late', 0)
    if not late: deeper()
    zero(a, opt.get('z1', 256), 256)
    a(f"s_cmp_eq_u32 s{S_NB}, 0\ns_cbranch_scc1 {name}_b_done")
    ds.drain()
    a(f"""
s_lshl_b32 s{S_T1}, s{S_NB}, 4
s_add_u32 s{S_T1}, s{S_T1}, s{S_IBASE}
s_mov_b32 s{S_T0}, s{S_IBASE}
s_waitcnt vmcnt({3 if late else 7})
s_cmp_eq_u32 s{S_WBASE}, 0
s_cbranch_scc1 {name}_idfresh
{name}_idwarm:
s_buffer_load_dword s{S_T2}, {srd(SRD_I)}, s{S_T0}{opt.get('wglc', ' glc')}
s_add_u32 s{S_T0}, s{S_T0}, 64
s_cmp_le_u32 s{S_T0}, s{S_T1}
s_cbranch_scc1 {name}_idwarm
s_waitcnt lgkmcnt(0)
{name}_idfresh:
""")
    stamp(a, opt, 5, 1)
    for op in (ar(0, 0), W2[0], ar(0, 1)): ds.op(*op)
    if late: deeper()
    entry = list(ds.q)
    align(a, opt.get('alb'))
    a(f"{name}_b_loop:")
    UB = opt.get('ub', 2)
    for t in range(UB):
        p = t & 1
        ds = DS(a, entry)
        def big(tag, tile, w, h):
            ds.need(f"A{h}", f"{tag}{h}")
            a(f"v_mfma_f32_32x32x16_bf16 {vr(tile,16)}, {vr(AR[h],4)}, {vr(w,4)}, {vr(tile,16) if h else 0}")
        def m0x(b, slot): return f"s_add_u32 m0, s{S_RING}, {b*LINE + slot*1024 - 128*(b+1)}"
        def setidx(e):
            r, k = si + 2*(e >> 3) + (e & 1), (e >> 1) & 3
            return f"s_lshr_b32 m0, s{r}, 24" if k == 3 else f"s_bfe_u32 m0, s{r}, {0x80000 + 8*k:#x}"
        def ldx(v, b): return f"buffer_load_dwordx4 v{v}, {srd(SRD_X)}, s{S_VAL} offen offset:{128*(b+1)} lds"
        if p == 0 and opt.get('grp') == 4:
            for i, it in enumerate((1, 2, 4, 7, 10)):
                a(f"s_cmp_lg_u32 s{S_ADV}, {32*it}\ns_cbranch_scc1 4")
                stamp(a, opt, 1 + i, 4)
        if p == 0 and opt.get('ahead', 0):
            a(f"s_cmp_le_i32 s{S_REM}, s{S_PF}\ns_cbranch_scc1 {name}_b_ahead\n{name}_b_back:")
        if opt.get('rprio'): a("s_setprio 0")
        big("W1", T1, T3, 0)
        ds.op(*W2[1]); ds.op(*W3[0]); ds.op(*W3[1])
        a(f"""
v_perm_b32 v{M1}, v{T2+1}, v{T2}, v{MT}
v_perm_b32 v{M1+1}, v{T2+1}, v{T2}, v{MT+1}
v_xor_b32 v{M1}, v{M1}, v7
""")
        big("W1", T1, T3+4, 1)
        a(f"{rowaddr(12, 12)}\nv_bfi_b32 v{T3+1}, 31, v0, v{T2+3}\n{rowaddr(13, 13)}")
        sl = (2*p + 3) & 3
        a(m0x(0, sl))
        big("W2", T2, T3+8, 0)
        a(f"{ldx(12, 0)}\n{m0x(1, sl)}")
        ds.drain()
        a(ldx(12, 1))
        for i in range(4): a(f"s_mul_i32 s{si+i}, s{S_LND+i}, 7")
        a(f"{idload()}\n{m0x(2, sl)}")
        big("W2", T2, T3+12, 1)
        a(ldx(12, 2))
        valid(a, 2)
        dma_e(a, T3+1, RB_EA + 512*p)
        big("W3", T3, XX[0], 0)
        if opt.get('vmstat'): a("s_getreg_b32 s88, hwreg(HW_REG_IB_STS, 0, 4)\ns_add_u32 s89, s89, s88\ns_cmp_gt_u32 s88, 11\ns_cselect_b32 s88, 0x10000, 0\ns_add_u32 s89, s89, s88")
        a(f"s_waitcnt vmcnt({VM[0]})")
        xread(ds, p, 0); xread(ds, p, 1)
        big("W3", T3, GG, 1)
        a("s_nop 0")
        tr_ = tail_reads(t+1)
        pre = {}
        if t == UB-1: pre[13] = [f"v_add_u32 v2, {128*UB}, v2", f"v_add_u32 v3, {128*UB}, v3", f"v_add_u32 v4, {64*UB}, v4", f"s_add_u32 s{S_ADV}, s{S_ADV}, {16*UB}"]
        aux = {4: tr_[:1], 6: tr_[1:2], 11: tr_[2:], 12: W1}
        if prio == 1 or (prio == 2 and p == 0):
            pre[1] = prio_addr(7, T3)[1:]; aux[1] = [prio_add(7, T3)]
            pre[4] = prio_read(T3) + ([] if opt.get('rprio') else prio_set())
        if opt.get('rprio'):
            for l in prio_set(1): a(l)
        for e in range(16):
            x = XX[e % 3]
            if prio == 3 and 16*t + e in PHB: young_prio(a, PHB[16*t + e])
            if e == 8 and opt.get('half', 1): a(f"s_cmp_eq_u32 s{S_REM}, s{S_HALF}\ns_cbranch_scc1 {name}_b_done")
            if e in (8, 9, 10): a(m0x(e-8, 2*p))
            w2 = opt.get('wait2', 0) and e % 2 == 0 and e not in (0, 8)
            if not ds.need(f"x{e}", f"x{e+1}" if w2 else "", vm=VM[1] if e == 6 else None): assert e not in (8, 9, 10)
            if e in (8, 9, 10): a(f"{ldx(13, e-8)}\n{setidx(e)}")
            a(f"v_mfma_f32_4x4x4_16b_bf16 {vr(GG,4)}, {vr(M1,2)}, {vr(x,2)}, 0 cbsz:4 abid:{e}")
            for l in pre.get(e, []): a(l)
            a(f"s_set_gpr_idx_on s{si}, 0x8" if e == 0 else "s_set_gpr_idx_mode 0x8")
            for op in aux.get(e, []): ds.op(*op)
            if e < 14: xread(ds, p, e+2)
            elif e == 14: ds.op(*ar(p ^ 1, 0)); ds.op(*W2[0])
            else: ds.op(*ar(p ^ 1, 1))
            for i, src in enumerate((x+2, x+3, x+1)): a(f"v_fmac_f32 v{ACC+4+i}, v{src}, v{T1+e}")
            for i in range(4): a(f"v_fmac_f32 v{ACC+i}, v{GG+i}, v{(T2, T2, T2, T3)[i]+e}")
            if e == 15: a("s_set_gpr_idx_off")
            elif e + 1 not in (8, 9, 10): a(setidx(e+1))
        a(f"s_sub_u32 s{S_REM}, s{S_REM}, 1\ns_cbranch_scc1 {name}_b_done")
        assert ds.q == entry, (ds.q, entry)
    a(f"s_branch {name}_b_loop")
    if opt.get('ahead', 0):
        a(f"""
{name}_b_ahead:
v_lshlrev_b32 v{T1}, 3, v0
s_mov_b32 m0, {L_MT}
s_mov_b32 s{S_PF}, -100
s_mov_b32 exec_hi, 0
""")
        for i in range(4): a(f"buffer_load_dword v{T1}, {srd(SRD_X)}, s{S_PFO} offen lds\ns_add_u32 s{S_PFO}, s{S_PFO}, 4096")
        a(f"s_mov_b32 exec_hi, -1\ns_branch {name}_b_back")
    a(f"; ---- pack the pass-B sums to bf16 and set up pass A\n{name}_b_done:\ns_set_gpr_idx_off")

def pack(a, ops, spare, neg=()):
    ops, spare, moves = list(ops), list(spare), []
    while ops:
        for k, (d, x, y) in enumerate(ops):
            if not any(d in o[1:] for j, o in enumerate(ops) if j != k): break
        else:
            k = 0; d, x, y = ops[0]; t = spare.pop(); moves.append((d, t)); d = t
        a(f"v_cvt_pk_bf16_f32 v{d}, {'-' if x in neg else ''}v{x}, {'-' if y in neg else ''}v{y}"); ops.pop(k)
    for d, t in moves: a(f"v_mov_b32 v{d}, v{t}")

ORD_B = (3, 4, 0, 5, 1, 6, 2)
ORD_A = (2, 1, 0, 3)
PB, ACA = 68, 156
TA0, TA2 = 32, 48
SB_ = (10, 12, 64, 66)
M2, SELA, AA, WA = 8, 6, 16, 24

def pass_a(a, name, opt):
    def dma_s(v, slot, fill="s_nop 0"):
        a(f"s_add_u32 m0, s{S_RING}, {slot*1024}\n{fill}\nbuffer_load_dwordx4 v{v}, {srd(SRD_X)}, s{S_VAL} offen lds")
    SR = SB_ + (AA, AA+2, AA+4, AA+6)
    def sread(c, m):
        slot = 2*c + (m >> 2)
        return (f"s{m}", f"ds_read_b64_tr_b16 {vr(SR[m],2)}, v1 offset:{slot*1024 + (m & 3)*256}")
    def next_reads(c, off):
        r = [("sr", f"ds_read2_b32 {vr(TA2+2,2)}, v2 offset0:{32*off + 80} offset1:{32*off + 96}"),
             ("pt", f"ds_read_b32 v{TA2+5}, v4 offset:{L_PT + 64*(off+3)}")]
        r += [(f"W0{h}", f"ds_read_b128 {vr(TA2+8+4*h,4)}, v0 offset:{L_WR + h*1024}") for h in range(2)]
        r += [("A0", f"ds_read_b128 {vr(AA,4)}, v5 offset:{c*512}"),
              ("A1", f"ds_read_b128 {vr(AA+4,4)}, v7 offset:{c*512}")]
        r += [sread(c, m) for m in range(4)]
        r += [("ys", f"ds_read_b64 {vr(TA2,2)}, v3 offset:{L_YS + 128*off}")]
        return r
    a(f"""
s_waitcnt vmcnt(0) lgkmcnt(0)
s_add_u32 m0, s{S_RING}, {RA_WS}
s_mul_i32 s{S_T1}, s{S_WAVE}, 5120
s_add_u32 s{S_T1}, s{S_T1}, 10240
""")
    for j in range(4): a(f"buffer_load_dwordx4 v0, {srd(SRD_W)}, s{S_T1} offen offset:{1024*j} lds")
    a(f"s_add_u32 m0, s{S_RING}, {RA_WS+4096}\ns_add_u32 s{S_T1}, s{S_T1}, 4096\nbuffer_load_dwordx4 v0, {srd(SRD_W)}, s{S_T1} offen lds")
    a(f"""
s_lshl_b32 s{S_T0}, s{S_ADV}, 3
s_lshl_b32 s{S_T1}, s{S_ADV}, 2
v_subrev_u32 v2, s{S_T0}, v2
v_subrev_u32 v4, s{S_T1}, v4
v_lshrrev_b32 v17, 1, v14
""")
    ds = DS(a)
    for h in range(5): ds.op(f"sr{h}", f"ds_read_u16 v{TA0+h}, v2 offset:{2 + 64*h}")
    for t in range(3): ds.op(f"pt{t}", f"ds_read_b32 v{TA0+8+t}, v4 offset:{L_PT + 64*t}")
    ds.op("mt", f"ds_read_b64 {vr(M2,2)}, v17 offset:{L_MT + 64}")
    a(f"""
v_subrev_u32 v3, s{S_T0}, v3
s_mov_b32 s{S_IOF}, s{S_IBASE}
{idload()}
v_bfe_u32 v17, v0, 7, 1
v_mul_u32_u24 v17, {LINE - 128}, v17
v_sub_u32 v1, v6, v17
v_subrev_u32 v5, {RB_EA - RA_EA}, v5
v_subrev_u32 v7, {RB_EA - RA_EA}, v80
s_sub_u32 s{S_REM}, s{S_NB}, 1
""")
    ds.drain()
    for h in range(5): a(f"v_lshl_or_b32 v{TA0+h}, v{TA0+h}, 9, v14")
    for t in range(3): a(f"v_bfi_b32 v{TA0+8+t}, 31, v0, v{TA0+8+t}")
    a(f"v_mov_b32 v{SELA}, v{M2}")
    for t in range(3):
        valid(a, t)
        dma_s(TA0+2*t, 2*t)
        dma_e(a, TA0+8+t, RA_EA + 512*t)
        if t < 2: dma_s(TA0+2*t+1, 2*t+1)
    for h in range(2): ds.op(f"W2{h}", f"ds_read_b128 {vr(WA+4*h,4)}, v0 offset:{L_WR + (4+h)*1024}")
    pack(a, [(PB + 12*ORD_B.index(i) + p, ACC+14*p+i, ACC+14*p+7+i) for p in range(12) for i in range(7)]
            + [(PB+84+i, ACC+168+2*i, ACC+168+min(2*i+1, 6)) for i in range(4)], range(48, 64), range(ACC+1, 256, 7))
    zero(a, ACA, 256)
    a(f"""
s_waitcnt vmcnt(6)
v_mov_b32 v17, {L_FLAG}
v_mov_b32 v18, 1
s_mov_b64 exec, 1
ds_add_u32 v17, v18
s_mov_b64 exec, -1
s_cmp_eq_u32 s{S_NB}, 0
s_cbranch_scc1 {name}_a_done
s_waitcnt lgkmcnt(0)
""")
    ds.q = []
    stamp(a, opt, 3)
    for tag, text in next_reads(0, 0): ds.op(tag, text)
    entry = list(ds.q)
    si = S_IDX[0]
    align(a, opt.get('ala'))
    a(f"{name}_a_loop:")
    for c in range(3):
        ds = DS(a, entry)
        pra = opt.get('prio', 3) == 1 or (opt.get('prio', 3) == 2 and c == 0)
        def big(tile, w, h): a(f"v_mfma_f32_32x32x16_bf16 {vr(tile,16)}, {vr(AA+4*h,4)}, {vr(w+4*h,4)}, {vr(tile,16) if h else 0}")
        def mul(tile, *ms):
            for m in ms:
                for i in range(2): a(f"v_mul_f32 v{tile+2*m+i}, v{tile+2*m+i}, v{SR[m]+i}")
        def cvt_t(*ms):
            for m in ms: a(f"v_cvt_pk_bf16_f32 v{TA0+2*m+1}, v{TA0+2*m}, v{TA0+2*m+1}")
        def cvt_u(*ms):
            for m in ms: a(f"v_cvt_pk_bf16_f32 v{TA0+2*m}, v{TA2+2*m}, v{TA2+2*m+1}")
        if opt.get('prio', 3) == 3 and 2*c in opt.get('pha', {0: 2, 4: 0}): young_prio(a, opt.get('pha', {0: 2, 4: 0})[2*c])
        ds.need("s3")
        big(TA0, TA2+8, 0)
        a(rowaddr(TA2+2, TA2+2))
        dma_s(TA2+2, (2*c+5) % 6, rowaddr(TA2+3, TA2+3))
        valid(a, 3)
        a(f"s_add_u32 m0, s{S_RING}, {2*c*1024}")
        big(TA0, TA2+8, 1)
        a(f"buffer_load_dwordx4 v{TA2+3}, {srd(SRD_X)}, s{S_VAL} offen lds\nv_bfi_b32 v{TA2+5}, 31, v0, v{TA2+5}")
        dma_e(a, TA2+5, RA_EA + 512*c)
        ds.need("ys", vm=opt.get('vma', 6))
        assert not ds.q
        a(f"v_perm_b32 v{M2}, v{TA2+1}, v{TA2}, v{SELA}")
        big(TA2, WA, 0)
        a(f"s_lshl_b64 s[{si}:{si+1}], s[{S_LND}:{S_LND+1}], 2")
        ds.op(*sread(c, 4)); ds.op(*sread(c, 5))
        mul(TA0, 0, 1)
        big(TA2, WA, 1)
        a(f"s_lshl_b64 s[{si+2}:{si+3}], s[{S_LND+2}:{S_LND+3}], 2")
        ds.op(*sread(c, 6)); ds.op(*sread(c, 7))
        mul(TA0, 2, 3); cvt_t(0, 1, 2, 3)
        ds.need("s5")
        mul(TA0, 4, 5); mul(TA2, 0, 1, 2, 3)
        ds.need("s7")
        a(idload())
        cvt_u(0, 1, 2, 3)
        mul(TA0, 6, 7); mul(TA2, 4, 5)
        if pra:
            for l in prio_addr(TA2+6, TA2+7): a(l)
        cvt_t(4, 5, 6, 7)
        mul(TA2, 6, 7)
        cvt_u(4, 5, 6, 7)
        if opt.get('prio', 3) == 3 and 2*c+1 in opt.get('pha', {}): young_prio(a, opt['pha'][2*c+1])
        fill = ([prio_add(TA2+6, TA2+7)] if pra else []) + next_reads((c + 1) % 3, c+1)
        for e in range(16):
            a(f"s_set_gpr_idx_on s{si + 2*(e >> 3) + (e & 1)}, 0xc")
            if (e & 1) and (e & 7) != 7:
                q = si + 2*(e >> 3)
                a(f"s_lshr_b64 s[{q}:{q+1}], s[{q}:{q+1}], 8")
                if e == 1 or (pra and e == 3): ds.op(*fill.pop(0))
            else: ds.op(*fill.pop(0))
            a(f"v_mfma_f32_4x4x4_16b_bf16 {vr(ACA,4)}, {vr(M2,2)}, {vr(TA0+(e&14),2)}, {vr(ACA,4)} cbsz:4 abid:{e}")
        assert not fill
        a("s_set_gpr_idx_off")
        if pra:
            ds.need("pr")
            for l in prio_read(TA2+7) + prio_set(): a(l)
        if c == 2:
            a("v_add_u32 v2, 384, v2\nv_add_u32 v3, 384, v3\nv_add_u32 v4, 192, v4")
        a(f"s_sub_u32 s{S_REM}, s{S_REM}, 1\ns_cbranch_scc1 {name}_a_done")
        assert ds.q == entry, (ds.q, entry)
    a(f"s_branch {name}_a_loop\n{name}_a_done:")

def epilogue(a, name, opt):
    PA = ACA
    DT = ((224, 240), (192, 208), (74, 176), (192, 208))
    AOP, WOP, TMP, ROW = 8, 24, (56, 57, 58, 59), 60
    nt = opt.get('store_nt', ' sc1')
    young_prio(a, opt.get('phe', 0))
    a(f"""
s_waitcnt lgkmcnt(0)
v_mov_b32 v7, {L_FLAG}
v_lshrrev_b32 v16, 4, v0
v_mul_u32_u24 v1, 56, v16
v_add_u32 v1, s{S_RING}, v1
v_lshrrev_b32 v17, 5, v16
v_bfe_u32 v18, v16, 2, 2
v_lshl_add_u32 v18, v17, 3, v18
v_mul_u32_u24 v2, 56, v18
v_bfe_u32 v18, v16, 4, 1
v_lshl_add_u32 v2, v18, 5, v2
v_and_b32 v18, 3, v16
v_lshl_add_u32 v2, v18, 3, v2
v_add_u32 v2, s{S_RING}, v2
v_add_u32 v3, {L_RING + RA_WS}, v0
v_add_u32 v4, {L_RING + RA_WS + 5*RING}, v0
v_and_b32 v18, 31, v16
v_lshlrev_b32 v18, 2, v18
s_lshl_b32 s{S_T0}, s{S_SB}, 9
v_add_u32 v5, s{S_T0}, v18
s_lshl_b32 s{S_T0}, s{S_WAVE}, 5
v_lshl_add_u32 v6, v17, 2, s{S_T0}
s_add_u32 s{S_T2}, s{S_WBASE}, s{S_WCNT}
s_cmp_ge_u32 s{S_T2}, s{S_TOTAL}
s_cselect_b32 s{SRD_O+2}, {0 if opt.get('nostore') else XB}, 0
s_lshl_b32 s{S_T3}, s2, 3
s_add_u32 s{S_T3}, s{S_T3}, s{S_WAVE}
s_lshl_b32 s{S_T3}, s{S_T3}, 15
{name}_spin:
ds_read_b32 v17, v7
s_waitcnt lgkmcnt(0)
v_readfirstlane_b32 s{S_T0}, v17
s_cmp_lt_u32 s{S_T0}, 8
s_cbranch_scc1 {name}_spin
""")
    def ga(i): return (PA + 2 + 12*ORD_A.index(i), PA + (i >> 1), i & 1)
    def gb(i): return (PB + 12*ORD_B.index(i), PB + 84 + (i >> 1), i & 1)
    groups = [(gb(3), 1, 0), (ga(3), 0, 0)]
    for j in range(3): groups += [(ga(j), 2, j+1), (gb(4+j), 3, j+1), (gb(j), 4, j+1)]
    NG = len(groups)
    ds = DS(a)
    def writes(g):
        base, tail, hi = groups[g][0]
        off = (g & 1) * TILE
        return [(f"w{g}", f"ds_write_b64 v1, {vr(base+2*q,2)} offset:{off + 8*q}") for q in range(6)] + \
               [(f"w{g}", f"ds_write_b16{'_d16_hi' if hi else ''} v1, v{tail} offset:{off + 48}")]
    def aread(m):
        g, t = divmod(m, 4)
        return [(f"a{m}", f"ds_read_b64_tr_b16 {vr(AOP+4*t+2*j,2)}, v2 offset:{(g & 1)*TILE + (16*t+4*j)*56}") for j in range(2)]
    def wread(n):
        g, i = divmod(n, 8)
        w, k = divmod(groups[g][1]*8 + i, 5)
        v, o = (3, w*RING) if w < 5 else (4, (w-5)*RING)
        return (f"W{n}", f"ds_read_b128 {vr(WOP+4*(n&7),4)}, v{v} offset:{o + k*1024}")
    def fin(comp):
        D, G_ = DT[comp], DT[0]
        out = []
        for r in range(13):
            t = TMP[r & 3]
            if comp: out += [f"v_mul_f32 v{D[u]+r}, v{D[u]+r}, v{G_[u]+r}" for u in range(2)]
            out += [f"v_cvt_pk_bf16_f32 v{t}, v{D[0]+r}, v{D[1]+r}"]
            if not comp:
                out += [f"v_mul_f32 v{D[u]+r}, 0xbfb8aa3b, v{D[u]+r}" for u in range(2)]
                out += [f"v_exp_f32 v{D[u]+r}, v{D[u]+r}" for u in range(2)]
            out += [f"buffer_store_dword v{t}, v{ROW+r}, {srd(SRD_O)}, 0 offen offset:{128*comp}{nt}"]
            if not comp:
                out += [f"v_add_f32 v{D[u]+r}, 1.0, v{D[u]+r}" for u in range(2)]
                out += [f"v_rcp_f32 v{D[u]+r}, v{D[u]+r}" for u in range(2)]
        return out
    a("s_waitcnt vmcnt(0)")
    for op in writes(0) + aread(0) + [wread(0), wread(1)] + aread(1) + [wread(2), wread(3)]: ds.op(*op)
    pack(a, [(ga(i)[0] + p, ACA+8*p+i, ACA+8*p+4+i) for p in range(12) for i in range(4)]
            + [(PA+i, ACA+96+2*i, ACA+97+2*i) for i in range(2)], range(40, 68))
    side = []
    for m in range(4*NG):
        g, t = divmod(m, 4)
        comp = groups[g][2]
        first = (g == 0 or groups[g-1][2] != comp) and t == 0
        D = DT[comp]
        if t == 0 and g in opt.get('phg', {}): young_prio(a, opt['phg'][g])
        ops = []
        if g+1 < NG and t < 2: ops += writes(g+1)[4*t:4*t+4]
        if m+2 < 4*NG: ops += aread(m+2) + [wread(2*m+4), wread(2*m+5)]
        if m == 2: ops += [("row", f"ds_read_u8 v{ROW+r}, v6 offset:{L_INV + (r >> 2)*8 + (r & 3)}") for r in range(13)]
        if m == 6: side = [f"v_lshl_add_u32 v{ROW+r}, v{ROW+r}, 17, v5" for r in range(13)]
        ds.need(f"a{m}", f"W{2*m+1}")
        for u in range(2):
            a(f"v_mfma_f32_32x32x16_bf16 {vr(D[u],16)}, {vr(AOP+4*t,4)}, {vr(WOP+4*((2*m+u)&7),4)}, {0 if first else vr(D[u],16)}")
            k = (len(ops) + 1 - u) // (2 - u)
            for op in ops[:k]: ds.op(*op)
            ops = ops[k:]
            if not first:
                for l in side[:opt.get('side', 6)]: a(l)
                side = side[opt.get('side', 6):]
        if t == 3 and (g+1 == NG or groups[g+1][2] != comp):
            for l in side: a(l)
            a(f"s_cmp_lg_u32 s{S_TOTAL}, s{S_WCNT}\ns_cbranch_scc1 {name}_multi{comp}\n{name}_fin{comp}:")
            side = fin(comp)
    a("s_nop 9")
    for l in side: a(l)
    a(f"{name}_next3:")
    stamp(a, opt, 5)
    stamps_out(a, opt)
    a(f"""
s_cmp_ge_u32 s{S_T2}, s{S_TOTAL}
s_cbranch_scc1 {name}_end
s_mov_b32 s{S_WBASE}, s{S_T2}
s_setprio 0
s_waitcnt vmcnt(0) lgkmcnt(0)
s_barrier
s_branch {name}_window
""")
    for comp in range(4):
        D = DT[comp]
        a(f"""
{name}_multi{comp}:
s_nop 15
v_lshrrev_b32 v7, 2, v0
s_add_u32 s{S_T0}, s{S_T3}, {comp*8192}
s_add_u32 s{S_T1}, s{S_T0}, 4096
s_cmp_eq_u32 s{S_WBASE}, 0
s_cbranch_scc1 {name}_mst{comp}
""")
        for u in range(2):
            for r in range(13):
                a(f"buffer_load_dword v{TMP[0]}, v7, {srd(SRD_S)}, s{S_T0+u} offen offset:{256*r} sc1\ns_waitcnt vmcnt(0)\nv_add_f32 v{D[u]+r}, v{D[u]+r}, v{TMP[0]}")
        a(f"{name}_mst{comp}:")
        for u in range(2):
            for r in range(13):
                a(f"buffer_store_dword v{D[u]+r}, v7, {srd(SRD_S)}, s{S_T0+u} offen offset:{256*r}")
        a(f"s_waitcnt vmcnt(0)\ns_branch {name}_fin{comp}")
    a(f"{name}_end:\ns_endpgm")

def dump_regs(a):
    a("s_waitcnt vmcnt(0) lgkmcnt(0)\ns_nop 15")
    a.srd(96, 76, 128 << 20, 64 << 20)
    a(f"""
v_lshrrev_b32 v0, 2, v0
s_lshl_b32 s{S_T0}, s2, 3
s_add_u32 s{S_T0}, s{S_T0}, s{S_WAVE}
s_lshl_b32 s{S_T0}, s{S_T0}, 16
v_mov_b32 v1, s{S_START}
v_mov_b32 v2, s{S_NB}
""")
    for r in range(256):
        a(f"buffer_store_dword v{r}, v0, s[96:99], s{S_T0} offen\ns_add_u32 s{S_T0}, s{S_T0}, 256")
    a("s_endpgm")

def dump_lds(a):
    a("s_waitcnt vmcnt(0) lgkmcnt(0)\ns_barrier")
    a.srd(96, 76, 16 << 20, 200 << 20)
    a(f"""
s_lshl_b32 s{S_T0}, s2, 16
s_lshl_b32 s{S_T1}, s{S_WAVE}, 13
v_add_u32 v21, s{S_T1}, v0
""")
    for j in range(8):
        a(f"ds_read_b128 v[24:27], v21\ns_waitcnt lgkmcnt(0)\nbuffer_store_dwordx4 v[24:27], v21, s[96:99], s{S_T0} offen\ns_waitcnt vmcnt(0)\nv_add_u32 v21, 1024, v21")

def stamp(a, opt, i, grp=0):
    if opt.get('stamps') == 3:
        lo = opt.get('seg', 1)
        if grp == 0 and i in (lo, lo+1):
            a(f"s_memrealtime s[100:101]\ns_waitcnt lgkmcnt(0)\ns_mov_b32 s{93+i-lo}, s100\ns_memtime s[100:101]\ns_waitcnt lgkmcnt(0)\ns_mov_b32 s{95+i-lo}, s100")
        return
    if opt.get('stamps') and (i in (0, 6) or grp == opt.get('grp', 0)):
        a(f"{'s_memtime' if opt['stamps'] == 2 else 's_memrealtime'} s[100:101]\ns_waitcnt lgkmcnt(0)\ns_mov_b32 s{93+i}, s100")

def stamps_out(a, opt):
    if opt.get('stamps'):
        a("s_waitcnt vmcnt(0)")
        stamp(a, opt, 6)
        a.srd(SRD_S, 76, 1 << 20, 240 << 20)
        a(f"s_lshl_b32 s{S_T0}, s2, 3\ns_add_u32 s{S_T0}, s{S_T0}, s{S_WAVE}\ns_lshl_b32 s{S_T0}, s{S_T0}, 5\nv_mov_b32 v0, 0")
        for i in range(7):
            a(f"v_mov_b32 v1, s{93+i}\nbuffer_store_dword v1, v0, {srd(SRD_S)}, s{S_T0} offen offset:{4*i}")
        if opt.get('vmstat'): a(f"s_mov_b32 s{S_NB}, s89")
        if opt.get('xcc'): a(f"s_getreg_b32 s{S_NB}, hwreg(HW_REG_XCC_ID)")
        a(f"v_mov_b32 v1, s{S_NB}\nbuffer_store_dword v1, v0, {srd(SRD_S)}, s{S_T0} offen offset:28\ns_endpgm")

def gen_k2(name, **opt):
    a = Asm()
    prologue(a, name, opt)
    if opt.get('dump'): dump_lds(a)
    pass_b(a, name, opt)
    if opt.get('dump') == 'b': dump_regs(a)
    stamp(a, opt, 2)
    pass_a(a, name, opt)
    if opt.get('dump') == 'a': dump_regs(a)
    stamp(a, opt, 4)
    epilogue(a, name, opt)
    if opt.get('drope'):
        import re
        lo = a.lines.index(f"{name}_spin:") + 6; hi = a.lines.index(f"{name}_next3:")
        a.lines[lo:hi] = [l for l in a.lines[lo:hi] if not re.search(opt['drope'], l)]
    for key, ps in (('drop', 'b'), ('dropa', 'a')):
        if opt.get(key):
            import re
            lo = a.lines.index(f"{name}_{ps}_loop:"); hi = a.lines.index(f"{name}_{ps}_done:")
            a.lines[lo:hi] = [('    s_nop 0' if re.search(opt[key], l) else l) for l in a.lines[lo:hi]]
    return a.text()
```

```python
from common import *

K1_LDS_EA = 0
K1_LDS_META = CH * 32
K1_LDS_INV = K1_LDS_META + CH * 12
K1_LDS_HIST = K1_LDS_INV + CH * 2
K1_LDS = K1_LDS_HIST + 2048
K1_GRID = NCH + 4
K1_VGPR = 64
QSHIFT = 12

def gen_k1(name, nt=' nt', st=' sc1', stm=' sc1', stamps=0, soff=240, touch='', twg=250, code=136, cwg=8, own=0, sched=(3, 2, 1, 0)):
    a = Asm()
    def stamp(i):
        if stamps: a(f"{'s_memtime' if stamps == 2 else 's_memrealtime'} s[100:101]\ns_waitcnt lgkmcnt(0)\ns_mov_b32 s{90+i}, s100")
    a(f"""
{name}:
s_cmp_ge_u32 s2, {K1_GRID}
s_cbranch_scc1 {name}_end
s_load_dwordx8 s[4:11], s[0:1], {KA_RHAT}
s_load_dwordx2 s[12:13], s[0:1], {KA_WS}
s_cmp_ge_u32 s2, {NCH}
s_cbranch_scc1 {name}_weights
""")
    if own:
        a(f"""
s_getpc_b64 s[64:65]
v_and_b32 v62, 15, v0
v_lshlrev_b32 v62, 7, v62
v_mov_b32 v63, s65
v_add_co_u32 v62, vcc, s64, v62
s_nop 1
v_addc_co_u32 v63, vcc, 0, v63, vcc
global_load_dword v63, v[62:63], off
""")
    a(f"""
v_lshrrev_b32 v1, 6, v0
v_lshlrev_b32 v2, 4, v0
v_readfirstlane_b32 s3, v1
v_mul_u32_u24 v3, 24, v0
v_and_b32 v4, 63, v0
v_lshlrev_b32 v4, 4, v4
v_mov_b32 v5, 0
v_lshlrev_b32 v6, 2, v0
s_mul_i32 s40, s2, {CH*4}
s_mul_i32 s41, s2, {CH*6}
s_mul_i32 s42, s2, {CH*32}
s_mul_i32 s43, s2, {CH*8}
s_mul_i32 s44, s2, {CH}
s_lshl_b32 s62, s3, 10
s_add_u32 s63, s62, s42
v_and_b32 v7, 0x7fc, v6
v_add_u32 v7, {K1_LDS_HIST}, v7
ds_write_b32 v7, v5
v_cmp_gt_u32 vcc, {CH//4}, v0
s_and_b64 exec, exec, vcc
s_mov_b64 s[52:53], exec
""")
    for d, n in ((16, E*4), (20, E*4), (24, E*6), (28, E*32)): a(f"s_mov_b32 s{d+2}, {n:#x}\ns_mov_b32 s{d+3}, 0x20000")
    a("s_waitcnt lgkmcnt(0)")
    stamp(0)
    a(f"""
s_mov_b64 s[16:17], s[10:11]
s_mov_b64 s[20:21], s[8:9]
s_mov_b64 s[24:25], s[4:5]
s_mov_b64 s[28:29], s[6:7]
s_cbranch_execz {name}_noload
buffer_load_dwordx4 v[8:11], v2, s[16:19], s40 offen{nt}
buffer_load_dwordx4 v[12:15], v2, s[20:23], s40 offen{nt}
buffer_load_dwordx4 v[16:19], v3, s[24:27], s41 offen{nt}
buffer_load_dwordx2 v[20:21], v3, s[24:27], s41 offen offset:16{nt}
{name}_noload:
s_mov_b64 exec, -1
s_barrier
""")
    def dma(n):
        for _ in range(n):
            a(f"s_mov_b32 m0, s62\ns_add_u32 s62, s62, 0x4000\nbuffer_load_dwordx4 v4, s[28:31], s63 offen{nt} lds\ns_add_u32 s63, s63, 0x4000")
    assert sum(sched) == 6
    a(f"""
s_cmp_lt_u32 s3, 12
s_cbranch_scc1 {name}_noextra
s_add_u32 m0, s62, {84*1024}
s_add_u32 s14, s63, {84*1024}
buffer_load_dwordx4 v4, s[28:31], s14 offen{nt} lds
{name}_noextra:
""")
    dma(sched[0])
    a.srd(32, 12, E * 32, WS_EAS)
    a.srd(36, 12, E * 8, WS_META)
    a.srd(56, 12, E * 4, WS_KEY)
    a.srd(48, 12, NCH * 1024, WS_TAB)
    if code:
        a(f"""
s_cmp_lt_u32 s3, 13
s_cbranch_scc1 {name}_nocode
s_cmp_ge_u32 s2, {cwg}
s_cbranch_scc1 {name}_nocode
s_getpc_b64 s[64:65]
{name}_pc:
s_add_u32 s64, s64, tp_main_kernel - {name}_pc
s_addc_u32 s65, s65, 0
v_subrev_u32 v60, {13*64}, v0
v_min_u32 v60, {code - 1}, v60
v_lshlrev_b32 v60, 7, v60
v_mov_b32 v61, s65
v_add_co_u32 v60, vcc, s64, v60
s_nop 1
v_addc_co_u32 v61, vcc, 0, v61, vcc
global_load_dword v61, v[60:61], off
{name}_nocode:
""")
    if touch:
        a(f"""
s_cmp_lg_u32 s3, 15
s_cbranch_scc1 {name}_notouch
s_cmp_ge_u32 s2, {twg}
s_cbranch_scc1 {name}_notouch
s_load_dwordx2 s[64:65], s[0:1], {KA_X}
s_load_dwordx2 s[66:67], s[0:1], {KA_OUT}
v_lshlrev_b32 v60, 17, v4
s_waitcnt lgkmcnt(0)
""")
        for ch, base, n in (('x', 64, N*512), ('o', 66, N*512), ('w', 12, 40 << 20)):
            if ch in touch:
                a.srd(68, base, n)
                a("buffer_load_dword v61, v60, s[68:71], 0 offen")
        a(f"{name}_notouch:")
    a(f"s_waitcnt vmcnt({2 + sched[0]})")
    stamp(1)
    a(f"""
s_mov_b64 exec, s[52:53]
s_cbranch_execz {name}_nohist
v_mov_b32 v5, 1
s_mov_b32 s14, {K1_LDS_HIST}
s_mov_b32 s15, {K1_LDS_HIST + 1024}
""")
    for k in range(4):
        a(f"""
v_and_b32 v{24+k}, 0xff, v{8+k}
v_lshrrev_b32 v{28+k}, {QSHIFT}, v{12+k}
v_bfe_u32 v1, v{8+k}, 5, 3
v_lshl_add_u32 v{24+k}, v{24+k}, 2, s14
v_lshl_add_u32 v{28+k}, v1, 5, v{28+k}
ds_add_rtn_u32 v{32+k}, v{24+k}, v5
v_lshl_add_u32 v{28+k}, v{28+k}, 2, s15
ds_add_rtn_u32 v{36+k}, v{28+k}, v5
""")
    a(f"""
{name}_nohist:
s_mov_b64 exec, -1
""")
    dma(sched[1])
    a(f"""
s_waitcnt lgkmcnt(0)
s_barrier
s_cmp_ge_u32 s3, 2
s_cbranch_scc1 {name}_noscan
v_add_u32 v7, {K1_LDS_HIST}, v2
ds_read_b128 v[40:43], v7
s_waitcnt lgkmcnt(0)
v_add_u32 v45, v40, v41
v_add_u32 v46, v45, v42
v_add_u32 v47, v46, v43
v_mov_b32 v44, v47
""")
    a.scan64(44)
    a(f"""
v_sub_u32 v44, v44, v47
v_add_u32 v47, v44, v46
v_add_u32 v46, v44, v45
v_add_u32 v45, v44, v40
ds_write_b128 v7, v[44:47]
s_cmp_eq_u32 s3, 0
s_cbranch_scc0 {name}_noscan
v_lshl_or_b32 v40, v40, 16, v44
v_lshl_or_b32 v41, v41, 16, v45
v_lshl_or_b32 v42, v42, 16, v46
v_lshl_or_b32 v43, v43, 16, v47
s_lshl_b32 s14, s2, 10
buffer_store_dwordx4 v[40:43], v2, s[48:51], s14 offen
{name}_noscan:
""")
    dma(sched[2])
    a(f"""
s_waitcnt lgkmcnt(0)
s_barrier
s_mov_b64 exec, s[52:53]
s_cbranch_execz {name}_noplace
""")
    for k in range(4):
        a(f"ds_read_b32 v{24+k}, v{24+k}\nds_read_b32 v{28+k}, v{28+k}")
    a(f"""
s_waitcnt vmcnt({sum(sched[:3])})
s_mov_b32 s14, 0x05040100
s_mov_b32 s15, 0x05040302
s_mov_b32 s45, 0x0c050100
s_mov_b32 s46, 0x06020100
v_mov_b32 v48, v16
v_alignbit_b32 v50, v18, v17, 16
v_mov_b32 v52, v19
v_alignbit_b32 v54, v21, v20, 16
""")
    for k in range(4): a(f"v_perm_b32 v{12+k}, v{8+k}, v{12+k}, s45")
    a(f"""
s_mov_b32 s47, {K1_LDS_META}
s_mov_b32 s60, {K1_LDS_META + CH*8}
s_mov_b32 s61, {K1_LDS_INV}
s_waitcnt lgkmcnt(0)
""")
    for k in range(4):
        a(f"""
v_add_u32 v{24+k}, v{24+k}, v{32+k}
v_add_u32 v{28+k}, v{28+k}, v{36+k}
v_add_u32 v23, s44, v{28+k}
v_lshl_add_u32 v22, v{24+k}, 3, s47
v_perm_b32 v{49+2*k}, v23, v{(17, 18, 20, 21)[k]}, s{14 + (k & 1)}
v_perm_b32 v23, v23, v{12+k}, s46
v_lshl_add_u32 v{24+k}, v{24+k}, 2, s60
v_lshl_add_u32 v{28+k}, v{28+k}, 1, s61
v_add_u32 v1, {k}, v6
ds_write_b64 v22, v[{48+2*k}:{49+2*k}]
ds_write_b32 v{24+k}, v23
ds_write_b16 v{28+k}, v1
""")
    a(f"""
{name}_noplace:
s_mov_b64 exec, -1
""")
    dma(sched[3])
    a(f"""
s_waitcnt lgkmcnt(0)
s_barrier
""")
    stamp(2)
    a(f"""
v_add_u32 v7, {K1_LDS_META}, v2
ds_read_b128 v[8:11], v7
ds_read_b128 v[12:15], v7 offset:16384
ds_read_b128 v[16:19], v7 offset:{CH*8}
v_and_b32 v1, 0x3fe, v0
v_add_u32 v1, {K1_LDS_INV}, v1
""")
    for j in range(7):
        a(f"ds_read_u16 v{24+j}, v1 offset:{1024*j}")
    a(f"""
s_add_u32 s14, s43, 16384
v_and_b32 v1, 1, v0
v_lshlrev_b32 v1, 4, v1
s_waitcnt lgkmcnt(0)
""")
    for j in range(7):
        a(f"v_lshl_add_u32 v{24+j}, v{24+j}, 5, v1")
    assert (CH*8//16 - 1024) % 64 == 0
    a(f"""
buffer_store_dwordx4 v[8:11], v2, s[36:39], s43 offen{stm}
s_mov_b64 exec, s[52:53]
s_cbranch_execz {name}_wait1
buffer_store_dwordx4 v[16:19], v2, s[56:59], s40 offen{stm}
s_cmp_ge_u32 s3, {(CH*8//16 - 1024)//64}
s_cbranch_scc1 {name}_wait2
buffer_store_dwordx4 v[12:15], v2, s[36:39], s14 offen{stm}
s_waitcnt vmcnt(3)
s_branch {name}_landed
{name}_wait1:
s_waitcnt vmcnt(1)
{name}_wait2:
s_waitcnt vmcnt(2)
{name}_landed:
s_mov_b64 exec, -1
""")
    stamp(3)
    a("s_barrier")
    stamp(4)
    for j in range(6):
        a(f"ds_read_b128 v[{32+4*j}:{35+4*j}], v{24+j}")
    a(f"""
s_cmp_ge_u32 s3, 4
s_cbranch_scc1 {name}_no7
ds_read_b128 v[56:59], v30
s_add_u32 s14, s42, {6*16384}
s_waitcnt lgkmcnt(0)
buffer_store_dwordx4 v[56:59], v2, s[32:35], s14 offen{st}
{name}_no7:
""")
    for j in range(6):
        a(f"""
s_waitcnt lgkmcnt({5-j})
buffer_store_dwordx4 v[{32+4*j}:{35+4*j}], v2, s[32:35], s42 offen{st}
s_add_u32 s42, s42, 16384
""")
    if stamps:
        stamp(5); a("s_waitcnt vmcnt(0)"); stamp(6)
        a.srd(16, 12, 1 << 20, 240 << 20)
        a("s_nop 0\ns_lshl_b32 s14, s2, 4\ns_add_u32 s14, s14, s3\ns_lshl_b32 s14, s14, 5\nv_mov_b32 v0, 0")
        for i in range(7): a(f"v_mov_b32 v1, s{90+i}\nbuffer_store_dword v1, v0, s[16:19], s14 offen offset:{4*i}")
    a(f"""
s_endpgm
{name}_weights:
s_load_dwordx4 s[56:59], s[0:1], {KA_WRAD}
s_load_dwordx2 s[60:61], s[0:1], {KA_WSI1}
s_sub_u32 s3, s2, {NCH}
s_lshl_b32 s3, s3, 4
v_lshrrev_b32 v1, 6, v0
v_and_b32 v2, 31, v0
v_readfirstlane_b32 s14, v1
v_bfe_u32 v3, v0, 5, 1
s_add_u32 s3, s3, s14
s_waitcnt lgkmcnt(0)
""")
    a.srd(16, 56, 16 * 640)
    a.srd(20, 58, 128 * 128)
    a.srd(24, 60, 192 * 128)
    a.srd(28, 12, 51200, WS_WR)
    a(f"""
s_cmp_ge_u32 s3, 50
s_cbranch_scc1 {name}_end
v_and_b32 v5, 63, v0
v_lshlrev_b32 v5, 4, v5
s_lshl_b32 s40, s3, 10
s_cmp_ge_u32 s3, 10
s_cbranch_scc1 {name}_wsi
v_mul_u32_u24 v4, {8*640}, v3
v_lshl_add_u32 v4, v2, 1, v4
s_lshl_b32 s15, s3, 6
""")
    for k in range(8):
        a(f"buffer_load_ushort v{8+k}, v4, s[16:19], s15 offen\ns_add_u32 s15, s15, 640")
    a(f"""
s_branch {name}_wpack
{name}_wsi:
s_sub_u32 s14, s3, 10
v_lshlrev_b32 v4, 10, v3
v_lshl_add_u32 v4, v2, 2, v4
s_and_b32 s15, s14, 1
s_lshl_b32 s15, s15, 1
s_lshr_b32 s14, s14, 1
s_lshl_b32 s41, s14, 11
s_add_u32 s15, s15, s41
s_cmp_ge_u32 s14, 8
s_cbranch_scc1 {name}_wsi1
""")
    for k in range(8):
        a(f"buffer_load_ushort v{8+k}, v4, s[20:23], s15 offen offset:{128*k}")
    a(f"""
s_branch {name}_wpack
{name}_wsi1:
s_sub_u32 s15, s15, {128*128}
""")
    for k in range(8):
        a(f"buffer_load_ushort v{8+k}, v4, s[24:27], s15 offen offset:{128*k}")
    a(f"""
{name}_wpack:
s_waitcnt vmcnt(0)
v_lshl_or_b32 v16, v9, 16, v8
v_lshl_or_b32 v17, v11, 16, v10
v_lshl_or_b32 v18, v13, 16, v12
v_lshl_or_b32 v19, v15, 16, v14
buffer_store_dwordx4 v[16:19], v5, s[28:31], s40 offen
{name}_end:
s_endpgm
""")
    return a.text()
```

```python
from common import *

NSLOT = 3704
CAPW = NSLOT - 120
L_WR = 0
L_MT = 10240
L_FLAG = L_MT + 128
L_INV = L_MT + 256
L_YS = L_INV + 256
L_PT = L_YS + NSLOT * 8
L_RING = 56320
RING = 13440
LINE = 4160
RB_EA = 12416
RA_EA = 6144
RA_WS = 7680
TILE = 3584
K2_LDS = L_RING + 8 * RING
assert L_PT + NSLOT * 4 <= L_RING and CAPW <= 7 * 512 and K2_LDS == 163840
L_HIST = L_RING
L_DEG = L_HIST + 1024
L_BASE = L_DEG + 1024
L_MAP = L_BASE + 1024
L_CNT = L_MAP + 1024
L_WTOT = L_CNT + 256
L_IDXL = L_WTOT + 64
OOB = 0x40000
XB, EB = N * 512, E * 32

S_WAVE, S_SB, S_RING, S_WBASE, S_TOTAL, S_WCNT, S_START, S_NB, S_REM = 3, 32, 33, 34, 35, 36, 37, 38, 39
SRD_X, SRD_E, SRD_T, SRD_O, SRD_W, SRD_M, SRD_S = 4, 8, 12, 16, 20, 24, 28
S_IDX = (40, 44)
S_T0, S_T1, S_T2, S_T3 = 48, 49, 50, 51
S_MASK = 52
S_VAL, S_ADV, S_HALF, S_ROT = 80, 81, 82, 83
SRD_K = 84
SRD_I = 88
S_LND, S_IOF, S_512, S_IBASE = 44, 92, 78, 70
S_VON, S_VOFF, S_PADDR, S_PINC, S_PSGN, S_PVAL, S_PF, S_PFO = 68, 69, 70, 71, 66, 67, 78, 79

def srd(d): return f"s[{d}:{d+3}]"
def vr(b, n): return f"v[{b}:{b+n-1}]"

class DS:
    def __init__(self, a, init=()):
        self.a, self.q = a, list(init)
    def op(self, tag, text):
        self.a(text); self.q.append(tag)
    def need(self, *tags, vm=None):
        idx = [i for i, t in enumerate(self.q) if t in tags]
        if not idx:
            if vm is not None: self.a(f"s_waitcnt vmcnt({vm})")
            return False
        n = len(self.q) - 1 - max(idx)
        self.a(f"s_waitcnt {'' if vm is None else 'vmcnt(%d) ' % vm}lgkmcnt({min(n, 15)})")
        self.q = self.q[len(self.q) - min(n, 15):] if n else []
        return True
    def drain(self):
        if self.q: self.a("s_waitcnt lgkmcnt(0)")
        self.q = []

def rho(v_dst, v_e, tmp):
    return f"""
v_bfe_u32 v{v_dst}, v{v_e}, 1, 2
v_and_b32 v{tmp}, 1, v{v_e}
v_lshl_or_b32 v{v_dst}, v{tmp}, 2, v{v_dst}
v_and_or_b32 v{v_dst}, v{v_e}, 8, v{v_dst}
"""

def prologue(a, name, opt):
    a(f"""
{name}:
s_cmp_ge_u32 s2, 256
s_cbranch_scc1 {name}_end
""")
    stamp(a, opt, 1, 5)
    a(f"""
s_load_dwordx2 s[72:73], s[0:1], {KA_X}
s_load_dwordx2 s[74:75], s[0:1], {KA_OUT}
s_load_dwordx2 s[76:77], s[0:1], {KA_WS}
v_lshrrev_b32 v1, 6, v0
s_and_b32 s{S_SB}, s2, 7
v_readfirstlane_b32 s{S_WAVE}, v1
s_lshl_b32 s{S_SB}, s{S_SB}, 5
s_lshr_b32 s{S_T0}, s2, 3
s_add_u32 s{S_SB}, s{S_SB}, s{S_T0}
s_mul_i32 s{S_RING}, s{S_WAVE}, {RING}
s_add_u32 s{S_RING}, s{S_RING}, {L_RING}
s_mov_b32 s{S_VON}, {0x80000000 if opt.get('nomem') else 0}
s_mov_b32 s{S_VOFF}, 0x80000000
s_mov_b32 s{S_WBASE}, 0
{name}_window:
v_mbcnt_lo_u32_b32 v16, -1, 0
v_mbcnt_hi_u32_b32 v16, -1, v16
v_lshlrev_b32 v0, 4, v16
s_lshl_b32 s{S_T0}, s{S_WAVE}, 6
v_add_u32 v17, s{S_T0}, v16
v_lshrrev_b32 v26, 1, v17
v_lshlrev_b32 v19, 10, v26
s_lshl_b32 s{S_T1}, s{S_SB}, 2
s_waitcnt lgkmcnt(0)
""")
    stamp(a, opt, 0)
    a.srd(SRD_T, 76, NCH * 1024, WS_TAB)
    a(f"""
buffer_load_dword v27, v19, {srd(SRD_T)}, s{S_T1} offen
v_mov_b32 v21, 0
""")
    a.srd(SRD_X, 72, XB)
    a.srd(SRD_E, 76, EB, WS_EAS)
    a.srd(SRD_O, 74, XB)
    a.srd(SRD_W, 76, 51200, WS_WR)
    a.srd(SRD_M, 76, E * 8, WS_META)
    a.srd(SRD_K, 76, E * 4, WS_KEY)
    a.srd(SRD_S, 76, 256 * 8 * 128 * 256, WS_SCR)
    a.srd(SRD_I, 76, 256 * 8192, WS_ID)
    cpf = opt.get('codepf', 17)
    if cpf:
        a(f"""
s_getpc_b64 s[{S_T2}:{S_T3}]
v_min_u32 v8, {cpf - 1}, v16
v_lshl_add_u32 v8, v8, 3, s{S_WAVE}
v_lshlrev_b32 v8, 7, v8
v_mov_b32 v9, s{S_T3}
v_add_co_u32 v8, vcc, s{S_T2}, v8
s_nop 1
v_addc_co_u32 v9, vcc, 0, v9, vcc
global_load_dword v9, v[8:9], off
""")
    mt = [0x05040c0c, 0x03020c0c, 0x80000000, 0,
              0x0c0c0504, 0x01000c0c, 0x8000, 0,
              0x01000302, 0x0c0c0c0c, 0x8000, 0,
              0x03020100, 0x05040c0c, 0, 0,
              0x0c0c0100, 0, 0x0c0c0302, 0, 0x0c0c0504, 0, 0x0c0c0c0c, 0x3f80,
              0x01000c0c, 0, 0x03020c0c, 0, 0x05040c0c, 0, 0x0c0c0c0c, 0x3f800000]
    a(f"""
v_lshlrev_b32 v22, 2, v17
ds_write_b32 v22, v21 offset:{L_HIST}
v_lshlrev_b32 v22, 2, v16
v_mov_b32 v23, -1
v_mov_b32 v63, v17
s_cmp_lg_u32 s{S_WAVE}, 7
s_cbranch_scc1 {name}_nomt
ds_write_b32 v22, v21 offset:{L_CNT}
ds_write_b32 v22, v23 offset:{L_INV}
""")
    for i, c in enumerate(mt):
        if c: a(f"s_mov_b32 s{S_T1}, {c:#x}\nv_writelane_b32 v21, s{S_T1}, {i}")
    a(f"""
ds_write_b32 v22, v21 offset:{L_MT}
{name}_nomt:
""")
    lane_consts_b(a)
    npf0, npf = opt.get('pf0', 1), opt.get('prefetch', 1)
    a(f"""
s_getreg_b32 s{S_ROT}, hwreg(HW_REG_XCC_ID, 0, 3)
s_mul_i32 s{S_ROT}, s{S_ROT}, {opt.get('rot', 25)}
s_add_u32 s{S_ROT}, s{S_ROT}, 8
s_lshr_b32 s{S_ROT}, s{S_ROT}, 4
s_lshr_b32 s{S_PFO}, s2, 3
s_lshl_b32 s{S_PFO}, s{S_PFO}, 15
s_lshl_b32 s{S_T0}, s{S_ROT}, 21
s_add_u32 s{S_PFO}, s{S_PFO}, s{S_T0}
s_sub_u32 s{S_ROT}, 16, s{S_ROT}
s_lshl_b32 s{S_ROT}, s{S_ROT}, 12
v_lshrrev_b32 v8, 3, v63
v_and_b32 v15, 3, v63
v_max_u32 v15, 1, v15
v_lshlrev_b32 v15, 7, v15
v_lshl_add_u32 v8, v8, 9, v15
s_waitcnt vmcnt({1 if cpf else 0})
""")
    stamp(a, opt, 1, 1)
    def warm(n):
        for _ in range(n): a(f"buffer_load_dword v9, v8, {srd(SRD_X)}, s{S_PFO} offen\ns_add_u32 s{S_PFO}, s{S_PFO}, {1 << 20}")
    warm(npf0)
    if opt.get('tlb'):
        a(f"v_lshlrev_b32 v15, {opt['tlb']}, v63\nbuffer_load_dword v9, v15, {srd(SRD_E)}, 0 offen\nbuffer_load_dword v9, v15, {srd(SRD_X)}, 0 offen")
    a(f"""
s_lshl_b32 s{S_T1}, s{S_WAVE}, 10
s_mov_b32 m0, s{S_T1}
s_and_b32 s{S_T2}, s{S_T1}, 1024
buffer_load_dwordx4 v0, {srd(SRD_W)}, s{S_T1} offen lds
s_add_u32 s{S_T2}, s{S_T2}, 8192
s_mov_b32 m0, s{S_T2}
s_nop 0
buffer_load_dwordx4 v0, {srd(SRD_W)}, s{S_T2} offen lds
v_lshrrev_b32 v21, 16, v27
v_and_b32 v20, 0xffff, v27
v_and_b32 v23, 1, v16
v_cmp_eq_u32 vcc, 0, v23
s_nop 1
v_cndmask_b32 v22, 0, v21, vcc
""")
    a.scan64(22)
    a(f"""
s_nop 0
v_readlane_b32 s{S_T0}, v22, 63
s_lshl_b32 s{S_T1}, s{S_WAVE}, 2
s_add_u32 s{S_T1}, s{S_T1}, {L_WTOT}
v_mov_b32 v24, s{S_T1}
v_mov_b32 v25, s{S_T0}
ds_write_b32 v24, v25
v_and_b32 v24, 7, v16
v_lshlrev_b32 v24, 2, v24
v_add_u32 v24, {L_WTOT}, v24
v_sub_u32 v22, v22, v21
v_mul_u32_u24 v18, {CH}, v26
v_add_u32 v20, v20, v18
s_waitcnt lgkmcnt(0)
s_barrier
ds_read_b32 v25, v24
s_waitcnt lgkmcnt(0)
""")
    for sh in (1, 2, 4):
        a(f"s_nop 1\nv_add_u32_dpp v25, v25, v25 row_shr:{sh} row_mask:0xf bank_mask:0xf bound_ctrl:0")
    a(f"""
s_nop 0
v_readlane_b32 s{S_TOTAL}, v25, 7
v_readlane_b32 s{S_T1}, v25, s{S_WAVE}
s_sub_u32 s{S_T1}, s{S_T1}, s{S_T0}
s_sub_u32 s{S_T1}, s{S_T1}, s{S_WBASE}
s_sub_u32 s{S_WCNT}, s{S_TOTAL}, s{S_WBASE}
s_min_u32 s{S_WCNT}, s{S_WCNT}, {CAPW}
v_add_u32 v22, s{S_T1}, v22
v_sub_u32 v24, 0, v22
v_max_i32 v24, 0, v24
v_sub_u32 v25, {CAPW}, v22
v_min_i32 v25, v25, v21
v_add_u32 v24, v24, v23
v_sub_u32 v20, v20, v22
v_sub_u32 v25, v25, v24
v_add_lshl_u32 v22, v22, v24, 2
{name}_expand:
""")
    for k in range(8):
        a(f"v_cmpx_lt_i32 vcc, {2*k}, v25")
        if k in (0, 4): a(f"s_cbranch_execz {name}_expanded")
        a(f"ds_write_b32 v22, v20 offset:{L_IDXL + 8*k}")
    a(f"""
v_add_u32 v22, 64, v22
v_subrev_u32 v25, 16, v25
s_branch {name}_expand
{name}_expanded:
s_mov_b64 exec, -1
v_lshlrev_b32 v22, 2, v63
v_add_u32 v22, {L_IDXL}, v22
""")
    REC, RK, BA, PAD = 24, 56, 64, 72
    for j in range(7):
        a(f"v_add_u32 v{BA+j}, {512*j}, v63\nv_cmp_gt_u32 s[{S_MASK+2*j}:{S_MASK+2*j+1}], s{S_WCNT}, v{BA+j}")
    a("v_bfrev_b32 v23, 2")
    a("s_waitcnt lgkmcnt(0)\ns_barrier")
    stamp(a, opt, 2, 1)
    def pay(js):
        for j in js: a(f"buffer_load_dwordx2 {vr(REC+4*j,2)}, v{PAD+j}, {srd(SRD_M)}, 0 offen")
    for j in range(7): a(f"ds_read_b32 v{RK+j}, v22 offset:{2048*j}")
    for j in range(7):
        a(f"""
s_waitcnt lgkmcnt({6-j})
v_add_lshl_u32 v{RK+j}, v{RK+j}, v{BA+j}, 2
v_cndmask_b32 v{RK+j}, v23, v{RK+j}, s[{S_MASK+2*j}:{S_MASK+2*j+1}]
buffer_load_dword v{REC+4*j+2}, v{RK+j}, {srd(SRD_K)}, 0 offen
""")
    stamp(a, opt, 1, 3)
    for j in range(7): a(f"v_lshlrev_b32 v{PAD+j}, 1, v{RK+j}")
    a(f"v_and_b32 v17, 48, v0\nds_read_b128 {vr(MT,4)}, v17 offset:{L_MT}")
    zero(a, ACC, opt.get('z0', 180))
    def mask(j): return f"s_mov_b64 exec, s[{S_MASK+2*j}:{S_MASK+2*j+1}]"
    a("; ---- node degrees; nodes are ranked by degree and dealt to the waves in snake order\nv_mov_b32 v23, 1")
    for j in range(7):
        a(f"""
s_waitcnt vmcnt({6-j})
v_bfe_u32 v{BA+j}, v{REC+4*j+2}, 16, 8
{mask(j)}
v_lshlrev_b32 v{BA+j}, 2, v{BA+j}
v_add_u32 v{RK+j}, s{S_ROT}, v{REC+4*j+2}
ds_add_u32 v{BA+j}, v23 offset:{L_DEG}
v_bfe_u32 v{RK+j}, v{RK+j}, 11, 5
v_lshlrev_b32 v{RK+j}, 2, v{RK+j}
""")
        if j == 0: stamp(a, opt, 2, 3)
        if j == 6: stamp(a, opt, 3, 3)
    a("s_mov_b64 exec, -1")
    stamp(a, opt, 4, 3)
    a(f"""
v_lshlrev_b32 v22, 2, v63
v_cmp_gt_u32 vcc, 200, v63
s_waitcnt lgkmcnt(0)
s_barrier
""")
    stamp(a, opt, 1, 2)
    stamp(a, opt, 5, 3)
    a(f"s_cmp_lt_u32 s{S_WAVE}, 4\ns_cbranch_scc1 {name}_rank")
    pay(range(4))
    a("s_barrier")
    pay(range(4, 7))
    a(f"s_branch {name}_nomap\n{name}_rank:")
    a(f"""
s_and_b64 exec, exec, vcc
ds_read_b32 v21, v22 offset:{L_DEG}
s_waitcnt lgkmcnt(0)
v_min_u32 v21, 63, v21
v_sub_u32 v21, 63, v21
v_lshlrev_b32 v21, 2, v21
ds_add_rtn_u32 v20, v21, v23 offset:{L_CNT}
s_mov_b64 exec, -1
v_lshlrev_b32 v19, 2, v16
s_waitcnt lgkmcnt(0)
s_barrier
""")
    stamp(a, opt, 2, 2)
    a(f"""
ds_read_b32 v18, v19 offset:{L_CNT}
s_waitcnt lgkmcnt(0)
v_mov_b32 v19, v18
""")
    a.scan64(19)
    a(f"""
v_sub_u32 v19, v19, v18
ds_bpermute_b32 v19, v21, v19
s_cmp_lg_u32 s{S_TOTAL}, s{S_WCNT}
s_cselect_b64 s[{S_T2}:{S_T3}], -1, 0
s_and_b64 exec, exec, vcc
s_waitcnt lgkmcnt(0)
v_add_u32 v19, v19, v20
v_cndmask_b32 v19, v19, v63, s[{S_T2}:{S_T3}]
v_lshrrev_b32 v18, 3, v19
v_bfe_i32 v20, v19, 3, 1
v_xor_b32 v19, v19, v20
v_and_b32 v19, 7, v19
v_lshl_add_u32 v20, v19, 5, v18
ds_write_b8 v20, v63 offset:{L_INV}
v_lshl_or_b32 v18, v19, 23, v18
ds_write_b32 v22, v18 offset:{L_MAP}
s_mov_b64 exec, -1
{name}_nomap:
""")
    a("s_waitcnt lgkmcnt(0)\ns_barrier")
    stamp(a, opt, 3, 2)
    for j in range(7): a(f"ds_read_b32 v{REC+4*j+3}, v{BA+j} offset:{L_MAP}")
    a(f"s_cmp_ge_u32 s{S_WAVE}, 4\ns_cbranch_scc1 {name}_nopay1")
    pay(range(3))
    a(f"{name}_nopay1:\ns_waitcnt lgkmcnt(0)")
    for j in range(7):
        a(f"v_add_u32_sdwa v{BA+j}, v{RK+j}, v{REC+4*j+3} dst_sel:DWORD dst_unused:UNUSED_PAD src0_sel:DWORD src1_sel:WORD_1")
    for j in range(7): a(f"{mask(j)}\nds_add_rtn_u32 v{RK+j}, v{BA+j}, v23 offset:{L_HIST}")
    a(f"s_mov_b64 exec, -1\ns_cbranch_scc1 {name}_nopay2")
    pay(range(3, 7))
    a(f"{name}_nopay2:")
    stamp(a, opt, 3, 1)
    a(f"""
s_waitcnt lgkmcnt(0)
s_barrier
""")
    stamp(a, opt, 4, 2)
    stamp(a, opt, 1, 6)
    a(f"""
ds_read_b128 v[72:75], v0 offset:{L_HIST}
""")
    warm(npf)
    a(f"""
s_waitcnt lgkmcnt(0)
v_add_u32 v77, v72, v73
v_add_u32 v78, v77, v74
v_add_u32 v79, v78, v75
v_mov_b32 v71, v79
""")
    for sh in (1, 2, 4):
        a(f"s_nop 1\nv_add_u32_dpp v71, v71, v71 row_shr:{sh} row_mask:0xf bank_mask:0xf bound_ctrl:0")
    a(f"""
v_and_b32 v23, 7, v16
v_cmp_eq_u32 vcc, 7, v23
v_sub_u32 v76, 0, v71
v_and_b32 v76, 15, v76
v_cndmask_b32 v76, 0, v76, vcc
v_add_u32 v79, v79, v76
v_mov_b32 v76, v79
""")
    a.scan64(76)
    a(f"""
v_sub_u32 v76, v76, v79
v_add_u32 v79, v76, v78
v_add_u32 v78, v76, v77
v_add_u32 v77, v76, v72
ds_write_b128 v0, v[76:79] offset:{L_BASE}
s_lshl_b32 s{S_T0}, s{S_WAVE}, 3
s_add_u32 s{S_T1}, s{S_T0}, 7
v_readlane_b32 s{S_START}, v76, s{S_T0}
v_readlane_b32 s{S_T2}, v71, s{S_T1}
""")
    for j in range(7): a(f"ds_read_b32 v{BA+j}, v{BA+j} offset:{L_BASE}")
    a(f"""
s_add_u32 s{S_NB}, s{S_T2}, 15
s_lshr_b32 s{S_NB}, s{S_NB}, 4
s_lshl_b32 s{S_T3}, s{S_NB}, 4
s_sub_u32 s{S_HALF}, s{S_T3}, s{S_T2}
s_cmp_ge_u32 s{S_HALF}, 8
s_cselect_b32 s{S_HALF}, 0, -2
s_mov_b32 s{S_ADV}, 0
{'s_mov_b32 s89, 0' if opt.get('vmstat') else ''}
v_add_u32 v23, s{S_T2}, v16
v_cmp_gt_u32 vcc, s{S_T3}, v23
v_add_u32 v23, s{S_START}, v23
v_mov_b32 v18, 0
v_mov_b32 v19, 0xffff0000
v_mov_b32 v20, 0x1fffffe0
v_lshlrev_b32 v21, 3, v23
v_lshlrev_b32 v22, 2, v23
s_and_b64 exec, exec, vcc
ds_write_b64 v21, v[18:19] offset:{L_YS}
ds_write_b32 v22, v20 offset:{L_PT}
s_mov_b64 exec, -1
s_waitcnt lgkmcnt(0)
""")
    stamp(a, opt, 5, 2)
    stamp(a, opt, 2, 6)
    a(f"s_mov_b32 s{S_T0}, 0x0c070302\ns_mov_b32 s{S_T1}, 0x05040100\ns_waitcnt vmcnt({npf})")
    stamp(a, opt, 3, 6)
    for j in range(7):
        a(f"""
{mask(j)}
v_perm_b32 v20, v{REC+4*j+2}, v{REC+4*j+1}, s{S_T0}
v_perm_b32 v{REC+4*j+1}, v{REC+4*j+2}, v{REC+4*j+1}, s{S_T1}
v_lshlrev_b32 v20, 5, v20
v_add_lshl_u32 v21, v{BA+j}, v{RK+j}, 3
v_add_lshl_u32 v22, v{BA+j}, v{RK+j}, 2
v_and_or_b32 v{REC+4*j+2}, v{REC+4*j+3}, 31, v20
ds_write_b64 v21, {vr(REC+4*j,2)} offset:{L_YS}
ds_write_b32 v22, v{REC+4*j+2} offset:{L_PT}
""")
    a("s_mov_b64 exec, -1")
    stamp(a, opt, 4, 6)

def list_lanes(a):
    a("v_lshrrev_b32 v17, 3, v16")
    a(rho(2, 17, 18))
    a("v_lshrrev_b32 v17, 2, v16")
    a(rho(3, 17, 18))
    a("v_bfe_u32 v17, v16, 1, 4")
    a(rho(4, 17, 18))
    a("v_and_b32 v14, 0x70, v0")

def list_addrs(a):
    a(f"""
v_add_lshl_u32 v2, v2, s{S_START}, 3
v_add_u32 v2, {L_YS + 4}, v2
v_add_lshl_u32 v3, v3, s{S_START}, 3
v_add_lshl_u32 v4, v4, s{S_START}, 2
""")

def ea_addrs(a, v_a0, v_a1, ring_off):
    a(f"""
v_bfe_u32 v17, v16, 3, 2
v_and_b32 v18, 3, v16
v_lshl_or_b32 v17, v17, 2, v18
v_lshlrev_b32 v17, 5, v17
v_lshrrev_b32 v18, 5, v16
v_lshl_or_b32 v17, v18, 4, v17
v_bfe_u32 v18, v16, 2, 1
v_mul_u32_u24 v18, {OOB + 16}, v18
v_xor_b32 v17, v18, v17
s_add_u32 s{S_T0}, s{S_RING}, {ring_off}
v_add_u32 v{v_a0}, s{S_T0}, v17
v_xor_b32 v17, {OOB + 16}, v17
v_add_u32 v{v_a1}, s{S_T0}, v17
""")

def valid(a, k):
    a(f"""
s_cmp_ge_i32 s{S_REM}, {k}
s_cselect_b32 s{S_VAL}, s{S_VON}, s{S_VOFF}
""")

def dma_e(a, v, off, restore=True):
    a(f"""
s_add_u32 m0, s{S_RING}, {off}
s_mov_b32 exec_hi, 0
buffer_load_dwordx4 v{v}, {srd(SRD_E)}, s{S_VAL} offen lds
""")
    if restore: a("s_mov_b32 exec_hi, -1")

def zero(a, lo, hi):
    if lo & 1 and lo < hi: a(f"v_mov_b32 v{lo}, 0"); lo += 1
    for r in range(lo, hi, 2): a(f"v_mov_b64 {vr(r,2)}, 0")

def align(a, k):
    if k is None: return
    a(".p2alignl 5, 0xbf800000")
    for _ in range(k): a("s_nop 0")

def idload(): return f"s_buffer_load_dwordx4 s[{S_LND}:{S_LND+3}], {srd(SRD_I)}, s{S_IOF}\ns_add_u32 s{S_IOF}, s{S_IOF}, 16"
def rowaddr(d, w): return f"v_mad_u32_u16 v{d}, v{w}, s{S_512}, v14 op_sel:[1,0,0,0]"

def code_ahead(a, lines, va, vd):
    if lines: a(f"""
s_getpc_b64 s[{S_T0}:{S_T1}]
v_min_u32 v{va}, {(lines - 1) * 16}, v0
v_lshlrev_b32 v{va}, 3, v{va}
v_mov_b32 v{va+1}, s{S_T1}
v_add_co_u32 v{va}, vcc, s{S_T0}, v{va}
s_nop 1
v_addc_co_u32 v{va+1}, vcc, 0, v{va+1}, vcc
global_load_dword v{vd}, v[{va}:{va+1}], off
""")

def prio_init(a):
    a(f"""
s_max_u32 s{S_T0}, s{S_NB}, 1
v_cvt_f32_u32 v17, s{S_T0}
v_rcp_f32 v17, v17
s_and_b32 s{S_PADDR}, s{S_WAVE}, 3
s_lshl_b32 s{S_PADDR}, s{S_PADDR}, 2
v_mul_f32 v17, 0x47800000, v17
s_add_u32 s{S_PADDR}, s{S_PADDR}, {L_FLAG + 16}
v_cvt_u32_f32 v17, v17
s_cmp_ge_u32 s{S_WAVE}, 4
s_cselect_b32 s{S_PSGN}, -1, 1
v_readfirstlane_b32 s{S_PINC}, v17
s_mul_i32 s{S_PINC}, s{S_PINC}, s{S_PSGN}
s_mov_b32 s{S_PVAL}, 0
""")
def young_prio(a, lvl): a(f"s_setprio 1\ns_cmp_lt_u32 s{S_WAVE}, 4\ns_cbranch_scc1 1\ns_setprio {lvl}")
def prio_addr(va, vd): return [f"v_lshl_add_u32 v{va}, v0, 14, s{S_PADDR}", f"v_mov_b32 v{vd}, s{S_PINC}"]
def prio_add(va, vd): return ("pr", f"ds_add_rtn_u32 v{vd}, v{va}, v{vd}")
def prio_read(vd): return [f"v_readfirstlane_b32 s{S_PVAL}, v{vd}", f"s_mul_i32 s{S_PVAL}, s{S_PVAL}, s{S_PSGN}"]
def prio_set(base=0):
    return [f"s_cmp_ge_i32 s{S_PVAL}, 0", f"s_setprio {base}", "s_cbranch_scc1 1", f"s_setprio {base+1}"]

M3, M1, XR, G, T1, T2, T3, ACC = 6, 8, (10, 12), (16, 24), 32, 48, 64, 81

def dma_x(a, v, slot, fill):
    for b in range(3):
        a(f"s_add_u32 m0, s{S_RING}, {b*LINE + slot*1024 - 128*(b+1)}")
        a(fill[b] if b < len(fill) else "s_nop 0")
        a(f"buffer_load_dwordx4 v{v}, {srd(SRD_X)}, s{S_VAL} offen offset:{128*(b+1)} lds")

GG, XX, MT, EC = 16, (20, 24, 28), 10, 7

def lane_consts_b(a):
    list_lanes(a)
    ea_addrs(a, 5, 80, RB_EA)
    a(f"""
v_lshrrev_b32 v18, 4, v16
v_lshlrev_b32 v17, 5, v18
v_and_b32 v18, 3, v16
v_lshl_add_u32 v17, v18, 3, v17
v_add_u32 v17, s{S_RING}, v17
v_bfe_u32 v18, v16, 2, 2
v_min_u32 v19, 2, v18
v_mul_u32_u24 v19, {LINE}, v19
v_cmp_eq_u32 vcc, 2, v18
v_mov_b32 v20, {OOB + 192}
v_bfe_u32 v21, v16, 3, 1
v_cndmask_b32 v19, v19, v20, vcc
v_add_u32 v1, v17, v19
v_and_b32 v18, 1, v18
v_cmp_eq_u32 vcc, 0, v18
v_mul_u32_u24 v21, {LINE}, v21
s_nop 0
v_cndmask_b32 v21, v21, v20, vcc
v_add_u32 v6, v17, v21
""")

def pass_b(a, name, opt):
    si = S_IDX[0]
    prio = opt.get('prio', 3)
    VM = opt.get('vm', (11, 7))
    PHB = opt.get('phb', {0: 2, 20: 0, 32: 2, 52: 0})
    def xread(ds, p, e):
        o = ((2*p + (e >> 3)) & 3)*1024 + (e & 7)*128
        ds.op(f"x{e}", f"ds_read_b64_tr_b16 {vr(XX[e%3],2)}, v1 offset:{o}")
        ds.op(f"x{e}", f"ds_read_b64_tr_b16 {vr(XX[e%3]+2,2)}, v6 offset:{o}")
    def wr(tag, dst, path, h): return (f"{tag}{h}", f"ds_read_b128 {vr(dst,4)}, v0 offset:{L_WR + (path*2+h)*1024}")
    W1 = [wr("W1", T3+4*h, 3, h) for h in range(2)]
    W2 = [wr("W2", T3+8+4*h, 4, h) for h in range(2)]
    W3 = [wr("W3", (XX[0], GG)[h], 1, h) for h in range(2)]
    AR = (XX[1], XX[2])
    def ar(p, h): return (f"A{h}", f"ds_read_b128 {vr(AR[h],4)}, v{(5, 80)[h]} offset:{p*512}")
    def tail_reads(off):
        return [("ys", f"ds_read_b64 {vr(T2,2)}, v3 offset:{L_YS + 128*off}"),
                ("pt", f"ds_read_b32 v{T2+3}, v4 offset:{L_PT + 64*(off+2)}"),
                ("sr", f"ds_read2_b32 v[12:13], v2 offset0:{32*off + 48} offset1:{32*off + 64}")]
    if opt.get('solo'): a(f"s_cmp_ge_u32 s{S_WAVE}, 4\ns_cselect_b32 s{S_NB}, 0, s{S_NB}")
    if prio in (1, 2):
        prio_init(a)
        a(prio_addr(7, 0)[0])
    list_addrs(a)
    a(f"""
v_mov_b32 v7, v{MT+2}
s_movk_i32 s{S_512}, 512
s_lshl_b32 s{S_T0}, s2, 7
s_add_u32 s{S_T0}, s{S_T0}, s{S_WAVE}
s_add_u32 s{S_IBASE}, s{S_START}, 63
s_lshr_b32 s{S_IBASE}, s{S_IBASE}, 6
s_add_u32 s{S_IBASE}, s{S_IBASE}, s{S_T0}
s_lshl_b32 s{S_IBASE}, s{S_IBASE}, 6
s_add_u32 s{S_IOF}, s{S_IBASE}, 16
s_lshl_b32 s{S_T1}, s{S_NB}, 4
s_max_u32 s{S_T0}, s{S_T1}, 1
s_sub_u32 s{S_T0}, s{S_T0}, 1
s_and_b32 s{S_T0}, s{S_T0}, 0xff00
s_mov_b32 s{S_T2}, 0x0c0c0400
s_mov_b32 s{S_T3}, 0x04000c0c
v_lshrrev_b32 v15, 2, v0
""")
    if opt.get('ahead', 0):
        a(f"""
s_lshl_b32 s{S_T0}, s{S_WAVE}, 8
s_add_u32 s{S_T0}, s{S_T0}, s2
s_lshl_b32 s{S_PFO}, s{S_T0}, 14
s_sub_u32 s{S_T0}, {1563 + opt.get('lead', 190)}, s{S_T0}
s_mul_i32 s{S_T0}, s{S_T0}, s{S_NB}
s_mul_i32 s{S_T0}, s{S_T0}, 42
s_ashr_i32 s{S_PF}, s{S_T0}, 16
""")
    a(f"""
s_sub_u32 s{S_REM}, s{S_NB}, 1
s_waitcnt lgkmcnt(0)
s_barrier
""")
    stamp(a, opt, 1)
    stamp(a, opt, 4, 1)
    stamp(a, opt, 5, 6)
    ds = DS(a)
    for t in range(2): ds.op(f"pt{t}", f"ds_read_b32 v{T1+8+t}, v4 offset:{L_PT + 64*t}")
    for h in range(3): ds.op(f"sr{h}", f"ds_read_u16 v{T1+10+h}, v2 offset:{2 + 64*h}")
    for op in tail_reads(0) + W1: ds.op(*op)
    ds.need("sr2")
    for t in range(2): a(f"v_bfi_b32 v{T1+8+t}, 31, v0, v{T1+8+t}")
    for h in range(3): a(f"v_lshl_or_b32 v{T1+10+h}, v{T1+10+h}, 9, v14")
    valid(a, 0)
    dma_e(a, T1+8, RB_EA)
    dma_x(a, T1+10, 0, [])
    a(f"""
{name}_idcopy:
v_add_u32 v{T2+12}, s{S_T0}, v15
v_add_lshl_u32 v{T2+13}, v{T2+12}, s{S_START}, 2
v_cmp_gt_u32 vcc, s{S_T1}, v{T2+12}
ds_read_b128 {vr(T2+8,4)}, v{T2+13} offset:{L_PT}
v_bfrev_b32 v{T2+13}, 1
v_cndmask_b32 v{T2+12}, v{T2+13}, v{T2+12}, vcc
s_waitcnt lgkmcnt(0)
v_perm_b32 v{T2+8}, v{T2+9}, v{T2+8}, s{S_T2}
v_perm_b32 v{T2+10}, v{T2+11}, v{T2+10}, s{S_T3}
v_or_b32 v{T2+8}, v{T2+8}, v{T2+10}
v_and_b32 v{T2+8}, 0x1f1f1f1f, v{T2+8}
s_sub_u32 s{S_T0}, s{S_T0}, 256
buffer_store_dword v{T2+8}, v{T2+12}, {srd(SRD_I)}, s{S_IBASE} offen
s_cbranch_scc0 {name}_idcopy
""")
    for i in range(4): a(f"v_readlane_b32 s{S_LND+i}, v{T2+8}, {i}")
    zero(a, opt.get('z0', 180), opt.get('z1', 256))
    dma_x(a, T1+11, 1, [])
    def deeper():
        valid(a, 1)
        dma_e(a, T1+9, RB_EA + 512)
        dma_x(a, T1+12, 2, [])
    late = opt.get('late', 0)
    if not late: deeper()
    zero(a, opt.get('z1', 256), 256)
    a(f"s_cmp_eq_u32 s{S_NB}, 0\ns_cbranch_scc1 {name}_b_done")
    ds.drain()
    a(f"""
s_lshl_b32 s{S_T1}, s{S_NB}, 4
s_add_u32 s{S_T1}, s{S_T1}, s{S_IBASE}
s_mov_b32 s{S_T0}, s{S_IBASE}
s_waitcnt vmcnt({3 if late else 7})
s_cmp_eq_u32 s{S_WBASE}, 0
s_cbranch_scc1 {name}_idfresh
{name}_idwarm:
s_buffer_load_dword s{S_T2}, {srd(SRD_I)}, s{S_T0}{opt.get('wglc', ' glc')}
s_add_u32 s{S_T0}, s{S_T0}, 64
s_cmp_le_u32 s{S_T0}, s{S_T1}
s_cbranch_scc1 {name}_idwarm
s_waitcnt lgkmcnt(0)
{name}_idfresh:
""")
    stamp(a, opt, 5, 1)
    for op in (ar(0, 0), W2[0], ar(0, 1)): ds.op(*op)
    if late: deeper()
    entry = list(ds.q)
    align(a, opt.get('alb'))
    a(f"{name}_b_loop:")
    UB = opt.get('ub', 2)
    for t in range(UB):
        p = t & 1
        ds = DS(a, entry)
        def big(tag, tile, w, h):
            ds.need(f"A{h}", f"{tag}{h}")
            a(f"v_mfma_f32_32x32x16_bf16 {vr(tile,16)}, {vr(AR[h],4)}, {vr(w,4)}, {vr(tile,16) if h else 0}")
        def m0x(b, slot): return f"s_add_u32 m0, s{S_RING}, {b*LINE + slot*1024 - 128*(b+1)}"
        def setidx(e):
            r, k = si + 2*(e >> 3) + (e & 1), (e >> 1) & 3
            return f"s_lshr_b32 m0, s{r}, 24" if k == 3 else f"s_bfe_u32 m0, s{r}, {0x80000 + 8*k:#x}"
        def ldx(v, b): return f"buffer_load_dwordx4 v{v}, {srd(SRD_X)}, s{S_VAL} offen offset:{128*(b+1)} lds"
        if p == 0 and opt.get('grp') == 4:
            for i, it in enumerate((1, 2, 4, 7, 10)):
                a(f"s_cmp_lg_u32 s{S_ADV}, {32*it}\ns_cbranch_scc1 4")
                stamp(a, opt, 1 + i, 4)
        if p == 0 and opt.get('ahead', 0):
            a(f"s_cmp_le_i32 s{S_REM}, s{S_PF}\ns_cbranch_scc1 {name}_b_ahead\n{name}_b_back:")
        if opt.get('rprio'): a("s_setprio 0")
        big("W1", T1, T3, 0)
        ds.op(*W2[1]); ds.op(*W3[0]); ds.op(*W3[1])
        a(f"""
v_perm_b32 v{M1}, v{T2+1}, v{T2}, v{MT}
v_perm_b32 v{M1+1}, v{T2+1}, v{T2}, v{MT+1}
v_xor_b32 v{M1}, v{M1}, v7
""")
        big("W1", T1, T3+4, 1)
        a(f"{rowaddr(12, 12)}\nv_bfi_b32 v{T3+1}, 31, v0, v{T2+3}\n{rowaddr(13, 13)}")
        sl = (2*p + 3) & 3
        a(m0x(0, sl))
        big("W2", T2, T3+8, 0)
        a(f"{ldx(12, 0)}\n{m0x(1, sl)}")
        ds.drain()
        a(ldx(12, 1))
        for i in range(4): a(f"s_mul_i32 s{si+i}, s{S_LND+i}, 7")
        a(f"{idload()}\n{m0x(2, sl)}")
        big("W2", T2, T3+12, 1)
        a(ldx(12, 2))
        valid(a, 2)
        dma_e(a, T3+1, RB_EA + 512*p)
        big("W3", T3, XX[0], 0)
        if opt.get('vmstat'): a("s_getreg_b32 s88, hwreg(HW_REG_IB_STS, 0, 4)\ns_add_u32 s89, s89, s88\ns_cmp_gt_u32 s88, 11\ns_cselect_b32 s88, 0x10000, 0\ns_add_u32 s89, s89, s88")
        a(f"s_waitcnt vmcnt({VM[0]})")
        xread(ds, p, 0); xread(ds, p, 1)
        big("W3", T3, GG, 1)
        a("s_nop 0")
        tr_ = tail_reads(t+1)
        pre = {}
        if t == UB-1: pre[13] = [f"v_add_u32 v2, {128*UB}, v2", f"v_add_u32 v3, {128*UB}, v3", f"v_add_u32 v4, {64*UB}, v4", f"s_add_u32 s{S_ADV}, s{S_ADV}, {16*UB}"]
        aux = {4: tr_[:1], 6: tr_[1:2], 11: tr_[2:], 12: W1}
        if prio == 1 or (prio == 2 and p == 0):
            pre[1] = prio_addr(7, T3)[1:]; aux[1] = [prio_add(7, T3)]
            pre[4] = prio_read(T3) + ([] if opt.get('rprio') else prio_set())
        if opt.get('rprio'):
            for l in prio_set(1): a(l)
        for e in range(16):
            x = XX[e % 3]
            if prio == 3 and 16*t + e in PHB: young_prio(a, PHB[16*t + e])
            if e == 8 and opt.get('half', 1): a(f"s_cmp_eq_u32 s{S_REM}, s{S_HALF}\ns_cbranch_scc1 {name}_b_done")
            if e in (8, 9, 10): a(m0x(e-8, 2*p))
            w2 = opt.get('wait2', 0) and e % 2 == 0 and e not in (0, 8)
            if not ds.need(f"x{e}", f"x{e+1}" if w2 else "", vm=VM[1] if e == 6 else None): assert e not in (8, 9, 10)
            if e in (8, 9, 10): a(f"{ldx(13, e-8)}\n{setidx(e)}")
            a(f"v_mfma_f32_4x4x4_16b_bf16 {vr(GG,4)}, {vr(M1,2)}, {vr(x,2)}, 0 cbsz:4 abid:{e}")
            for l in pre.get(e, []): a(l)
            a(f"s_set_gpr_idx_on s{si}, 0x8" if e == 0 else "s_set_gpr_idx_mode 0x8")
            for op in aux.get(e, []): ds.op(*op)
            if e < 14: xread(ds, p, e+2)
            elif e == 14: ds.op(*ar(p ^ 1, 0)); ds.op(*W2[0])
            else: ds.op(*ar(p ^ 1, 1))
            for i, src in enumerate((x+2, x+3, x+1)): a(f"v_fmac_f32 v{ACC+4+i}, v{src}, v{T1+e}")
            for i in range(4): a(f"v_fmac_f32 v{ACC+i}, v{GG+i}, v{(T2, T2, T2, T3)[i]+e}")
            if e == 15: a("s_set_gpr_idx_off")
            elif e + 1 not in (8, 9, 10): a(setidx(e+1))
        a(f"s_sub_u32 s{S_REM}, s{S_REM}, 1\ns_cbranch_scc1 {name}_b_done")
        assert ds.q == entry, (ds.q, entry)
    a(f"s_branch {name}_b_loop")
    if opt.get('ahead', 0):
        a(f"""
{name}_b_ahead:
v_lshlrev_b32 v{T1}, 3, v0
s_mov_b32 m0, {L_MT}
s_mov_b32 s{S_PF}, -100
s_mov_b32 exec_hi, 0
""")
        for i in range(4): a(f"buffer_load_dword v{T1}, {srd(SRD_X)}, s{S_PFO} offen lds\ns_add_u32 s{S_PFO}, s{S_PFO}, 4096")
        a(f"s_mov_b32 exec_hi, -1\ns_branch {name}_b_back")
    a(f"; ---- pack the pass-B sums to bf16 and set up pass A\n{name}_b_done:\ns_set_gpr_idx_off")

def pack(a, ops, spare, neg=()):
    ops, spare, moves = list(ops), list(spare), []
    while ops:
        for k, (d, x, y) in enumerate(ops):
            if not any(d in o[1:] for j, o in enumerate(ops) if j != k): break
        else:
            k = 0; d, x, y = ops[0]; t = spare.pop(); moves.append((d, t)); d = t
        a(f"v_cvt_pk_bf16_f32 v{d}, {'-' if x in neg else ''}v{x}, {'-' if y in neg else ''}v{y}"); ops.pop(k)
    for d, t in moves: a(f"v_mov_b32 v{d}, v{t}")

ORD_B = (3, 4, 0, 5, 1, 6, 2)
ORD_A = (2, 1, 0, 3)
PB, ACA = 68, 156
TA0, TA2 = 32, 48
SB_ = (10, 12, 64, 66)
M2, SELA, AA, WA = 8, 6, 16, 24

def pass_a(a, name, opt):
    def dma_s(v, slot, fill="s_nop 0"):
        a(f"s_add_u32 m0, s{S_RING}, {slot*1024}\n{fill}\nbuffer_load_dwordx4 v{v}, {srd(SRD_X)}, s{S_VAL} offen lds")
    SR = SB_ + (AA, AA+2, AA+4, AA+6)
    def sread(c, m):
        slot = 2*c + (m >> 2)
        return (f"s{m}", f"ds_read_b64_tr_b16 {vr(SR[m],2)}, v1 offset:{slot*1024 + (m & 3)*256}")
    def next_reads(c, off):
        r = [("sr", f"ds_read2_b32 {vr(TA2+2,2)}, v2 offset0:{32*off + 80} offset1:{32*off + 96}"),
             ("pt", f"ds_read_b32 v{TA2+5}, v4 offset:{L_PT + 64*(off+3)}")]
        r += [(f"W0{h}", f"ds_read_b128 {vr(TA2+8+4*h,4)}, v0 offset:{L_WR + h*1024}") for h in range(2)]
        r += [("A0", f"ds_read_b128 {vr(AA,4)}, v5 offset:{c*512}"),
              ("A1", f"ds_read_b128 {vr(AA+4,4)}, v7 offset:{c*512}")]
        r += [sread(c, m) for m in range(4)]
        r += [("ys", f"ds_read_b64 {vr(TA2,2)}, v3 offset:{L_YS + 128*off}")]
        return r
    a("s_waitcnt vmcnt(0) lgkmcnt(0)")
    code_ahead(a, opt.get('cmid', 0), 16, 15)
    a(f"""
s_add_u32 m0, s{S_RING}, {RA_WS}
s_mul_i32 s{S_T1}, s{S_WAVE}, 5120
s_add_u32 s{S_T1}, s{S_T1}, 10240
""")
    for j in range(4): a(f"buffer_load_dwordx4 v0, {srd(SRD_W)}, s{S_T1} offen offset:{1024*j} lds")
    a(f"s_add_u32 m0, s{S_RING}, {RA_WS+4096}\ns_add_u32 s{S_T1}, s{S_T1}, 4096\nbuffer_load_dwordx4 v0, {srd(SRD_W)}, s{S_T1} offen lds")
    a(f"""
s_lshl_b32 s{S_T0}, s{S_ADV}, 3
s_lshl_b32 s{S_T1}, s{S_ADV}, 2
v_subrev_u32 v2, s{S_T0}, v2
v_subrev_u32 v4, s{S_T1}, v4
v_lshrrev_b32 v17, 1, v14
""")
    ds = DS(a)
    for h in range(5): ds.op(f"sr{h}", f"ds_read_u16 v{TA0+h}, v2 offset:{2 + 64*h}")
    for t in range(3): ds.op(f"pt{t}", f"ds_read_b32 v{TA0+8+t}, v4 offset:{L_PT + 64*t}")
    ds.op("mt", f"ds_read_b64 {vr(M2,2)}, v17 offset:{L_MT + 64}")
    a(f"""
v_subrev_u32 v3, s{S_T0}, v3
s_mov_b32 s{S_IOF}, s{S_IBASE}
{idload()}
v_bfe_u32 v17, v0, 7, 1
v_mul_u32_u24 v17, {LINE - 128}, v17
v_sub_u32 v1, v6, v17
v_subrev_u32 v5, {RB_EA - RA_EA}, v5
v_subrev_u32 v7, {RB_EA - RA_EA}, v80
s_sub_u32 s{S_REM}, s{S_NB}, 1
""")
    ds.drain()
    for h in range(5): a(f"v_lshl_or_b32 v{TA0+h}, v{TA0+h}, 9, v14")
    for t in range(3): a(f"v_bfi_b32 v{TA0+8+t}, 31, v0, v{TA0+8+t}")
    a(f"v_mov_b32 v{SELA}, v{M2}")
    for t in range(3):
        valid(a, t)
        dma_s(TA0+2*t, 2*t)
        dma_e(a, TA0+8+t, RA_EA + 512*t)
        if t < 2: dma_s(TA0+2*t+1, 2*t+1)
    for h in range(2): ds.op(f"W2{h}", f"ds_read_b128 {vr(WA+4*h,4)}, v0 offset:{L_WR + (4+h)*1024}")
    pack(a, [(PB + 12*ORD_B.index(i) + p, ACC+14*p+i, ACC+14*p+7+i) for p in range(12) for i in range(7)]
            + [(PB+84+i, ACC+168+2*i, ACC+168+min(2*i+1, 6)) for i in range(4)], range(48, 64), range(ACC+1, 256, 7))
    zero(a, ACA, 256)
    a(f"""
s_waitcnt vmcnt(6)
v_mov_b32 v17, {L_FLAG}
v_mov_b32 v18, 1
s_mov_b64 exec, 1
ds_add_u32 v17, v18
s_mov_b64 exec, -1
s_cmp_eq_u32 s{S_NB}, 0
s_cbranch_scc1 {name}_a_done
s_waitcnt lgkmcnt(0)
""")
    ds.q = []
    stamp(a, opt, 3)
    for tag, text in next_reads(0, 0): ds.op(tag, text)
    entry = list(ds.q)
    si = S_IDX[0]
    align(a, opt.get('ala'))
    a(f"{name}_a_loop:")
    for c in range(3):
        ds = DS(a, entry)
        pra = opt.get('prio', 3) == 1 or (opt.get('prio', 3) == 2 and c == 0)
        def big(tile, w, h): a(f"v_mfma_f32_32x32x16_bf16 {vr(tile,16)}, {vr(AA+4*h,4)}, {vr(w+4*h,4)}, {vr(tile,16) if h else 0}")
        def mul(tile, *ms):
            for m in ms:
                for i in range(2): a(f"v_mul_f32 v{tile+2*m+i}, v{tile+2*m+i}, v{SR[m]+i}")
        def cvt_t(*ms):
            for m in ms: a(f"v_cvt_pk_bf16_f32 v{TA0+2*m+1}, v{TA0+2*m}, v{TA0+2*m+1}")
        def cvt_u(*ms):
            for m in ms: a(f"v_cvt_pk_bf16_f32 v{TA0+2*m}, v{TA2+2*m}, v{TA2+2*m+1}")
        if opt.get('prio', 3) == 3 and 2*c in opt.get('pha', {0: 2, 4: 0}): young_prio(a, opt.get('pha', {0: 2, 4: 0})[2*c])
        ds.need("s3")
        big(TA0, TA2+8, 0)
        a(rowaddr(TA2+2, TA2+2))
        dma_s(TA2+2, (2*c+5) % 6, rowaddr(TA2+3, TA2+3))
        valid(a, 3)
        a(f"s_add_u32 m0, s{S_RING}, {2*c*1024}")
        big(TA0, TA2+8, 1)
        a(f"buffer_load_dwordx4 v{TA2+3}, {srd(SRD_X)}, s{S_VAL} offen lds\nv_bfi_b32 v{TA2+5}, 31, v0, v{TA2+5}")
        dma_e(a, TA2+5, RA_EA + 512*c)
        ds.need("ys", vm=opt.get('vma', 6))
        assert not ds.q
        a(f"v_perm_b32 v{M2}, v{TA2+1}, v{TA2}, v{SELA}")
        big(TA2, WA, 0)
        a(f"s_lshl_b64 s[{si}:{si+1}], s[{S_LND}:{S_LND+1}], 2")
        ds.op(*sread(c, 4)); ds.op(*sread(c, 5))
        mul(TA0, 0, 1)
        big(TA2, WA, 1)
        a(f"s_lshl_b64 s[{si+2}:{si+3}], s[{S_LND+2}:{S_LND+3}], 2")
        ds.op(*sread(c, 6)); ds.op(*sread(c, 7))
        mul(TA0, 2, 3); cvt_t(0, 1, 2, 3)
        ds.need("s5")
        mul(TA0, 4, 5); mul(TA2, 0, 1, 2, 3)
        ds.need("s7")
        a(idload())
        cvt_u(0, 1, 2, 3)
        mul(TA0, 6, 7); mul(TA2, 4, 5)
        if pra:
            for l in prio_addr(TA2+6, TA2+7): a(l)
        cvt_t(4, 5, 6, 7)
        mul(TA2, 6, 7)
        cvt_u(4, 5, 6, 7)
        if opt.get('prio', 3) == 3 and 2*c+1 in opt.get('pha', {}): young_prio(a, opt['pha'][2*c+1])
        fill = ([prio_add(TA2+6, TA2+7)] if pra else []) + next_reads((c + 1) % 3, c+1)
        for e in range(16):
            a(f"s_set_gpr_idx_on s{si + 2*(e >> 3) + (e & 1)}, 0xc")
            if (e & 1) and (e & 7) != 7:
                q = si + 2*(e >> 3)
                a(f"s_lshr_b64 s[{q}:{q+1}], s[{q}:{q+1}], 8")
                if e == 1 or (pra and e == 3): ds.op(*fill.pop(0))
            else: ds.op(*fill.pop(0))
            a(f"v_mfma_f32_4x4x4_16b_bf16 {vr(ACA,4)}, {vr(M2,2)}, {vr(TA0+(e&14),2)}, {vr(ACA,4)} cbsz:4 abid:{e}")
        assert not fill
        a("s_set_gpr_idx_off")
        if pra:
            ds.need("pr")
            for l in prio_read(TA2+7) + prio_set(): a(l)
        if c == 2:
            a("v_add_u32 v2, 384, v2\nv_add_u32 v3, 384, v3\nv_add_u32 v4, 192, v4")
        a(f"s_sub_u32 s{S_REM}, s{S_REM}, 1\ns_cbranch_scc1 {name}_a_done")
        assert ds.q == entry, (ds.q, entry)
    a(f"s_branch {name}_a_loop\n{name}_a_done:")

def epilogue(a, name, opt):
    PA = ACA
    DT = ((224, 240), (192, 208), (74, 176), (192, 208))
    AOP, WOP, TMP, ROW = 8, 24, (56, 57, 58, 59), 60
    nt = opt.get('store_nt', ' sc1')
    young_prio(a, opt.get('phe', 0))
    a(f"""
s_waitcnt lgkmcnt(0)
v_mov_b32 v7, {L_FLAG}
v_lshrrev_b32 v16, 4, v0
v_mul_u32_u24 v1, 56, v16
v_add_u32 v1, s{S_RING}, v1
v_lshrrev_b32 v17, 5, v16
v_bfe_u32 v18, v16, 2, 2
v_lshl_add_u32 v18, v17, 3, v18
v_mul_u32_u24 v2, 56, v18
v_bfe_u32 v18, v16, 4, 1
v_lshl_add_u32 v2, v18, 5, v2
v_and_b32 v18, 3, v16
v_lshl_add_u32 v2, v18, 3, v2
v_add_u32 v2, s{S_RING}, v2
v_add_u32 v3, {L_RING + RA_WS}, v0
v_add_u32 v4, {L_RING + RA_WS + 5*RING}, v0
v_and_b32 v18, 31, v16
v_lshlrev_b32 v18, 2, v18
s_lshl_b32 s{S_T0}, s{S_SB}, 9
v_add_u32 v5, s{S_T0}, v18
s_lshl_b32 s{S_T0}, s{S_WAVE}, 5
v_lshl_add_u32 v6, v17, 2, s{S_T0}
s_add_u32 s{S_T2}, s{S_WBASE}, s{S_WCNT}
s_cmp_ge_u32 s{S_T2}, s{S_TOTAL}
s_cselect_b32 s{SRD_O+2}, {0 if opt.get('nostore') else XB}, 0
s_lshl_b32 s{S_T3}, s2, 3
s_add_u32 s{S_T3}, s{S_T3}, s{S_WAVE}
s_lshl_b32 s{S_T3}, s{S_T3}, 15
{name}_spin:
ds_read_b32 v17, v7
s_waitcnt lgkmcnt(0)
v_readfirstlane_b32 s{S_T0}, v17
s_cmp_lt_u32 s{S_T0}, 8
s_cbranch_scc1 {name}_spin
""")
    def ga(i): return (PA + 2 + 12*ORD_A.index(i), PA + (i >> 1), i & 1)
    def gb(i): return (PB + 12*ORD_B.index(i), PB + 84 + (i >> 1), i & 1)
    groups = [(gb(3), 1, 0), (ga(3), 0, 0)]
    for j in range(3): groups += [(ga(j), 2, j+1), (gb(4+j), 3, j+1), (gb(j), 4, j+1)]
    NG = len(groups)
    ds = DS(a)
    def writes(g):
        base, tail, hi = groups[g][0]
        off = (g & 1) * TILE
        return [(f"w{g}", f"ds_write_b64 v1, {vr(base+2*q,2)} offset:{off + 8*q}") for q in range(6)] + \
               [(f"w{g}", f"ds_write_b16{'_d16_hi' if hi else ''} v1, v{tail} offset:{off + 48}")]
    def aread(m):
        g, t = divmod(m, 4)
        return [(f"a{m}", f"ds_read_b64_tr_b16 {vr(AOP+4*t+2*j,2)}, v2 offset:{(g & 1)*TILE + (16*t+4*j)*56}") for j in range(2)]
    def wread(n):
        g, i = divmod(n, 8)
        w, k = divmod(groups[g][1]*8 + i, 5)
        v, o = (3, w*RING) if w < 5 else (4, (w-5)*RING)
        return (f"W{n}", f"ds_read_b128 {vr(WOP+4*(n&7),4)}, v{v} offset:{o + k*1024}")
    def fin(comp):
        D, G_ = DT[comp], DT[0]
        out = []
        for r in range(13):
            t = TMP[r & 3]
            if comp: out += [f"v_mul_f32 v{D[u]+r}, v{D[u]+r}, v{G_[u]+r}" for u in range(2)]
            out += [f"v_cvt_pk_bf16_f32 v{t}, v{D[0]+r}, v{D[1]+r}"]
            if not comp:
                out += [f"v_mul_f32 v{D[u]+r}, 0xbfb8aa3b, v{D[u]+r}" for u in range(2)]
                out += [f"v_exp_f32 v{D[u]+r}, v{D[u]+r}" for u in range(2)]
            out += [f"buffer_store_dword v{t}, v{ROW+r}, {srd(SRD_O)}, 0 offen offset:{128*comp}{nt}"]
            if not comp:
                out += [f"v_add_f32 v{D[u]+r}, 1.0, v{D[u]+r}" for u in range(2)]
                out += [f"v_rcp_f32 v{D[u]+r}, v{D[u]+r}" for u in range(2)]
        return out
    a("s_waitcnt vmcnt(0)")
    for op in writes(0) + aread(0) + [wread(0), wread(1)] + aread(1) + [wread(2), wread(3)]: ds.op(*op)
    code_ahead(a, opt.get('cepi', 0), 58, 73)
    pack(a, [(ga(i)[0] + p, ACA+8*p+i, ACA+8*p+4+i) for p in range(12) for i in range(4)]
            + [(PA+i, ACA+96+2*i, ACA+97+2*i) for i in range(2)], range(40, 68))
    side = []
    for m in range(4*NG):
        g, t = divmod(m, 4)
        comp = groups[g][2]
        first = (g == 0 or groups[g-1][2] != comp) and t == 0
        D = DT[comp]
        if t == 0 and g in opt.get('phg', {}): young_prio(a, opt['phg'][g])
        ops = []
        if g+1 < NG and t < 2: ops += writes(g+1)[4*t:4*t+4]
        if m+2 < 4*NG: ops += aread(m+2) + [wread(2*m+4), wread(2*m+5)]
        if m == 2: ops += [("row", f"ds_read_u8 v{ROW+r}, v6 offset:{L_INV + (r >> 2)*8 + (r & 3)}") for r in range(13)]
        if m == 6: side = [f"v_lshl_add_u32 v{ROW+r}, v{ROW+r}, 17, v5" for r in range(13)]
        ds.need(f"a{m}", f"W{2*m+1}")
        for u in range(2):
            a(f"v_mfma_f32_32x32x16_bf16 {vr(D[u],16)}, {vr(AOP+4*t,4)}, {vr(WOP+4*((2*m+u)&7),4)}, {0 if first else vr(D[u],16)}")
            k = (len(ops) + 1 - u) // (2 - u)
            for op in ops[:k]: ds.op(*op)
            ops = ops[k:]
            if not first:
                for l in side[:opt.get('side', 6)]: a(l)
                side = side[opt.get('side', 6):]
        if t == 3 and (g+1 == NG or groups[g+1][2] != comp):
            for l in side: a(l)
            a(f"s_cmp_lg_u32 s{S_TOTAL}, s{S_WCNT}\ns_cbranch_scc1 {name}_multi{comp}\n{name}_fin{comp}:")
            side = fin(comp)
    a("s_nop 9")
    for l in side: a(l)
    a(f"{name}_next3:")
    stamp(a, opt, 5)
    stamps_out(a, opt)
    a(f"""
s_cmp_ge_u32 s{S_T2}, s{S_TOTAL}
s_cbranch_scc1 {name}_end
s_mov_b32 s{S_WBASE}, s{S_T2}
s_setprio 0
s_waitcnt vmcnt(0) lgkmcnt(0)
s_barrier
s_branch {name}_window
""")
    for comp in range(4):
        D = DT[comp]
        a(f"""
{name}_multi{comp}:
s_nop 15
v_lshrrev_b32 v7, 2, v0
s_add_u32 s{S_T0}, s{S_T3}, {comp*8192}
s_add_u32 s{S_T1}, s{S_T0}, 4096
s_cmp_eq_u32 s{S_WBASE}, 0
s_cbranch_scc1 {name}_mst{comp}
""")
        for u in range(2):
            for r in range(13):
                a(f"buffer_load_dword v{TMP[0]}, v7, {srd(SRD_S)}, s{S_T0+u} offen offset:{256*r} sc1\ns_waitcnt vmcnt(0)\nv_add_f32 v{D[u]+r}, v{D[u]+r}, v{TMP[0]}")
        a(f"{name}_mst{comp}:")
        for u in range(2):
            for r in range(13):
                a(f"buffer_store_dword v{D[u]+r}, v7, {srd(SRD_S)}, s{S_T0+u} offen offset:{256*r}")
        a(f"s_waitcnt vmcnt(0)\ns_branch {name}_fin{comp}")
    a(f"{name}_end:\ns_endpgm")

def dump_regs(a):
    a("s_waitcnt vmcnt(0) lgkmcnt(0)\ns_nop 15")
    a.srd(96, 76, 128 << 20, 64 << 20)
    a(f"""
v_lshrrev_b32 v0, 2, v0
s_lshl_b32 s{S_T0}, s2, 3
s_add_u32 s{S_T0}, s{S_T0}, s{S_WAVE}
s_lshl_b32 s{S_T0}, s{S_T0}, 16
v_mov_b32 v1, s{S_START}
v_mov_b32 v2, s{S_NB}
""")
    for r in range(256):
        a(f"buffer_store_dword v{r}, v0, s[96:99], s{S_T0} offen\ns_add_u32 s{S_T0}, s{S_T0}, 256")
    a("s_endpgm")

def dump_lds(a):
    a("s_waitcnt vmcnt(0) lgkmcnt(0)\ns_barrier")
    a.srd(96, 76, 16 << 20, 200 << 20)
    a(f"""
s_lshl_b32 s{S_T0}, s2, 16
s_lshl_b32 s{S_T1}, s{S_WAVE}, 13
v_add_u32 v21, s{S_T1}, v0
""")
    for j in range(8):
        a(f"ds_read_b128 v[24:27], v21\ns_waitcnt lgkmcnt(0)\nbuffer_store_dwordx4 v[24:27], v21, s[96:99], s{S_T0} offen\ns_waitcnt vmcnt(0)\nv_add_u32 v21, 1024, v21")

def stamp(a, opt, i, grp=0):
    if opt.get('stamps') == 3:
        lo = opt.get('seg', 1)
        if grp == 0 and i in (lo, lo+1):
            a(f"s_memrealtime s[100:101]\ns_waitcnt lgkmcnt(0)\ns_mov_b32 s{93+i-lo}, s100\ns_memtime s[100:101]\ns_waitcnt lgkmcnt(0)\ns_mov_b32 s{95+i-lo}, s100")
        return
    if opt.get('stamps') and (i in (0, 6) or grp == opt.get('grp', 0)):
        a(f"{'s_memtime' if opt['stamps'] == 2 else 's_memrealtime'} s[100:101]\ns_waitcnt lgkmcnt(0)\ns_mov_b32 s{93+i}, s100")

def stamps_out(a, opt):
    if opt.get('stamps'):
        a("s_waitcnt vmcnt(0)")
        stamp(a, opt, 6)
        a.srd(SRD_S, 76, 1 << 20, 240 << 20)
        a(f"s_lshl_b32 s{S_T0}, s2, 3\ns_add_u32 s{S_T0}, s{S_T0}, s{S_WAVE}\ns_lshl_b32 s{S_T0}, s{S_T0}, 5\nv_mov_b32 v0, 0")
        for i in range(7):
            a(f"v_mov_b32 v1, s{93+i}\nbuffer_store_dword v1, v0, {srd(SRD_S)}, s{S_T0} offen offset:{4*i}")
        if opt.get('vmstat'): a(f"s_mov_b32 s{S_NB}, s89")
        if opt.get('xcc'): a(f"s_getreg_b32 s{S_NB}, hwreg(HW_REG_XCC_ID)")
        a(f"v_mov_b32 v1, s{S_NB}\nbuffer_store_dword v1, v0, {srd(SRD_S)}, s{S_T0} offen offset:28\ns_endpgm")

def gen_k2(name, **opt):
    a = Asm()
    prologue(a, name, opt)
    if opt.get('dump'): dump_lds(a)
    pass_b(a, name, opt)
    if opt.get('dump') == 'b': dump_regs(a)
    stamp(a, opt, 2)
    pass_a(a, name, opt)
    if opt.get('dump') == 'a': dump_regs(a)
    stamp(a, opt, 4)
    epilogue(a, name, opt)
    if opt.get('drope'):
        import re
        lo = a.lines.index(f"{name}_spin:") + 6; hi = a.lines.index(f"{name}_next3:")
        a.lines[lo:hi] = [l for l in a.lines[lo:hi] if not re.search(opt['drope'], l)]
    for key, ps in (('drop', 'b'), ('dropa', 'a')):
        if opt.get(key):
            import re
            lo = a.lines.index(f"{name}_{ps}_loop:"); hi = a.lines.index(f"{name}_{ps}_done:")
            a.lines[lo:hi] = [('    s_nop 0' if re.search(opt[key], l) else l) for l in a.lines[lo:hi]]
    return a.text()
```
